```python
import torch

def _softmax(x, axis=-1):
    return torch.softmax(x, dim=axis)
def _gelu(x):
    return torch.nn.functional.gelu(x, approximate="tanh")
def _silu(x):
    return torch.nn.functional.silu(x)
def _sigmoid(x):
    return torch.sigmoid(x)
def _layernorm(x, axis=-1, eps=1e-5):
    m = x.mean(dim=axis, keepdim=True)
    v = x.var(dim=axis, keepdim=True, unbiased=False)
    return (x - m) / torch.sqrt(v + eps)
def _scatter_add(tgt, idx, src, axis=0):
    return tgt.clone().index_add_(axis, idx, src)
def _segment_sum(src, seg, n):
    out = torch.zeros((n,) + src.shape[1:], dtype=src.dtype)
    return out.index_add_(0, seg, src)
def _pad(x, pw):
    flat = tuple(v for pair in reversed(pw) for v in pair)
    return torch.nn.functional.pad(x, flat)

kernel_name = 'standalone__linear_kernel_rfa__decode'

def setup_inputs():

    _w = (lambda a: (lambda t: t.to(torch.bfloat16) if t.is_floating_point() else t)(torch.as_tensor(a)))
    B, H, Sq, Sk, D, M = 2, 16, 1, 16384, 256, 16
    return {
        "q": _w((lambda *s: torch.randn(*s, dtype=torch.bfloat16) * 0.4)(B, H, Sq, D)),
        "k": _w((lambda *s: torch.randn(*s, dtype=torch.bfloat16) * 1.6)(B, H, Sk, D)),
        "v": _w((lambda *s: torch.randn(*s, dtype=torch.bfloat16) * 1.6)(B, H, Sk, D)),
        "omega": _w((lambda *s: torch.randn(*s, dtype=torch.bfloat16) * 1.6)(M, D)),
    }

def reference(q, k, v, omega):
    d = q.shape[-1]
    m = omega.shape[0]
    scale = float(d) ** -0.25
    qs = q * scale
    ks = k * scale
    q_proj = torch.einsum("bhsd,md->bhsm", qs, omega)
    k_proj = torch.einsum("bhsd,md->bhsm", ks, omega)
    q_sq = 0.5 * torch.einsum("bhsd,bhsd->bhs", qs, qs)[..., None]
    k_sq = 0.5 * torch.einsum("bhsd,bhsd->bhs", ks, ks)[..., None]
    inv_sqrt_m = float(m) ** -0.5
    phi_q = torch.exp(q_proj - q_sq) * inv_sqrt_m + 1e-6
    phi_k = torch.exp(k_proj - k_sq) * inv_sqrt_m + 1e-6
    kv = torch.einsum("bhsm,bhsd->bhmd", phi_k, v)
    z  = torch.einsum("bhsm->bhm", phi_k)
    num = torch.einsum("bhqm,bhmd->bhqd", phi_q, kv)
    den = torch.einsum("bhqm,bhm->bhq", phi_q, z)[..., None] + 1e-6
    return num / den
```

```python
import sys, struct
KN = "standalone__linear_kernel_rfa__decode_kernel"
def f2u(x): return struct.unpack("<I", struct.pack("<f", x))[0]

HEADER = """; Kernarg layout for this problem (56 bytes, ptrs only, base s[0:1]):
"""

def gen(ns=2, nw=4, stamp=0):
    NWG = 256
    TILE_B = 8192
    NT = 2048 // 16 // nw
    assert NT % ns == 0 or True
    o = []
    A = lambda s: o.append("  " + s)
    Lb = lambda s: o.append(s + ":")
    lds = nw * 4 * 1024 + 256
    o.append(HEADER.rstrip("\n"))
    o.append(f"; @launch grid=({NWG},1,1) block=({nw*64},1,1) lds={lds}")
    o.append('.amdgcn_target "amdgcn-amd-amdhsa--gfx950"')
    o.append(".text"); o.append(f".globl {KN}"); o.append(".p2align 8"); o.append(f".type {KN},@function"); Lb(KN)
    vKo, vVo, vVo2 = 2, 3, 4
    vOnes = 6
    vM8 = 8
    vEps = 9
    vKP = 12; vG = 16; vX = 20; vY = 24; vT = 28; vPH = 30
    vB = 32
    vPQ = 40
    vACC = 44
    vV = 112
    nv = vV + ns * 32
    aOM = 0; aQ = 32; aK = 64
    na = aK + ns * 32
    acc_off = (nv + 3) // 4 * 4
    sK, sV, sOM, sQ, sOUT, sWS = 20, 24, 28, 32, 36, 40
    sKo, sVo, sCnt, sSel0, sSel1, sMask, sL2E = 48, 49, 50, 52, 53, 54, 62
    sHead, sPart = 64, 65

    A(f"s_load_dwordx8 s[4:11], s[0:1], 0")
    A(f"s_load_dwordx4 s[12:15], s[0:1], 32")
    A(f"s_load_dwordx2 s[16:17], s[0:1], 48")
    A(f"s_cmp_ge_u32 s2, {NWG}")
    A("s_cbranch_scc1 L_end")
    if stamp: A("s_memrealtime s[70:71]")
    A("v_lshrrev_b32 v1, 6, v0")
    A("v_and_b32 v0, 63, v0")
    A("v_readfirstlane_b32 s3, v1")
    A("v_and_b32 v1, 3, v0"); A(f"v_lshlrev_b32 v{vKo}, 11, v1")
    A("v_bfe_u32 v1, v0, 2, 2"); A(f"v_lshl_add_u32 v{vKo}, v1, 9, v{vKo}")
    A("v_lshrrev_b32 v5, 4, v0")
    A(f"v_lshl_add_u32 v{vKo}, v5, 4, v{vKo}")
    A("v_and_b32 v1, 15, v0")
    A(f"v_lshlrev_b32 v{vVo}, 4, v1"); A(f"v_lshl_add_u32 v{vVo}, v5, 9, v{vVo}")
    A(f"v_add_u32 v{vVo2}, 4096, v{vVo}")
    A(f"v_lshlrev_b32 v11, 4, v5"); A(f"v_lshl_add_u32 v10, v1, 9, v11")
    A(f"s_lshl_b32 s{sKo}, s2, 20"); A(f"s_lshl_b32 s18, s3, 13"); A(f"s_add_u32 s{sKo}, s{sKo}, s18")
    A(f"s_mov_b32 s{sVo}, s{sKo}")
    A(f"s_lshr_b32 s{sHead}, s2, 3"); A(f"s_and_b32 s{sPart}, s2, 7")
    A(f"s_mov_b32 s{sK+2}, {1<<28}"); A(f"s_mov_b32 s{sK+3}, 0x20000")
    A(f"s_mov_b32 s{sV+2}, {1<<28}"); A(f"s_mov_b32 s{sV+3}, 0x20000")
    A(f"s_mov_b32 s{sOM+2}, 8192"); A(f"s_mov_b32 s{sOM+3}, 0x20000")
    A(f"s_mov_b32 s{sQ+2}, 16384"); A(f"s_mov_b32 s{sQ+3}, 0x20000")
    A(f"s_lshl_b32 s19, s{sHead}, 9")
    A("s_waitcnt lgkmcnt(0)")
    A(f"s_mov_b32 s{sK}, s6"); A(f"s_and_b32 s{sK+1}, s7, 0xffff")
    def issueK(slot):
        for j in range(8):
            r = aK + slot * 32 + j * 4
            A(f"buffer_load_dwordx4 a[{r}:{r+3}], v{vKo}, s[{sK}:{sK+3}], s{sKo} offen offset:{j*64} nt")
        A(f"s_add_u32 s{sKo}, s{sKo}, {nw*TILE_B}")
    def issueV(slot):
        for j in range(8):
            r = vV + slot * 32 + j * 4
            off = (j // 2) * 2048 + (j % 2) * 256
            vo = vVo if off < 4096 else vVo2
            A(f"buffer_load_dwordx4 v[{r}:{r+3}], v{vo}, s[{sV}:{sV+3}], s{sVo} offen offset:{off%4096} nt")
        A(f"s_add_u32 s{sVo}, s{sVo}, {nw*TILE_B}")
    issueK(0)
    A(f"s_mov_b32 s{sOM}, s10"); A(f"s_and_b32 s{sOM+1}, s11, 0xffff")
    A(f"s_mov_b32 s{sQ}, s4"); A(f"s_and_b32 s{sQ+1}, s5, 0xffff")
    A(f"s_mov_b32 s{sV}, s8"); A(f"s_and_b32 s{sV+1}, s9, 0xffff")
    for j in range(8):
        A(f"buffer_load_dwordx4 a[{aOM+j*4}:{aOM+j*4+3}], v10, s[{sOM}:{sOM+3}], 0 offen offset:{j*64}")
    for j in range(8):
        A(f"buffer_load_dwordx4 a[{aQ+j*4}:{aQ+j*4+3}], v11, s[{sQ}:{sQ+3}], s19 offen offset:{j*64}")
    issueV(0)
    for s in range(1, ns):
        issueK(s); issueV(s)
    A(f"s_mov_b32 s{sSel0}, 0x05040100"); A(f"s_mov_b32 s{sSel1}, 0x07060302")
    for r in range(4):
        m = (1 << r) | (1 << (20 + r)) | (1 << (40 + r)) | (1 << (60 + r))
        A(f"s_mov_b32 s{sMask+2*r}, {m & 0xffffffff:#x}"); A(f"s_mov_b32 s{sMask+2*r+1}, {m >> 32:#x}")
    import math
    A(f"s_mov_b32 s{sL2E}, {f2u(math.log2(math.e)/4):#x}")
    A(f"v_mov_b32 v{vOnes}, 0x3f803f80"); A(f"v_mov_b32 v{vOnes+1}, 0x3f803f80")
    A(f"v_mov_b32 v{vM8}, {f2u(-0.125):#x}"); A(f"v_mov_b32 v{vEps}, {f2u(1e-6):#x}")
    for r in range(68): A(f"v_mov_b32 v{vACC+r}, 0")
    A(f"s_mov_b32 s{sOUT}, s12"); A(f"s_and_b32 s{sOUT+1}, s13, 0xffff"); A(f"s_mov_b32 s{sOUT+2}, 16384"); A(f"s_mov_b32 s{sOUT+3}, 0x20000")
    A(f"s_mov_b32 s{sWS}, s16"); A(f"s_and_b32 s{sWS+1}, s17, 0xffff"); A(f"s_mov_b32 s{sWS+2}, {256*2048}"); A(f"s_mov_b32 s{sWS+3}, 0x20000")

    def round4(src, dst):
        A(f"v_cvt_pk_bf16_f32 v{vT}, v{src}, v{src+1}")
        A(f"v_cvt_pk_bf16_f32 v{vT+1}, v{src+2}, v{src+3}")
        A(f"v_lshlrev_b32 v{dst}, 16, v{vT}"); A(f"v_and_b32 v{dst+1}, 0xffff0000, v{vT}")
        A(f"v_lshlrev_b32 v{dst+2}, 16, v{vT+1}"); A(f"v_and_b32 v{dst+3}, 0xffff0000, v{vT+1}")
    def phi_tail():
        round4(vY, vY)
        for r in range(4): A(f"v_mul_f32 v{vY+r}, s{sL2E}, v{vY+r}")
        for r in range(4): A(f"v_exp_f32 v{vY+r}, v{vY+r}")
        A("s_nop 0")
        round4(vY, vY)
        for r in range(4): A(f"v_fmamk_f32 v{vY+r}, v{vY+r}, 0x3e800000, v{vEps}")
        A(f"v_cvt_pk_bf16_f32 v{vPH}, v{vY}, v{vY+1}")
        A(f"v_cvt_pk_bf16_f32 v{vPH+1}, v{vY+2}, v{vY+3}")

    W = (2 * ns - 1) * 8
    A(f"s_waitcnt vmcnt({W})")
    for j in range(8):
        c = "0" if j == 0 else f"v[{vKP}:{vKP+3}]"
        A(f"v_mfma_f32_16x16x32_bf16 v[{vKP}:{vKP+3}], a[{aOM+j*4}:{aOM+j*4+3}], a[{aQ+j*4}:{aQ+j*4+3}], {c}")
        c = "0" if j == 0 else f"v[{vG}:{vG+3}]"
        A(f"v_mfma_f32_16x16x32_bf16 v[{vG}:{vG+3}], a[{aQ+j*4}:{aQ+j*4+3}], a[{aQ+j*4}:{aQ+j*4+3}], {c}")
    A("s_nop 7")
    round4(vKP, vKP)
    A(f"v_cvt_pk_bf16_f32 v{vX}, v{vG}, v{vG}")
    A(f"v_and_b32 v{vX}, 0xffff0000, v{vX}")
    for r in range(4): A(f"v_fma_f32 v{vY+r}, v{vX}, v{vM8}, v{vKP+r}")
    phi_tail()
    A(f"v_lshlrev_b32 v{vPQ}, 16, v{vPH}"); A(f"v_and_b32 v{vPQ+1}, 0xffff0000, v{vPH}")
    A(f"v_lshlrev_b32 v{vPQ+2}, 16, v{vPH+1}"); A(f"v_and_b32 v{vPQ+3}, 0xffff0000, v{vPH+1}")

    assert NT % ns == 0
    A(f"s_mov_b32 s{sCnt}, {NT // ns}")
    o.append(".p2align 6")
    Lb("L_loop")
    A(f"s_cmp_eq_u32 s{sCnt}, 1")
    A(f"s_cselect_b32 s{sK+2}, 0, s{sK+2}")
    A(f"s_cselect_b32 s{sV+2}, 0, s{sV+2}")
    for s in range(ns):
        k0 = aK + s * 32
        A(f"s_waitcnt vmcnt({W})")
        for j in range(8):
            kr = f"a[{k0+j*4}:{k0+j*4+3}]"
            c = "0" if j == 0 else f"v[{vG}:{vG+3}]"
            A(f"v_mfma_f32_16x16x32_bf16 v[{vG}:{vG+3}], {kr}, {kr}, {c}")
            c = "0" if j == 0 else f"v[{vKP}:{vKP+3}]"
            A(f"v_mfma_f32_16x16x32_bf16 v[{vKP}:{vKP+3}], {kr}, a[{aOM+j*4}:{aOM+j*4+3}], {c}")
        issueK(s)
        A(f"v_cndmask_b32 v{vX}, 0, v{vG}, s[{sMask}:{sMask+1}]")
        for r in range(1, 4):
            A(f"v_cndmask_b32 v{vX}, v{vX}, v{vG+r}, s[{sMask+2*r}:{sMask+2*r+1}]")
        A(f"v_cvt_pk_bf16_f32 v{vX}, v{vX}, v{vX}")
        A(f"v_and_b32 v{vX}, 0xffff0000, v{vX}")
        round4(vKP, vKP)
        A("s_nop 1")
        A(f"v_mfma_f32_16x16x4_f32 v[{vY}:{vY+3}], v{vX}, v{vM8}, v[{vKP}:{vKP+3}]")
        A("s_nop 9")
        phi_tail()
        A(f"s_waitcnt vmcnt({W})")
        v0 = vV + s * 32
        idx = 0
        seq = []
        for h in range(2):
            for c in range(4):
                for p in range(2):
                    seq.append((h, c, p))
        def perms(i):
            h, c, p = seq[i]
            b = vB + (i % 4) * 2
            sel = sSel1 if p else sSel0
            R = lambda r: v0 + (2 * r + h) * 4 + c
            A(f"v_perm_b32 v{b}, v{R(1)}, v{R(0)}, s{sel}")
            A(f"v_perm_b32 v{b+1}, v{R(3)}, v{R(2)}, s{sel}")
        perms(0)
        A(f"v_mfma_f32_16x16x16_bf16 v[{vACC+64}:{vACC+67}], v[{vPH}:{vPH+1}], v[{vOnes}:{vOnes+1}], v[{vACC+64}:{vACC+67}]")
        for i in range(16):
            if i + 1 < 16: perms(i + 1)
            else: A("s_nop 1")
            h, c, p = seq[i]
            b = vB + (i % 4) * 2
            a = vACC + (h * 8 + c * 2 + p) * 4
            A(f"v_mfma_f32_16x16x16_bf16 v[{a}:{a+3}], v[{vPH}:{vPH+1}], v[{b}:{b+1}], v[{a}:{a+3}]")
        issueV(s)
    A(f"s_sub_u32 s{sCnt}, s{sCnt}, 1")
    A(f"s_cmp_lg_u32 s{sCnt}, 0")
    A("s_cbranch_scc1 L_loop")
    if stamp: A("s_memrealtime s[72:73]")

    T = vV
    A("s_waitcnt vmcnt(0)")
    for i in range(17):
        a = vACC + i * 4
        A(f"v_mul_f32 v{T+i}, v{vPQ}, v{a}")
        for r in range(1, 4): A(f"v_fmac_f32 v{T+i}, v{vPQ+r}, v{a+r}")
    A("v_lshrrev_b32 v5, 4, v0"); A("v_and_b32 v1, 15, v0")
    A(f"s_lshl_b32 s18, s3, 2"); A("v_add_u32 v5, s18, v5")
    A(f"v_lshlrev_b32 v10, 10, v5"); A("v_lshl_add_u32 v10, v1, 5, v10")
    A(f"ds_write_b128 v10, v[{T}:{T+3}]"); A(f"ds_write_b128 v10, v[{T+4}:{T+7}] offset:16")
    A(f"ds_write_b128 v10, v[{T+8}:{T+11}] offset:512"); A(f"ds_write_b128 v10, v[{T+12}:{T+15}] offset:528")
    A(f"v_lshlrev_b32 v11, 2, v5")
    A(f"ds_write_b32 v11, v{T+16} offset:{nw*4096}")
    A("s_waitcnt lgkmcnt(0)")
    A("s_barrier")
    A("s_cmp_lg_u32 s3, 0")
    A("s_cbranch_scc1 L_end")
    R0 = vACC
    A("v_lshlrev_b32 v10, 4, v0")
    A("v_mov_b32 v11, 0")
    nrd = nw * 4
    for j in range(nrd):
        A(f"ds_read_b128 v[{R0+j*4}:{R0+j*4+3}], v10 offset:{j*1024}")
    D0 = R0 + nrd * 4
    for j in range(nw):
        A(f"ds_read_b128 v[{D0+j*4}:{D0+j*4+3}], v11 offset:{nw*4096+j*16}")
    A("s_waitcnt lgkmcnt(0)")
    n = nrd
    while n > 1:
        h = n // 2
        for j in range(h):
            for c in range(4): A(f"v_add_f32 v{R0+j*4+c}, v{R0+j*4+c}, v{R0+(j+h)*4+c}")
        n = h
    n = nw * 4
    while n > 1:
        h = n // 2
        for j in range(h): A(f"v_add_f32 v{D0+j}, v{D0+j}, v{D0+j+h}")
        n = h
    A(f"s_lshl_b32 s18, s2, 11")
    A("v_lshlrev_b32 v11, 2, v0")
    A(f"buffer_store_dwordx4 v[{R0}:{R0+3}], v10, s[{sWS}:{sWS+3}], s18 offen sc0 sc1")
    A(f"buffer_store_dword v{D0}, v11, s[{sWS}:{sWS+3}], s18 offen offset:1024 sc0 sc1")
    A(f"s_lshl_b32 s19, s{sHead}, 2")
    A("v_mov_b32 v12, s19"); A("v_mov_b32 v13, 1")
    A("s_waitcnt vmcnt(0)")
    A("s_mov_b64 exec, 1")
    A("global_atomic_add v14, v12, v13, s[14:15] sc0 sc1")
    A("s_waitcnt vmcnt(0)")
    A("v_readfirstlane_b32 s18, v14")
    A("s_mov_b64 exec, -1")
    A("s_cmp_lg_u32 s18, 7")
    A("s_cbranch_scc1 L_end")
    A(f"s_lshl_b32 s18, s{sHead}, 14")
    for p in range(8):
        if p % 2 == 0 and p: A(f"s_add_u32 s18, s18, 4096")
        A(f"buffer_load_dwordx4 v[{R0+p*4}:{R0+p*4+3}], v10, s[{sWS}:{sWS+3}], s18 offen offset:{(p%2)*2048} sc0 sc1")
        A(f"buffer_load_dword v{D0+p}, v11, s[{sWS}:{sWS+3}], s18 offen offset:{(p%2)*2048+1024} sc0 sc1")
    A("s_waitcnt vmcnt(0)")
    n = 8
    while n > 1:
        h = n // 2
        for j in range(h):
            for c in range(4): A(f"v_add_f32 v{R0+j*4+c}, v{R0+j*4+c}, v{R0+(j+h)*4+c}")
            A(f"v_add_f32 v{D0+j}, v{D0+j}, v{D0+j+h}")
        n = h
    round4(R0, R0)
    A(f"v_cvt_pk_bf16_f32 v{D0}, v{D0}, v{D0}"); A(f"v_and_b32 v{D0}, 0xffff0000, v{D0}")
    A(f"v_add_f32 v{D0}, v{D0}, v{vEps}")
    A(f"v_cvt_pk_bf16_f32 v{D0}, v{D0}, v{D0}"); A(f"v_and_b32 v{D0}, 0xffff0000, v{D0}")
    A(f"v_rcp_f32 v{D0+1}, v{D0}")
    A("s_nop 0")
    for c in range(4): A(f"v_mul_f32 v{R0+4+c}, v{R0+c}, v{D0+1}")
    for c in range(4): A(f"v_fma_f32 v{R0+8+c}, -v{D0}, v{R0+4+c}, v{R0+c}")
    for c in range(4): A(f"v_fma_f32 v{R0+4+c}, v{R0+8+c}, v{D0+1}, v{R0+4+c}")
    for c in range(4): A(f"v_div_fixup_f32 v{R0+4+c}, v{R0+4+c}, v{D0}, v{R0+c}")
    A(f"v_cvt_pk_bf16_f32 v{R0}, v{R0+4}, v{R0+5}"); A(f"v_cvt_pk_bf16_f32 v{R0+1}, v{R0+6}, v{R0+7}")
    A("v_lshlrev_b32 v11, 3, v0")
    A(f"s_lshl_b32 s18, s{sHead}, 9")
    A(f"buffer_store_dwordx2 v[{R0}:{R0+1}], v11, s[{sOUT}:{sOUT+3}], s18 offen")
    Lb("L_end")
    A("s_endpgm")
    o.append('.section .rodata,"a"'); o.append(".p2align 6"); o.append(f".amdhsa_kernel {KN}")
    A(f".amdhsa_next_free_vgpr {acc_off + na}"); A(".amdhsa_next_free_sgpr 80"); A(f".amdhsa_accum_offset {acc_off}")
    A(".amdhsa_group_segment_fixed_size 0"); A(".amdhsa_kernarg_size 56"); A(".amdhsa_user_sgpr_count 2")
    A(".amdhsa_user_sgpr_kernarg_segment_ptr 1"); A(".amdhsa_system_sgpr_workgroup_id_x 1")
    A(".amdhsa_float_denorm_mode_32 3")
    o.append(".end_amdhsa_kernel")
    return "\n".join(o) + "\n"

if __name__ == "__main__":
    out = sys.argv[1]
    kw = {}
    for kv in sys.argv[2:]:
        k, v = kv.split("=")
        kw[k] = int(v) if v.lstrip("-").isdigit() else v
    open(out, "w").write(gen(**kw))
```

```python
import sys, struct
KN = "standalone__linear_kernel_rfa__decode_kernel"
def f2u(x): return struct.unpack("<I", struct.pack("<f", x))[0]

HEADER = """; Kernarg layout for this problem (56 bytes, ptrs only, base s[0:1]):
"""

def gen(ns=2, nw=4, stamp=0, kf="nt", vf="nt"):
    kf = kf.replace("+", " ").replace("none", ""); vf = vf.replace("+", " ").replace("none", "")
    NWG = 256
    TILE_B = 8192
    NT = 2048 // 16 // nw
    assert NT % ns == 0 or True
    o = []
    A = lambda s: o.append("  " + s)
    Lb = lambda s: o.append(s + ":")
    lds = nw * 4 * 1024 + 256
    o.append(HEADER.rstrip("\n"))
    o.append(f"; @launch grid=({NWG},1,1) block=({nw*64},1,1) lds={lds}")
    o.append('.amdgcn_target "amdgcn-amd-amdhsa--gfx950"')
    o.append(".text"); o.append(f".globl {KN}"); o.append(".p2align 8"); o.append(f".type {KN},@function"); Lb(KN)
    vKo, vVo, vVo2 = 2, 3, 4
    vOnes = 6
    vM8 = 8
    vEps = 9
    vKP = 12; vG = 16; vX = 20; vY = 24; vT = 28; vPH = 30
    vB = 32
    vPQ = 40
    vACC = 44
    vV = 112
    nv = vV + ns * 32
    aOM = 0; aQ = 32; aK = 64
    na = aK + ns * 32
    acc_off = (nv + 3) // 4 * 4
    sK, sV, sOM, sQ, sOUT, sWS = 20, 24, 28, 32, 36, 40
    sKo, sVo, sCnt, sSel0, sSel1, sMask, sL2E = 48, 49, 50, 52, 53, 54, 62
    sHead, sPart = 64, 65

    A(f"s_load_dwordx8 s[4:11], s[0:1], 0")
    A(f"s_load_dwordx4 s[12:15], s[0:1], 32")
    A(f"s_load_dwordx2 s[16:17], s[0:1], 48")
    A(f"s_cmp_ge_u32 s2, {NWG}")
    A("s_cbranch_scc1 L_end")
    if stamp: A("s_memrealtime s[70:71]")
    A("v_lshrrev_b32 v1, 6, v0")
    A("v_and_b32 v0, 63, v0")
    A("v_readfirstlane_b32 s3, v1")
    A("v_and_b32 v1, 3, v0"); A(f"v_lshlrev_b32 v{vKo}, 11, v1")
    A("v_bfe_u32 v1, v0, 2, 2"); A(f"v_lshl_add_u32 v{vKo}, v1, 9, v{vKo}")
    A("v_lshrrev_b32 v5, 4, v0")
    A(f"v_lshl_add_u32 v{vKo}, v5, 4, v{vKo}")
    A("v_and_b32 v1, 15, v0")
    A(f"v_lshlrev_b32 v{vVo}, 4, v1"); A(f"v_lshl_add_u32 v{vVo}, v5, 9, v{vVo}")
    A(f"v_add_u32 v{vVo2}, 4096, v{vVo}")
    A(f"v_lshlrev_b32 v11, 4, v5"); A(f"v_lshl_add_u32 v10, v1, 9, v11")
    A(f"s_lshl_b32 s{sKo}, s2, 20"); A(f"s_lshl_b32 s18, s3, 13"); A(f"s_add_u32 s{sKo}, s{sKo}, s18")
    A(f"s_mov_b32 s{sVo}, s{sKo}")
    A(f"s_lshr_b32 s{sHead}, s2, 3"); A(f"s_and_b32 s{sPart}, s2, 7")
    A(f"s_mov_b32 s{sK+2}, {1<<28}"); A(f"s_mov_b32 s{sK+3}, 0x20000")
    A(f"s_mov_b32 s{sV+2}, {1<<28}"); A(f"s_mov_b32 s{sV+3}, 0x20000")
    A(f"s_mov_b32 s{sOM+2}, 8192"); A(f"s_mov_b32 s{sOM+3}, 0x20000")
    A(f"s_mov_b32 s{sQ+2}, 16384"); A(f"s_mov_b32 s{sQ+3}, 0x20000")
    A(f"s_lshl_b32 s19, s{sHead}, 9")
    A("s_waitcnt lgkmcnt(0)")
    A(f"s_mov_b32 s{sK}, s6"); A(f"s_and_b32 s{sK+1}, s7, 0xffff")
    def issueK(slot):
        for j in range(8):
            r = aK + slot * 32 + j * 4
            A(f"buffer_load_dwordx4 a[{r}:{r+3}], v{vKo}, s[{sK}:{sK+3}], s{sKo} offen offset:{j*64} {kf}")
        A(f"s_add_u32 s{sKo}, s{sKo}, {nw*TILE_B}")
    def issueV(slot):
        for j in range(8):
            r = vV + slot * 32 + j * 4
            off = (j // 2) * 2048 + (j % 2) * 256
            vo = vVo if off < 4096 else vVo2
            A(f"buffer_load_dwordx4 v[{r}:{r+3}], v{vo}, s[{sV}:{sV+3}], s{sVo} offen offset:{off%4096} {vf}")
        A(f"s_add_u32 s{sVo}, s{sVo}, {nw*TILE_B}")
    issueK(0)
    A(f"s_mov_b32 s{sOM}, s10"); A(f"s_and_b32 s{sOM+1}, s11, 0xffff")
    A(f"s_mov_b32 s{sQ}, s4"); A(f"s_and_b32 s{sQ+1}, s5, 0xffff")
    A(f"s_mov_b32 s{sV}, s8"); A(f"s_and_b32 s{sV+1}, s9, 0xffff")
    for j in range(8):
        A(f"buffer_load_dwordx4 a[{aOM+j*4}:{aOM+j*4+3}], v10, s[{sOM}:{sOM+3}], 0 offen offset:{j*64}")
    for j in range(8):
        A(f"buffer_load_dwordx4 a[{aQ+j*4}:{aQ+j*4+3}], v11, s[{sQ}:{sQ+3}], s19 offen offset:{j*64}")
    issueV(0)
    for s in range(1, ns):
        issueK(s); issueV(s)
    A(f"s_mov_b32 s{sSel0}, 0x05040100"); A(f"s_mov_b32 s{sSel1}, 0x07060302")
    for r in range(4):
        m = (1 << r) | (1 << (20 + r)) | (1 << (40 + r)) | (1 << (60 + r))
        A(f"s_mov_b32 s{sMask+2*r}, {m & 0xffffffff:#x}"); A(f"s_mov_b32 s{sMask+2*r+1}, {m >> 32:#x}")
    import math
    A(f"s_mov_b32 s{sL2E}, {f2u(math.log2(math.e)/4):#x}")
    A(f"v_mov_b32 v{vOnes}, 0x3f803f80"); A(f"v_mov_b32 v{vOnes+1}, 0x3f803f80")
    A(f"v_mov_b32 v{vM8}, {f2u(-0.125):#x}"); A(f"v_mov_b32 v{vEps}, {f2u(1e-6):#x}")
    for r in range(68): A(f"v_mov_b32 v{vACC+r}, 0")
    A(f"s_mov_b32 s{sOUT}, s12"); A(f"s_and_b32 s{sOUT+1}, s13, 0xffff"); A(f"s_mov_b32 s{sOUT+2}, 16384"); A(f"s_mov_b32 s{sOUT+3}, 0x20000")
    A(f"s_mov_b32 s{sWS}, s16"); A(f"s_and_b32 s{sWS+1}, s17, 0xffff"); A(f"s_mov_b32 s{sWS+2}, {256*2048}"); A(f"s_mov_b32 s{sWS+3}, 0x20000")

    def round4(src, dst):
        A(f"v_cvt_pk_bf16_f32 v{vT}, v{src}, v{src+1}")
        A(f"v_cvt_pk_bf16_f32 v{vT+1}, v{src+2}, v{src+3}")
        A(f"v_lshlrev_b32 v{dst}, 16, v{vT}"); A(f"v_and_b32 v{dst+1}, 0xffff0000, v{vT}")
        A(f"v_lshlrev_b32 v{dst+2}, 16, v{vT+1}"); A(f"v_and_b32 v{dst+3}, 0xffff0000, v{vT+1}")
    def phi_tail():
        round4(vY, vY)
        for r in range(4): A(f"v_mul_f32 v{vY+r}, s{sL2E}, v{vY+r}")
        for r in range(4): A(f"v_exp_f32 v{vY+r}, v{vY+r}")
        A("s_nop 0")
        round4(vY, vY)
        for r in range(4): A(f"v_fmamk_f32 v{vY+r}, v{vY+r}, 0x3e800000, v{vEps}")
        A(f"v_cvt_pk_bf16_f32 v{vPH}, v{vY}, v{vY+1}")
        A(f"v_cvt_pk_bf16_f32 v{vPH+1}, v{vY+2}, v{vY+3}")

    W = (2 * ns - 1) * 8
    A(f"s_waitcnt vmcnt({W})")
    for j in range(8):
        c = "0" if j == 0 else f"v[{vKP}:{vKP+3}]"
        A(f"v_mfma_f32_16x16x32_bf16 v[{vKP}:{vKP+3}], a[{aOM+j*4}:{aOM+j*4+3}], a[{aQ+j*4}:{aQ+j*4+3}], {c}")
        c = "0" if j == 0 else f"v[{vG}:{vG+3}]"
        A(f"v_mfma_f32_16x16x32_bf16 v[{vG}:{vG+3}], a[{aQ+j*4}:{aQ+j*4+3}], a[{aQ+j*4}:{aQ+j*4+3}], {c}")
    A("s_nop 7")
    round4(vKP, vKP)
    A(f"v_cvt_pk_bf16_f32 v{vX}, v{vG}, v{vG}")
    A(f"v_and_b32 v{vX}, 0xffff0000, v{vX}")
    for r in range(4): A(f"v_fma_f32 v{vY+r}, v{vX}, v{vM8}, v{vKP+r}")
    phi_tail()
    A(f"v_lshlrev_b32 v{vPQ}, 16, v{vPH}"); A(f"v_and_b32 v{vPQ+1}, 0xffff0000, v{vPH}")
    A(f"v_lshlrev_b32 v{vPQ+2}, 16, v{vPH+1}"); A(f"v_and_b32 v{vPQ+3}, 0xffff0000, v{vPH+1}")

    assert NT % ns == 0
    A(f"s_mov_b32 s{sCnt}, {NT // ns}")
    o.append(".p2align 6")
    Lb("L_loop")
    A(f"s_cmp_eq_u32 s{sCnt}, 1")
    A(f"s_cselect_b32 s{sK+2}, 0, s{sK+2}")
    A(f"s_cselect_b32 s{sV+2}, 0, s{sV+2}")
    for s in range(ns):
        k0 = aK + s * 32
        A(f"s_waitcnt vmcnt({W})")
        for j in range(8):
            kr = f"a[{k0+j*4}:{k0+j*4+3}]"
            c = "0" if j == 0 else f"v[{vG}:{vG+3}]"
            A(f"v_mfma_f32_16x16x32_bf16 v[{vG}:{vG+3}], {kr}, {kr}, {c}")
            c = "0" if j == 0 else f"v[{vKP}:{vKP+3}]"
            A(f"v_mfma_f32_16x16x32_bf16 v[{vKP}:{vKP+3}], {kr}, a[{aOM+j*4}:{aOM+j*4+3}], {c}")
        issueK(s)
        A(f"v_cndmask_b32 v{vX}, 0, v{vG}, s[{sMask}:{sMask+1}]")
        for r in range(1, 4):
            A(f"v_cndmask_b32 v{vX}, v{vX}, v{vG+r}, s[{sMask+2*r}:{sMask+2*r+1}]")
        A(f"v_cvt_pk_bf16_f32 v{vX}, v{vX}, v{vX}")
        A(f"v_and_b32 v{vX}, 0xffff0000, v{vX}")
        round4(vKP, vKP)
        A("s_nop 1")
        A(f"v_mfma_f32_16x16x4_f32 v[{vY}:{vY+3}], v{vX}, v{vM8}, v[{vKP}:{vKP+3}]")
        A("s_nop 9")
        phi_tail()
        A(f"s_waitcnt vmcnt({W})")
        v0 = vV + s * 32
        idx = 0
        seq = []
        for h in range(2):
            for c in range(4):
                for p in range(2):
                    seq.append((h, c, p))
        def perms(i):
            h, c, p = seq[i]
            b = vB + (i % 4) * 2
            sel = sSel1 if p else sSel0
            R = lambda r: v0 + (2 * r + h) * 4 + c
            A(f"v_perm_b32 v{b}, v{R(1)}, v{R(0)}, s{sel}")
            A(f"v_perm_b32 v{b+1}, v{R(3)}, v{R(2)}, s{sel}")
        perms(0)
        A(f"v_mfma_f32_16x16x16_bf16 v[{vACC+64}:{vACC+67}], v[{vPH}:{vPH+1}], v[{vOnes}:{vOnes+1}], v[{vACC+64}:{vACC+67}]")
        for i in range(16):
            if i + 1 < 16: perms(i + 1)
            else: A("s_nop 1")
            h, c, p = seq[i]
            b = vB + (i % 4) * 2
            a = vACC + (h * 8 + c * 2 + p) * 4
            A(f"v_mfma_f32_16x16x16_bf16 v[{a}:{a+3}], v[{vPH}:{vPH+1}], v[{b}:{b+1}], v[{a}:{a+3}]")
        issueV(s)
    A(f"s_sub_u32 s{sCnt}, s{sCnt}, 1")
    A(f"s_cmp_lg_u32 s{sCnt}, 0")
    A("s_cbranch_scc1 L_loop")
    if stamp: A("s_memrealtime s[72:73]")

    T = vV
    A("s_waitcnt vmcnt(0)")
    for i in range(17):
        a = vACC + i * 4
        A(f"v_mul_f32 v{T+i}, v{vPQ}, v{a}")
        for r in range(1, 4): A(f"v_fmac_f32 v{T+i}, v{vPQ+r}, v{a+r}")
    A("v_lshrrev_b32 v5, 4, v0"); A("v_and_b32 v1, 15, v0")
    A(f"s_lshl_b32 s18, s3, 2"); A("v_add_u32 v5, s18, v5")
    A(f"v_lshlrev_b32 v10, 10, v5"); A("v_lshl_add_u32 v10, v1, 5, v10")
    A(f"ds_write_b128 v10, v[{T}:{T+3}]"); A(f"ds_write_b128 v10, v[{T+4}:{T+7}] offset:16")
    A(f"ds_write_b128 v10, v[{T+8}:{T+11}] offset:512"); A(f"ds_write_b128 v10, v[{T+12}:{T+15}] offset:528")
    A(f"v_lshlrev_b32 v11, 2, v5")
    A(f"ds_write_b32 v11, v{T+16} offset:{nw*4096}")
    A("s_waitcnt lgkmcnt(0)")
    A("s_barrier")
    A("s_cmp_lg_u32 s3, 0")
    A("s_cbranch_scc1 L_end")
    R0 = vACC
    A("v_lshlrev_b32 v10, 4, v0")
    A("v_mov_b32 v11, 0")
    nrd = nw * 4
    for j in range(nrd):
        A(f"ds_read_b128 v[{R0+j*4}:{R0+j*4+3}], v10 offset:{j*1024}")
    D0 = R0 + nrd * 4
    for j in range(nw):
        A(f"ds_read_b128 v[{D0+j*4}:{D0+j*4+3}], v11 offset:{nw*4096+j*16}")
    A("s_waitcnt lgkmcnt(0)")
    n = nrd
    while n > 1:
        h = n // 2
        for j in range(h):
            for c in range(4): A(f"v_add_f32 v{R0+j*4+c}, v{R0+j*4+c}, v{R0+(j+h)*4+c}")
        n = h
    n = nw * 4
    while n > 1:
        h = n // 2
        for j in range(h): A(f"v_add_f32 v{D0+j}, v{D0+j}, v{D0+j+h}")
        n = h
    A(f"s_lshl_b32 s18, s2, 11")
    A("v_lshlrev_b32 v11, 2, v0")
    A(f"buffer_store_dwordx4 v[{R0}:{R0+3}], v10, s[{sWS}:{sWS+3}], s18 offen sc0 sc1")
    A(f"buffer_store_dword v{D0}, v11, s[{sWS}:{sWS+3}], s18 offen offset:1024 sc0 sc1")
    A(f"s_lshl_b32 s19, s{sHead}, 2")
    A("v_mov_b32 v12, s19"); A("v_mov_b32 v13, 1")
    A("s_waitcnt vmcnt(0)")
    A("s_mov_b64 exec, 1")
    A("global_atomic_add v14, v12, v13, s[14:15] sc0 sc1")
    A("s_waitcnt vmcnt(0)")
    A("v_readfirstlane_b32 s18, v14")
    A("s_mov_b64 exec, -1")
    A("s_cmp_lg_u32 s18, 7")
    A("s_cbranch_scc1 L_end")
    A(f"s_lshl_b32 s18, s{sHead}, 14")
    for p in range(8):
        if p % 2 == 0 and p: A(f"s_add_u32 s18, s18, 4096")
        A(f"buffer_load_dwordx4 v[{R0+p*4}:{R0+p*4+3}], v10, s[{sWS}:{sWS+3}], s18 offen offset:{(p%2)*2048} sc0 sc1")
        A(f"buffer_load_dword v{D0+p}, v11, s[{sWS}:{sWS+3}], s18 offen offset:{(p%2)*2048+1024} sc0 sc1")
    A("s_waitcnt vmcnt(0)")
    n = 8
    while n > 1:
        h = n // 2
        for j in range(h):
            for c in range(4): A(f"v_add_f32 v{R0+j*4+c}, v{R0+j*4+c}, v{R0+(j+h)*4+c}")
            A(f"v_add_f32 v{D0+j}, v{D0+j}, v{D0+j+h}")
        n = h
    round4(R0, R0)
    A(f"v_cvt_pk_bf16_f32 v{D0}, v{D0}, v{D0}"); A(f"v_and_b32 v{D0}, 0xffff0000, v{D0}")
    A(f"v_add_f32 v{D0}, v{D0}, v{vEps}")
    A(f"v_cvt_pk_bf16_f32 v{D0}, v{D0}, v{D0}"); A(f"v_and_b32 v{D0}, 0xffff0000, v{D0}")
    A(f"v_rcp_f32 v{D0+1}, v{D0}")
    A("s_nop 0")
    for c in range(4): A(f"v_mul_f32 v{R0+4+c}, v{R0+c}, v{D0+1}")
    for c in range(4): A(f"v_fma_f32 v{R0+8+c}, -v{D0}, v{R0+4+c}, v{R0+c}")
    for c in range(4): A(f"v_fma_f32 v{R0+4+c}, v{R0+8+c}, v{D0+1}, v{R0+4+c}")
    for c in range(4): A(f"v_div_fixup_f32 v{R0+4+c}, v{R0+4+c}, v{D0}, v{R0+c}")
    A(f"v_cvt_pk_bf16_f32 v{R0}, v{R0+4}, v{R0+5}"); A(f"v_cvt_pk_bf16_f32 v{R0+1}, v{R0+6}, v{R0+7}")
    A("v_lshlrev_b32 v11, 3, v0")
    A(f"s_lshl_b32 s18, s{sHead}, 9")
    A(f"buffer_store_dwordx2 v[{R0}:{R0+1}], v11, s[{sOUT}:{sOUT+3}], s18 offen")
    Lb("L_end")
    A("s_endpgm")
    o.append('.section .rodata,"a"'); o.append(".p2align 6"); o.append(f".amdhsa_kernel {KN}")
    A(f".amdhsa_next_free_vgpr {acc_off + na}"); A(".amdhsa_next_free_sgpr 80"); A(f".amdhsa_accum_offset {acc_off}")
    A(".amdhsa_group_segment_fixed_size 0"); A(".amdhsa_kernarg_size 56"); A(".amdhsa_user_sgpr_count 2")
    A(".amdhsa_user_sgpr_kernarg_segment_ptr 1"); A(".amdhsa_system_sgpr_workgroup_id_x 1")
    A(".amdhsa_float_denorm_mode_32 3")
    o.append(".end_amdhsa_kernel")
    return "\n".join(o) + "\n"

if __name__ == "__main__":
    out = sys.argv[1]
    kw = {}
    for kv in sys.argv[2:]:
        k, v = kv.split("=")
        kw[k] = int(v) if v.lstrip("-").isdigit() else v
    open(out, "w").write(gen(**kw))
```

```python
import sys, struct
KN = "standalone__linear_kernel_rfa__decode_kernel"
def f2u(x): return struct.unpack("<I", struct.pack("<f", x))[0]

HEADER = """; Kernarg layout for this problem (56 bytes, ptrs only, base s[0:1]):
"""

def gen(ns=2, nw=4, stamp=0, kf="nt", vf="nt"):
    kf = kf.replace("+", " ").replace("none", ""); vf = vf.replace("+", " ").replace("none", "")
    NWG = 256
    TILE_B = 8192
    NT = 2048 // 16 // nw
    assert NT % ns == 0 or True
    o = []
    A = lambda s: o.append("  " + s)
    Lb = lambda s: o.append(s + ":")
    lds = nw * 4 * 1024 + 256
    o.append(HEADER.rstrip("\n"))
    o.append(f"; @launch grid=({NWG},1,1) block=({nw*64},1,1) lds={lds}")
    o.append('.amdgcn_target "amdgcn-amd-amdhsa--gfx950"')
    o.append(".text"); o.append(f".globl {KN}"); o.append(".p2align 8"); o.append(f".type {KN},@function"); Lb(KN)
    vKo, vVo, vVo2 = 2, 3, 4
    vOnes = 6
    vM8 = 8
    vEps = 9
    vKP = 12; vG = 16; vX = 20; vY = 24; vT = 28; vPH = 30
    vB = 32
    vPQ = 40
    vACC = 44
    vV = 112
    nv = vV + ns * 32
    aOM = 0; aQ = 32; aK = 64
    na = aK + ns * 32
    acc_off = (nv + 3) // 4 * 4
    sK, sV, sOM, sQ, sOUT, sWS = 20, 24, 28, 32, 36, 40
    sKo, sVo, sCnt, sSel0, sSel1, sMask, sL2E = 48, 49, 50, 52, 53, 54, 62
    sHead, sPart = 64, 65

    A(f"s_load_dwordx8 s[4:11], s[0:1], 0")
    A(f"s_load_dwordx4 s[12:15], s[0:1], 32")
    A(f"s_load_dwordx2 s[16:17], s[0:1], 48")
    A(f"s_cmp_ge_u32 s2, {NWG}")
    A("s_cbranch_scc1 L_end")
    if stamp: A("s_memrealtime s[70:71]")
    A("v_lshrrev_b32 v1, 6, v0")
    A("v_and_b32 v0, 63, v0")
    A("v_readfirstlane_b32 s3, v1")
    A("v_and_b32 v1, 3, v0"); A(f"v_lshlrev_b32 v{vKo}, 11, v1")
    A("v_bfe_u32 v1, v0, 2, 2"); A(f"v_lshl_add_u32 v{vKo}, v1, 9, v{vKo}")
    A("v_lshrrev_b32 v5, 4, v0")
    A(f"v_lshl_add_u32 v{vKo}, v5, 4, v{vKo}")
    A("v_and_b32 v1, 15, v0")
    A(f"v_lshlrev_b32 v{vVo}, 4, v1"); A(f"v_lshl_add_u32 v{vVo}, v5, 9, v{vVo}")
    A(f"v_add_u32 v{vVo2}, 4096, v{vVo}")
    A(f"v_lshlrev_b32 v11, 4, v5"); A(f"v_lshl_add_u32 v10, v1, 9, v11")
    A(f"s_lshl_b32 s{sKo}, s2, 20"); A(f"s_lshl_b32 s18, s3, 13"); A(f"s_add_u32 s{sKo}, s{sKo}, s18")
    A(f"s_mov_b32 s{sVo}, s{sKo}")
    A(f"s_lshr_b32 s{sHead}, s2, 3"); A(f"s_and_b32 s{sPart}, s2, 7")
    A(f"s_mov_b32 s{sK+2}, {1<<28}"); A(f"s_mov_b32 s{sK+3}, 0x20000")
    A(f"s_mov_b32 s{sV+2}, {1<<28}"); A(f"s_mov_b32 s{sV+3}, 0x20000")
    A(f"s_mov_b32 s{sOM+2}, 8192"); A(f"s_mov_b32 s{sOM+3}, 0x20000")
    A(f"s_mov_b32 s{sQ+2}, 16384"); A(f"s_mov_b32 s{sQ+3}, 0x20000")
    A(f"s_lshl_b32 s19, s{sHead}, 9")
    A("s_waitcnt lgkmcnt(0)")
    A(f"s_mov_b32 s{sK}, s6"); A(f"s_and_b32 s{sK+1}, s7, 0xffff")
    def issueK(slot):
        for j in range(8):
            r = aK + slot * 32 + j * 4
            A(f"buffer_load_dwordx4 a[{r}:{r+3}], v{vKo}, s[{sK}:{sK+3}], s{sKo} offen offset:{j*64} {kf}")
        A(f"s_add_u32 s{sKo}, s{sKo}, {nw*TILE_B}")
    def issueV(slot):
        for j in range(8):
            r = vV + slot * 32 + j * 4
            off = (j // 2) * 2048 + (j % 2) * 256
            vo = vVo if off < 4096 else vVo2
            A(f"buffer_load_dwordx4 v[{r}:{r+3}], v{vo}, s[{sV}:{sV+3}], s{sVo} offen offset:{off%4096} {vf}")
        A(f"s_add_u32 s{sVo}, s{sVo}, {nw*TILE_B}")
    issueK(0)
    A(f"s_mov_b32 s{sOM}, s10"); A(f"s_and_b32 s{sOM+1}, s11, 0xffff")
    A(f"s_mov_b32 s{sQ}, s4"); A(f"s_and_b32 s{sQ+1}, s5, 0xffff")
    A(f"s_mov_b32 s{sV}, s8"); A(f"s_and_b32 s{sV+1}, s9, 0xffff")
    for j in range(8):
        A(f"buffer_load_dwordx4 a[{aOM+j*4}:{aOM+j*4+3}], v10, s[{sOM}:{sOM+3}], 0 offen offset:{j*64}")
    for j in range(8):
        A(f"buffer_load_dwordx4 a[{aQ+j*4}:{aQ+j*4+3}], v11, s[{sQ}:{sQ+3}], s19 offen offset:{j*64}")
    issueV(0)
    for s in range(1, ns):
        issueK(s); issueV(s)
    A(f"s_mov_b32 s{sSel0}, 0x05040100"); A(f"s_mov_b32 s{sSel1}, 0x07060302")
    for r in range(4):
        m = (1 << r) | (1 << (20 + r)) | (1 << (40 + r)) | (1 << (60 + r))
        A(f"s_mov_b32 s{sMask+2*r}, {m & 0xffffffff:#x}"); A(f"s_mov_b32 s{sMask+2*r+1}, {m >> 32:#x}")
    import math
    A(f"s_mov_b32 s{sL2E}, {f2u(math.log2(math.e)/4):#x}")
    A(f"v_mov_b32 v{vOnes}, 0x3f803f80"); A(f"v_mov_b32 v{vOnes+1}, 0x3f803f80")
    A(f"v_mov_b32 v{vM8}, {f2u(-0.125):#x}"); A(f"v_mov_b32 v{vEps}, {f2u(1e-6):#x}")
    for r in range(68): A(f"v_mov_b32 v{vACC+r}, 0")
    A(f"s_mov_b32 s{sOUT}, s12"); A(f"s_and_b32 s{sOUT+1}, s13, 0xffff"); A(f"s_mov_b32 s{sOUT+2}, 16384"); A(f"s_mov_b32 s{sOUT+3}, 0x20000")
    A(f"s_mov_b32 s{sWS}, s16"); A(f"s_and_b32 s{sWS+1}, s17, 0xffff"); A(f"s_mov_b32 s{sWS+2}, {256*2048}"); A(f"s_mov_b32 s{sWS+3}, 0x20000")

    def round4(src, dst):
        A(f"v_cvt_pk_bf16_f32 v{vT}, v{src}, v{src+1}")
        A(f"v_cvt_pk_bf16_f32 v{vT+1}, v{src+2}, v{src+3}")
        A(f"v_lshlrev_b32 v{dst}, 16, v{vT}"); A(f"v_and_b32 v{dst+1}, 0xffff0000, v{vT}")
        A(f"v_lshlrev_b32 v{dst+2}, 16, v{vT+1}"); A(f"v_and_b32 v{dst+3}, 0xffff0000, v{vT+1}")
    def phi_tail():
        round4(vY, vY)
        for r in range(4): A(f"v_mul_f32 v{vY+r}, s{sL2E}, v{vY+r}")
        for r in range(4): A(f"v_exp_f32 v{vY+r}, v{vY+r}")
        A("s_nop 0")
        round4(vY, vY)
        for r in range(4): A(f"v_fmamk_f32 v{vY+r}, v{vY+r}, 0x3e800000, v{vEps}")
        A(f"v_cvt_pk_bf16_f32 v{vPH}, v{vY}, v{vY+1}")
        A(f"v_cvt_pk_bf16_f32 v{vPH+1}, v{vY+2}, v{vY+3}")

    W = (2 * ns - 1) * 8
    A(f"s_waitcnt vmcnt({W})")
    for j in range(8):
        c = "0" if j == 0 else f"v[{vKP}:{vKP+3}]"
        A(f"v_mfma_f32_16x16x32_bf16 v[{vKP}:{vKP+3}], a[{aOM+j*4}:{aOM+j*4+3}], a[{aQ+j*4}:{aQ+j*4+3}], {c}")
        c = "0" if j == 0 else f"v[{vG}:{vG+3}]"
        A(f"v_mfma_f32_16x16x32_bf16 v[{vG}:{vG+3}], a[{aQ+j*4}:{aQ+j*4+3}], a[{aQ+j*4}:{aQ+j*4+3}], {c}")
    A("s_nop 7")
    round4(vKP, vKP)
    A(f"v_cvt_pk_bf16_f32 v{vX}, v{vG}, v{vG}")
    A(f"v_and_b32 v{vX}, 0xffff0000, v{vX}")
    for r in range(4): A(f"v_fma_f32 v{vY+r}, v{vX}, v{vM8}, v{vKP+r}")
    phi_tail()
    A(f"v_lshlrev_b32 v{vPQ}, 16, v{vPH}"); A(f"v_and_b32 v{vPQ+1}, 0xffff0000, v{vPH}")
    A(f"v_lshlrev_b32 v{vPQ+2}, 16, v{vPH+1}"); A(f"v_and_b32 v{vPQ+3}, 0xffff0000, v{vPH+1}")

    assert NT % ns == 0
    A(f"s_mov_b32 s{sCnt}, {NT // ns}")
    o.append(".p2align 6")
    Lb("L_loop")
    A(f"s_cmp_eq_u32 s{sCnt}, 1")
    A(f"s_cselect_b32 s{sK+2}, 0, s{sK+2}")
    A(f"s_cselect_b32 s{sV+2}, 0, s{sV+2}")
    for s in range(ns):
        k0 = aK + s * 32
        A(f"s_waitcnt vmcnt({W})")
        for j in range(8):
            kr = f"a[{k0+j*4}:{k0+j*4+3}]"
            c = "0" if j == 0 else f"v[{vG}:{vG+3}]"
            A(f"v_mfma_f32_16x16x32_bf16 v[{vG}:{vG+3}], {kr}, {kr}, {c}")
            c = "0" if j == 0 else f"v[{vKP}:{vKP+3}]"
            A(f"v_mfma_f32_16x16x32_bf16 v[{vKP}:{vKP+3}], {kr}, a[{aOM+j*4}:{aOM+j*4+3}], {c}")
        issueK(s)
        A(f"v_cndmask_b32 v{vX}, 0, v{vG}, s[{sMask}:{sMask+1}]")
        for r in range(1, 4):
            A(f"v_cndmask_b32 v{vX}, v{vX}, v{vG+r}, s[{sMask+2*r}:{sMask+2*r+1}]")
        A(f"v_cvt_pk_bf16_f32 v{vX}, v{vX}, v{vX}")
        A(f"v_and_b32 v{vX}, 0xffff0000, v{vX}")
        round4(vKP, vKP)
        A("s_nop 1")
        A(f"v_mfma_f32_16x16x4_f32 v[{vY}:{vY+3}], v{vX}, v{vM8}, v[{vKP}:{vKP+3}]")
        A("s_nop 9")
        phi_tail()
        A(f"s_waitcnt vmcnt({W})")
        v0 = vV + s * 32
        idx = 0
        seq = []
        for h in range(2):
            for c in range(4):
                for p in range(2):
                    seq.append((h, c, p))
        def perms(i):
            h, c, p = seq[i]
            b = vB + (i % 4) * 2
            sel = sSel1 if p else sSel0
            R = lambda r: v0 + (2 * r + h) * 4 + c
            A(f"v_perm_b32 v{b}, v{R(1)}, v{R(0)}, s{sel}")
            A(f"v_perm_b32 v{b+1}, v{R(3)}, v{R(2)}, s{sel}")
        perms(0)
        A(f"v_mfma_f32_16x16x16_bf16 v[{vACC+64}:{vACC+67}], v[{vPH}:{vPH+1}], v[{vOnes}:{vOnes+1}], v[{vACC+64}:{vACC+67}]")
        for i in range(16):
            if i + 1 < 16: perms(i + 1)
            else: A("s_nop 1")
            h, c, p = seq[i]
            b = vB + (i % 4) * 2
            a = vACC + (h * 8 + c * 2 + p) * 4
            A(f"v_mfma_f32_16x16x16_bf16 v[{a}:{a+3}], v[{vPH}:{vPH+1}], v[{b}:{b+1}], v[{a}:{a+3}]")
        issueV(s)
    A(f"s_sub_u32 s{sCnt}, s{sCnt}, 1")
    A(f"s_cmp_lg_u32 s{sCnt}, 0")
    A("s_cbranch_scc1 L_loop")
    if stamp: A("s_memrealtime s[72:73]")

    T = vV
    A("s_waitcnt vmcnt(0)")
    for i in range(17):
        a = vACC + i * 4
        A(f"v_mul_f32 v{T+i}, v{vPQ}, v{a}")
        for r in range(1, 4): A(f"v_fmac_f32 v{T+i}, v{vPQ+r}, v{a+r}")
    A("v_lshrrev_b32 v5, 4, v0"); A("v_and_b32 v1, 15, v0")
    A(f"s_lshl_b32 s18, s3, 2"); A("v_add_u32 v5, s18, v5")
    A(f"v_lshlrev_b32 v10, 10, v5"); A("v_lshl_add_u32 v10, v1, 5, v10")
    A(f"ds_write_b128 v10, v[{T}:{T+3}]"); A(f"ds_write_b128 v10, v[{T+4}:{T+7}] offset:16")
    A(f"ds_write_b128 v10, v[{T+8}:{T+11}] offset:512"); A(f"ds_write_b128 v10, v[{T+12}:{T+15}] offset:528")
    A(f"v_lshlrev_b32 v11, 2, v5")
    A(f"ds_write_b32 v11, v{T+16} offset:{nw*4096}")
    A("s_waitcnt lgkmcnt(0)")
    A("s_barrier")
    A("s_cmp_lg_u32 s3, 0")
    A("s_cbranch_scc1 L_end")
    R0 = vACC
    A("v_lshlrev_b32 v10, 4, v0")
    A("v_mov_b32 v11, 0")
    nrd = nw * 4
    for j in range(nrd):
        A(f"ds_read_b128 v[{R0+j*4}:{R0+j*4+3}], v10 offset:{j*1024}")
    D0 = R0 + nrd * 4
    for j in range(nw):
        A(f"ds_read_b128 v[{D0+j*4}:{D0+j*4+3}], v11 offset:{nw*4096+j*16}")
    A("s_waitcnt lgkmcnt(0)")
    n = nrd
    while n > 1:
        h = n // 2
        for j in range(h):
            for c in range(4): A(f"v_add_f32 v{R0+j*4+c}, v{R0+j*4+c}, v{R0+(j+h)*4+c}")
        n = h
    n = nw * 4
    while n > 1:
        h = n // 2
        for j in range(h): A(f"v_add_f32 v{D0+j}, v{D0+j}, v{D0+j+h}")
        n = h
    A(f"s_lshl_b32 s18, s2, 11")
    A("v_lshlrev_b32 v11, 2, v0")
    A(f"buffer_store_dwordx4 v[{R0}:{R0+3}], v10, s[{sWS}:{sWS+3}], s18 offen sc0 sc1")
    A(f"buffer_store_dword v{D0}, v11, s[{sWS}:{sWS+3}], s18 offen offset:1024 sc0 sc1")
    A(f"s_lshl_b32 s19, s{sHead}, 2")
    A("v_mov_b32 v12, s19"); A("v_mov_b32 v13, 1")
    A("s_waitcnt vmcnt(0)")
    A("s_mov_b64 exec, 1")
    A(f"global_atomic_add v14, v12, v13, s[14:15] offset:{128 if stamp else 0} sc0 sc1")
    A("s_waitcnt vmcnt(0)")
    A("v_readfirstlane_b32 s18, v14")
    A("s_mov_b64 exec, -1")
    A("s_cmp_lg_u32 s18, 7")
    A("s_cbranch_scc1 L_end")
    A(f"s_lshl_b32 s18, s{sHead}, 14")
    for p in range(8):
        if p % 2 == 0 and p: A(f"s_add_u32 s18, s18, 4096")
        A(f"buffer_load_dwordx4 v[{R0+p*4}:{R0+p*4+3}], v10, s[{sWS}:{sWS+3}], s18 offen offset:{(p%2)*2048} sc0 sc1")
        A(f"buffer_load_dword v{D0+p}, v11, s[{sWS}:{sWS+3}], s18 offen offset:{(p%2)*2048+1024} sc0 sc1")
    A("s_waitcnt vmcnt(0)")
    n = 8
    while n > 1:
        h = n // 2
        for j in range(h):
            for c in range(4): A(f"v_add_f32 v{R0+j*4+c}, v{R0+j*4+c}, v{R0+(j+h)*4+c}")
            A(f"v_add_f32 v{D0+j}, v{D0+j}, v{D0+j+h}")
        n = h
    round4(R0, R0)
    A(f"v_cvt_pk_bf16_f32 v{D0}, v{D0}, v{D0}"); A(f"v_and_b32 v{D0}, 0xffff0000, v{D0}")
    A(f"v_add_f32 v{D0}, v{D0}, v{vEps}")
    A(f"v_cvt_pk_bf16_f32 v{D0}, v{D0}, v{D0}"); A(f"v_and_b32 v{D0}, 0xffff0000, v{D0}")
    A(f"v_rcp_f32 v{D0+1}, v{D0}")
    A("s_nop 0")
    for c in range(4): A(f"v_mul_f32 v{R0+4+c}, v{R0+c}, v{D0+1}")
    for c in range(4): A(f"v_fma_f32 v{R0+8+c}, -v{D0}, v{R0+4+c}, v{R0+c}")
    for c in range(4): A(f"v_fma_f32 v{R0+4+c}, v{R0+8+c}, v{D0+1}, v{R0+4+c}")
    for c in range(4): A(f"v_div_fixup_f32 v{R0+4+c}, v{R0+4+c}, v{D0}, v{R0+c}")
    A(f"v_cvt_pk_bf16_f32 v{R0}, v{R0+4}, v{R0+5}"); A(f"v_cvt_pk_bf16_f32 v{R0+1}, v{R0+6}, v{R0+7}")
    A("v_lshlrev_b32 v11, 3, v0")
    A(f"s_lshl_b32 s18, s{sHead}, 9")
    A(f"buffer_store_dwordx2 v[{R0}:{R0+1}], v11, s[{sOUT}:{sOUT+3}], s18 offen")
    if stamp:
        A("s_waitcnt vmcnt(0)")
        A("s_memrealtime s[74:75]")
        A("s_waitcnt lgkmcnt(0)")
        A("s_not_b32 s70, s70")
        A("s_mov_b64 exec, 1")
        A("v_mov_b32 v12, 0"); A("v_mov_b32 v13, s70"); A("v_mov_b32 v14, s72"); A("v_mov_b32 v15, s74")
        A("s_not_b32 s72, s72"); A("v_mov_b32 v16, s72")
        A("global_atomic_umax v12, v13, s[14:15] sc1")
        A("global_atomic_umax v12, v14, s[14:15] offset:4 sc1")
        A("global_atomic_umax v12, v15, s[14:15] offset:8 sc1")
        A("global_atomic_umax v12, v16, s[14:15] offset:12 sc1")
        A("s_waitcnt vmcnt(0)")
    Lb("L_end")
    A("s_endpgm")
    o.append('.section .rodata,"a"'); o.append(".p2align 6"); o.append(f".amdhsa_kernel {KN}")
    A(f".amdhsa_next_free_vgpr {acc_off + na}"); A(".amdhsa_next_free_sgpr 80"); A(f".amdhsa_accum_offset {acc_off}")
    A(".amdhsa_group_segment_fixed_size 0"); A(".amdhsa_kernarg_size 56"); A(".amdhsa_user_sgpr_count 2")
    A(".amdhsa_user_sgpr_kernarg_segment_ptr 1"); A(".amdhsa_system_sgpr_workgroup_id_x 1")
    A(".amdhsa_float_denorm_mode_32 3")
    o.append(".end_amdhsa_kernel")
    return "\n".join(o) + "\n"

if __name__ == "__main__":
    out = sys.argv[1]
    kw = {}
    for kv in sys.argv[2:]:
        k, v = kv.split("=")
        kw[k] = int(v) if v.lstrip("-").isdigit() else v
    open(out, "w").write(gen(**kw))
```

```python
import sys, struct, math
KN = "standalone__linear_kernel_rfa__decode_kernel"
def f2u(x): return struct.unpack("<I", struct.pack("<f", x))[0]

HEADER = """; Kernarg layout for this problem (56 bytes, ptrs only, base s[0:1]):
"""

def gen(W=20, g=4, W0=0, WE=0, NE=0, stamp=0, outf="", prio=3, stf="sc1", ldf="sc1", nopoll=0, nocomp=0, slp=0, warm=0, vpre=0):
    NWG = 256
    fix = lambda x: x.replace("none", "").replace("+", " ")
    outf, stf, ldf = fix(outf), fix(stf), fix(ldf)
    if not W0: W0 = W
    o = []
    A = lambda s: o.append("  " + s)
    Lb = lambda s: o.append(s + ":")
    PHI = 65536
    OMG = 131072
    QL = OMG + 8192
    lds = QL + 1024
    o.append(HEADER.rstrip("\n"))
    o.append(f"; @launch grid=({NWG},1,1) block=(320,1,1) lds={lds}")
    o.append('.amdgcn_target "amdgcn-amd-amdhsa--gfx950"')
    o.append(".text"); o.append(f".globl {KN}"); o.append(".p2align 8"); o.append(f".type {KN},@function"); Lb(KN)

    sK, sV, sOM, sQ, sOUT, sWS, sDBG = 20, 24, 28, 32, 36, 40, 44
    sOff, sRing, sCnt = 48, 49, 50
    sMask, sL2E = 54, 62
    sHead, sPart, sC = 64, 65, 66

    A(f"s_load_dwordx8 s[4:11], s[0:1], 0")
    A(f"s_load_dwordx4 s[12:15], s[0:1], 32")
    A(f"s_load_dwordx2 s[16:17], s[0:1], 48")
    if stamp: A("s_memrealtime s[70:71]")
    A("v_lshrrev_b32 v1, 6, v0")
    A(f"s_cmp_ge_u32 s2, {NWG}")
    A("v_readfirstlane_b32 s3, v1")
    A("s_cbranch_scc1 L_end")
    A("v_and_b32 v0, 63, v0")
    A("v_lshrrev_b32 v1, 5, v0")
    A("v_and_b32 v2, 31, v0")
    A("v_lshlrev_b32 v3, 1, v1")
    A("v_xor_b32 v2, v2, v3")
    A("v_lshlrev_b32 v2, 4, v2")
    A("v_lshl_add_u32 v4, v1, 9, v2")
    A("v_xor_b32 v5, 64, v4")
    A("v_xor_b32 v6, 0x80, v4")
    A("v_xor_b32 v7, 0xc0, v4")
    A(f"s_lshl_b32 s{sOff}, s2, 20")
    A("s_cmp_lg_u32 s3, 0")
    A("s_cbranch_scc1 L_cons")

    if prio: A(f"s_setprio {prio}")
    A(f"s_mov_b32 s{sK+2}, {1<<28}"); A(f"s_mov_b32 s{sK+3}, 0x20000")
    A(f"s_mov_b32 s{sV+2}, {1<<28}"); A(f"s_mov_b32 s{sV+3}, 0x20000")
    A(f"s_mov_b32 s51, s{sOff}")
    A(f"s_mov_b32 m0, 0")
    A("s_waitcnt lgkmcnt(0)")
    A(f"s_mov_b32 s{sK}, s6"); A(f"s_and_b32 s{sK+1}, s7, 0xffff")
    assert W % g == 0 and 16 % g == 0 and 16 + g <= W <= 32 and W0 <= 32
    lag = 2
    def ld_round(srd, Wn, bar, ring=None, first=0):
        ustar = (Wn - g) % 16
        for u in range(16):
            k, n = divmod(u, 4)
            m0w = False
            if n == 0 and not (first == 1 and k == 0):
                if ring is None: A(f"s_add_u32 m0, s{sRing}, {k*4096}")
                else: A(f"s_mov_b32 m0, {ring + k*4096}")
                m0w = True
            need = u % g == 0 and not (first and (first - 1) * 16 + u + g <= Wn)
            if need: A(f"s_waitcnt vmcnt({Wn-g})")
            elif m0w: A("s_nop 0")
            A(f"buffer_load_dwordx4 v{4+n}, s[{srd}:{srd+3}], s{sOff} offen offset:{n*1024} nt lds")
            if n == 3: A(f"s_add_u32 s{sOff}, s{sOff}, 4096")
            if bar and u == ustar + g - 1: A("s_barrier")
    ld_round(sK, W0, False, ring=0, first=1)
    ld_round(sK, W0, False, ring=16384, first=2)
    A(f"s_mov_b32 s{sV}, s8"); A(f"s_and_b32 s{sV+1}, s9, 0xffff")
    A(f"s_mov_b32 s{sRing}, 32768")
    A(f"s_mov_b32 s{sCnt}, 2")
    loops = [("k", sK, W, 64), ("v", sV, W, 128 - NE)]
    if NE: loops.append(("e", sV, WE, 128))
    for ph, srd, Wn, end in loops:
        if ph == "v":
            A(f"s_mov_b32 s{sOff}, s51")
        Lb(f"L_ld_{ph}")
        ld_round(srd, Wn, True)
        A(f"s_add_u32 s{sRing}, s{sRing}, 16384"); A(f"s_and_b32 s{sRing}, s{sRing}, 0xffff")
        A(f"s_add_u32 s{sCnt}, s{sCnt}, 1")
        A(f"s_cmp_lt_u32 s{sCnt}, {end}")
        A(f"s_cbranch_scc1 L_ld_{ph}")
        if stamp and ph == "k": A("s_memrealtime s[76:77]")
    for i in range(lag):
        A(f"s_waitcnt vmcnt({16*(lag-1-i)})")
        A("s_barrier")
    if stamp:
        A("s_memrealtime s[72:73]"); A("s_mov_b32 s78, 0"); A("s_mov_b32 s80, 0")
        A("s_branch L_fin")
    else:
        A("s_endpgm")

    vM8, vEps, vOnes = 8, 9, 12
    vKb = 16
    vVb = 20
    vAd = 24
    vPa = 28
    vSn = 29
    vFl = 30
    vDo = 31
    vKP = 32; vG = 36; vX = 40; vT = 42; vY = 44; vPH = 48; vPQ = 52
    vSd = 56
    vL4 = 57
    vZero = 58
    vOM = 64; vK = 96; vB = 128; vA = 144; vACC = 148
    nv = 168
    GRP = 2048
    DEN = 128 * GRP
    WSB = DEN + 32 * 128
    OOB = 0x7ff00000
    o.append(".p2align 6")
    Lb("L_cons")
    if nocomp:
        A("s_mov_b32 s50, 128")
        Lb("L_nc")
        A("s_barrier"); A("s_sub_u32 s50, s50, 1"); A("s_cmp_lg_u32 s50, 0"); A("s_cbranch_scc1 L_nc"); A("s_endpgm")
    A(f"s_sub_u32 s{sC}, s3, 1")
    A(f"s_lshr_b32 s{sHead}, s2, 3")
    A(f"s_sub_u32 s{sPart}, s2, s{sHead}"); A(f"s_and_b32 s{sPart}, s{sPart}, 7")
    A(f"s_mov_b32 s{sOM+2}, 8192"); A(f"s_mov_b32 s{sOM+3}, 0x20000")
    A(f"s_mov_b32 s{sQ+2}, 16384"); A(f"s_mov_b32 s{sQ+3}, 0x20000")
    A(f"s_mov_b32 s{sWS+2}, {WSB}"); A(f"s_mov_b32 s{sWS+3}, 0x20000")
    A(f"s_mov_b32 s{sOUT+2}, 16384"); A(f"s_mov_b32 s{sOUT+3}, 0x20000")
    A(f"s_mov_b32 s{sDBG+2}, 256"); A(f"s_mov_b32 s{sDBG+3}, 0x20000")
    A(f"s_lshl_b32 s19, s{sHead}, 9")
    A(f"s_mov_b32 m0, {OMG}")
    A(f"s_mov_b32 s18, 4096")
    A(f"s_cmp_lg_u32 s{sC}, 0")
    A("s_waitcnt lgkmcnt(0)")
    A(f"s_mov_b32 s{sOM}, s10"); A(f"s_mov_b32 s{sOM+1}, s11")
    A(f"s_mov_b32 s{sQ}, s4"); A(f"s_mov_b32 s{sQ+1}, s5")
    A("s_cbranch_scc1 L_noom")
    for n in range(4):
        A(f"buffer_load_dwordx4 v{4+n}, s[{sOM}:{sOM+3}], 0 offen offset:{n*1024} lds")
    A(f"s_mov_b32 m0, {OMG+4096}"); A("s_nop 0")
    for n in range(4):
        A(f"buffer_load_dwordx4 v{4+n}, s[{sOM}:{sOM+3}], s18 offen offset:{n*1024} lds")
    A(f"s_mov_b32 m0, {QL}"); A("s_nop 0")
    A(f"buffer_load_dwordx4 v4, s[{sQ}:{sQ+3}], s19 offen lds")
    Lb("L_noom")
    A(f"s_mov_b32 s{sWS}, s16"); A(f"s_mov_b32 s{sWS+1}, s17")
    A(f"s_mov_b32 s{sOUT}, s12"); A(f"s_mov_b32 s{sOUT+1}, s13")
    A(f"s_mov_b32 s{sDBG}, s14"); A(f"s_mov_b32 s{sDBG+1}, s15")
    if vpre:
        A(f"s_mov_b32 s{sV}, s8"); A(f"s_mov_b32 s{sV+1}, s9"); A(f"s_mov_b32 s{sV+2}, {1<<28}"); A(f"s_mov_b32 s{sV+3}, 0x20000")
    A("v_lshrrev_b32 v5, 4, v0")
    A("v_and_b32 v1, 15, v0")
    A(f"s_lshl_b32 s18, s{sHead}, 2"); A(f"v_mov_b32 v{vDo}, s18")
    A(f"v_lshlrev_b32 v{vL4}, 2, v0"); A(f"v_mov_b32 v{vZero}, 0")
    A(f"s_add_u32 s67, s18, s{sC}"); A("s_lshl_b32 s67, s67, 11")
    A(f"s_lshl_b32 s68, s{sPart}, 8"); A("s_add_u32 s68, s68, s67")
    A(f"s_lshl_b32 s69, s{sHead}, 7"); A(f"s_add_u32 s69, s69, {DEN}")
    A(f"s_lshl_b32 s63, s{sPart}, 2"); A("s_add_u32 s63, s63, s69")
    A("v_and_b32 v6, 3, v0"); A(f"v_mov_b32 v7, {OOB:#x}")
    A("v_cmp_eq_u32 vcc, 0, v6")
    A(f"v_or_b32 v2, s{sC}, v0")
    A("s_nop 0")
    A(f"v_cndmask_b32 v{vSn}, v7, v{vL4}, vcc")
    A("v_cmp_eq_u32 vcc, 0, v2")
    A("v_and_b32 v6, 7, v1"); A("v_lshlrev_b32 v6, 1, v6")
    A(f"v_cndmask_b32 v{vSd}, v7, v{vZero}, vcc")
    A("v_xor_b32 v6, v6, v5")
    A("v_lshlrev_b32 v6, 4, v6"); A(f"v_lshl_add_u32 v{vKb}, v1, 9, v6")
    for jj in range(1, 4): A(f"v_xor_b32 v{vKb+jj}, {jj*64}, v{vKb}")
    A(f"v_lshlrev_b32 v11, 4, v5")
    A("v_lshrrev_b32 v6, 2, v0")
    A("v_and_b32 v7, 7, v6")
    A(f"s_lshl_b32 s18, s{sC}, 2")
    A("v_xor_b32 v7, s18, v7")
    A("v_lshlrev_b32 v7, 5, v7"); A("v_lshl_add_u32 v7, v6, 9, v7")
    A("v_and_b32 v6, 3, v0"); A(f"v_lshl_add_u32 v{vVb}, v6, 3, v7")
    for t in range(1, 4): A(f"v_xor_b32 v{vVb+t}, {t*32}, v{vVb}")
    for r in range(4):
        m = (1 << r) | (1 << (20 + r)) | (1 << (40 + r)) | (1 << (60 + r))
        A(f"s_mov_b32 s{sMask+2*r}, {m & 0xffffffff:#x}"); A(f"s_mov_b32 s{sMask+2*r+1}, {m >> 32:#x}")
    A(f"s_mov_b32 s{sL2E}, {f2u(math.log2(math.e)/4):#x}")
    for r in range(4): A(f"v_mov_b32 v{vOnes+r}, 0x3f803f80")
    A(f"v_mov_b32 v{vM8}, {f2u(-0.125):#x}"); A(f"v_mov_b32 v{vEps}, {f2u(1e-6):#x}")
    for r in range(20): A(f"v_mov_b32 v{vACC+r}, 0")
    A(f"s_and_b32 s18, s{sC}, 1"); A(f"s_lshr_b32 s52, s{sC}, 1")
    A(f"s_lshl_b32 s{sRing}, s52, 14"); A("s_lshl_b32 s53, s18, 13"); A(f"s_add_u32 s{sRing}, s{sRing}, s53")
    A("s_lshl_b32 s53, s52, 10"); A("s_lshl_b32 s18, s18, 3"); A("s_add_u32 s53, s53, s18"); A(f"s_add_u32 s53, s53, {PHI}")
    A(f"v_lshl_add_u32 v{vPa}, v0, 4, s53")
    for jj in range(4): A(f"v_add_u32 v{vAd+jj}, {OMG}, v{vKb+jj}")
    A(f"s_mov_b32 s{sCnt}, 32")
    A("s_waitcnt vmcnt(0)")
    A("s_barrier")
    for j in range(8):
        A(f"ds_read_b128 v[{vOM+j*4}:{vOM+j*4+3}], v{vAd+(j&3)} offset:{(j>>2)*256}")
    for jj in range(4): A(f"v_add_u32 v{vAd+jj}, s{sRing}, v{vKb+jj}")
    A("s_cmp_eq_u32 s52, 0")
    A("s_cbranch_scc1 L_k_nb")

    def round4(src, dst):
        A(f"v_cvt_pk_bf16_f32 v{vT}, v{src}, v{src+1}")
        A(f"v_cvt_pk_bf16_f32 v{vT+1}, v{src+2}, v{src+3}")
        A(f"v_lshlrev_b32 v{dst}, 16, v{vT}"); A(f"v_and_b32 v{dst+1}, 0xffff0000, v{vT}")
        A(f"v_lshlrev_b32 v{dst+2}, 16, v{vT+1}"); A(f"v_and_b32 v{dst+3}, 0xffff0000, v{vT+1}")
    def phi_tail():
        round4(vY, vY)
        for r in range(4): A(f"v_mul_f32 v{vY+r}, s{sL2E}, v{vY+r}")
        for r in range(4): A(f"v_exp_f32 v{vY+r}, v{vY+r}")
        A("s_nop 0")
        round4(vY, vY)
        for r in range(4): A(f"v_fmamk_f32 v{vY+r}, v{vY+r}, 0x3e800000, v{vEps}")
        A(f"v_cvt_pk_bf16_f32 v{vPH}, v{vY}, v{vY+1}")
        A(f"v_cvt_pk_bf16_f32 v{vPH+1}, v{vY+2}, v{vY+3}")

    Lb("L_k")
    A("s_barrier")
    Lb("L_k_nb")
    for j in range(8):
        A(f"ds_read_b128 v[{vK+j*4}:{vK+j*4+3}], v{vAd+(j&3)} offset:{(j>>2)*256}")
    A(f"s_add_u32 s{sRing}, s{sRing}, 32768"); A(f"s_and_b32 s{sRing}, s{sRing}, 0xffff")
    for jj in range(4): A(f"v_add_u32 v{vAd+jj}, s{sRing}, v{vKb+jj}")
    for j in range(8):
        kr = f"v[{vK+j*4}:{vK+j*4+3}]"
        A(f"s_waitcnt lgkmcnt({7-j})")
        c = "0" if j == 0 else f"v[{vG}:{vG+3}]"
        A(f"v_mfma_f32_16x16x32_bf16 v[{vG}:{vG+3}], {kr}, {kr}, {c}")
        c = "0" if j == 0 else f"v[{vKP}:{vKP+3}]"
        A(f"v_mfma_f32_16x16x32_bf16 v[{vKP}:{vKP+3}], {kr}, v[{vOM+j*4}:{vOM+j*4+3}], {c}")
    A("s_barrier")
    A("s_nop 7")
    A(f"v_cndmask_b32 v{vX}, 0, v{vG}, s[{sMask}:{sMask+1}]")
    for r in range(1, 4):
        A(f"v_cndmask_b32 v{vX}, v{vX}, v{vG+r}, s[{sMask+2*r}:{sMask+2*r+1}]")
    A(f"v_cvt_pk_bf16_f32 v{vX}, v{vX}, v{vX}")
    A(f"v_and_b32 v{vX}, 0xffff0000, v{vX}")
    round4(vKP, vKP)
    A("s_nop 1")
    A(f"v_mfma_f32_16x16x4_f32 v[{vY}:{vY+3}], v{vX}, v{vM8}, v[{vKP}:{vKP+3}]")
    A("s_nop 9")
    phi_tail()
    A(f"ds_write_b64 v{vPa}, v[{vPH}:{vPH+1}]")
    A(f"v_add_u32 v{vPa}, 2048, v{vPa}")
    A(f"s_sub_u32 s{sCnt}, s{sCnt}, 1")
    A(f"s_cmp_eq_u32 s{sCnt}, 28")
    A("s_cbranch_scc1 L_sp0")
    Lb("L_sp0_ret")
    A(f"s_cmp_lg_u32 s{sCnt}, 0")
    A("s_waitcnt lgkmcnt(0)")
    A("s_cbranch_scc1 L_k")

    A(f"v_lshlrev_b32 v{vPa}, 4, v0"); A(f"v_add_u32 v{vPa}, {PHI}, v{vPa}")
    A(f"ds_read_b128 v[{vA}:{vA+3}], v{vPa}")
    A(f"s_mov_b32 s{sRing}, 0")
    A(f"s_mov_b32 s{sCnt}, 64")
    for t in range(4): A(f"v_mov_b32 v{vAd+t}, v{vVb+t}")
    A("s_waitcnt vmcnt(0) lgkmcnt(0)")
    A("s_cmp_lg_u32 s52, 0")
    A("s_cbranch_scc1 L_v_nb")
    Lb("L_v")
    A("s_barrier")
    Lb("L_v_nb")
    for t in range(4):
        A(f"ds_read_b64_tr_b16 v[{vB+t*4}:{vB+t*4+1}], v{vAd+t}")
        A(f"ds_read_b64_tr_b16 v[{vB+t*4+2}:{vB+t*4+3}], v{vAd+t} offset:8192")
    A(f"v_mfma_f32_16x16x32_bf16 v[{vACC+16}:{vACC+19}], v[{vA}:{vA+3}], v[{vOnes}:{vOnes+3}], v[{vACC+16}:{vACC+19}]")
    A(f"s_add_u32 s{sRing}, s{sRing}, 16384"); A(f"s_and_b32 s{sRing}, s{sRing}, 0xffff")
    A(f"v_add_u32 v{vPa}, 1024, v{vPa}")
    A(f"s_sub_u32 s{sCnt}, s{sCnt}, 1")
    for t in range(4):
        A(f"s_waitcnt lgkmcnt({6-2*t})")
        a = vACC + t * 4
        A(f"v_mfma_f32_16x16x32_bf16 v[{a}:{a+3}], v[{vA}:{vA+3}], v[{vB+t*4}:{vB+t*4+3}], v[{a}:{a+3}]")
    A(f"s_cmp_eq_u32 s{sCnt}, 0")
    A("s_cbranch_scc1 L_epi")
    A(f"ds_read_b128 v[{vA}:{vA+3}], v{vPa}")
    for t in range(4): A(f"v_add_u32 v{vAd+t}, s{sRing}, v{vVb+t}")
    A(f"s_cmp_eq_u32 s{sCnt}, 60")
    A("s_cbranch_scc1 L_sp1")
    A(f"s_cmp_eq_u32 s{sCnt}, 16")
    A("s_cbranch_scc1 L_sp2")
    A(f"s_cmp_eq_u32 s{sCnt}, 8")
    A("s_cbranch_scc1 L_sp3")
    Lb("L_sp_ret")
    A("s_waitcnt lgkmcnt(0)")
    A("s_branch L_v")

    Lb("L_epi")
    if stamp: A("s_memrealtime s[72:73]")
    S = vK
    for t in (4, 0, 2, 1, 3):
        a = vACC + t * 4
        A(f"v_mul_f32 v{S+t}, v{vPQ}, v{a}")
        for r in range(1, 4): A(f"v_fmac_f32 v{S+t}, v{vPQ+r}, v{a+r}")
        if t == 4: A(f"v_mov_b32 v{S+5}, v{S+4}")
    A(f"v_permlane32_swap_b32 v{S+4}, v{S+5}")
    A(f"v_permlane32_swap_b32 v{S}, v{S+2}")
    A(f"v_permlane32_swap_b32 v{S+1}, v{S+3}")
    A(f"v_add_f32 v{S+4}, v{S+4}, v{S+5}")
    A(f"v_add_f32 v{S}, v{S}, v{S+2}")
    A(f"v_add_f32 v{S+1}, v{S+1}, v{S+3}")
    A(f"v_mov_b32 v{S+5}, v{S+4}")
    A("s_nop 0")
    A(f"v_permlane16_swap_b32 v{S}, v{S+1}")
    A(f"v_permlane16_swap_b32 v{S+4}, v{S+5}")
    A(f"s_cmp_eq_u32 s{sPart}, 0")
    A(f"v_add_f32 v{S+8}, v{S}, v{S+1}")
    A(f"v_add_f32 v{S+7}, v{S+4}, v{S+5}")
    A("s_cbranch_scc1 L_final")
    for i in range(1, 4):
        A(f"v_mov_b32_dpp v{S+8+i}, v{S+8} quad_perm:[{i},{i},{i},{i}] row_mask:0xf bank_mask:0xf")
    A(f"buffer_store_dword v{S+7}, v{vSd}, s[{sWS}:{sWS+3}], s63 offen {stf}")
    A(f"buffer_store_dwordx4 v[{S+8}:{S+11}], v{vSn}, s[{sWS}:{sWS+3}], s68 offen {stf}")
    if stamp:
        A("s_mov_b32 s76, 0"); A("s_mov_b32 s78, 0"); A("s_mov_b32 s80, 0")
        A("s_branch L_fin")
    else:
        A("s_endpgm")
    Lb("L_final")
    if stamp: A("s_memrealtime s[78:79]"); A("s_mov_b32 s76, 0")
    P = vOM; D = vOM + 8
    A(f"s_mov_b32 s53, {1<<20}")
    Lb("L_poll")
    for p in range(1, 8):
        A(f"buffer_load_dword v{P+p}, v{vL4}, s[{sWS}:{sWS+3}], s67 offen offset:{p*256} {ldf}")
    A(f"buffer_load_dwordx4 v[{D}:{D+3}], v{vZero}, s[{sWS}:{sWS+3}], s69 offen {ldf}")
    A(f"buffer_load_dwordx4 v[{D+4}:{D+7}], v{vZero}, s[{sWS}:{sWS+3}], s69 offen offset:16 {ldf}")
    A("s_sub_u32 s53, s53, 1")
    A("s_cbranch_scc1 L_end")
    if stamp: A("s_add_u32 s76, s76, 1")
    A("s_waitcnt vmcnt(0)")
    A(f"v_max3_u32 v{P}, v{P+1}, v{P+2}, v{P+3}")
    A(f"v_max3_u32 v{D}, v{D+1}, v{D+2}, v{D+3}")
    A(f"v_max3_u32 v{P}, v{P}, v{P+4}, v{P+5}")
    A(f"v_max3_u32 v{D}, v{D}, v{D+4}, v{D+5}")
    A(f"v_max3_u32 v{P}, v{P}, v{P+6}, v{P+7}")
    A(f"v_max3_u32 v{D}, v{D}, v{D+6}, v{D+7}")
    A(f"v_max_u32 v{P}, v{P}, v{D}")
    A(f"v_cmp_eq_u32 vcc, -1, v{P}")
    A(f"v_add_f32 v{S}, v{S+8}, v{P+1}"); A(f"v_add_f32 v{S+1}, v{S+7}, v{D+1}")
    A(f"v_add_f32 v{P+2}, v{P+2}, v{P+3}"); A(f"v_add_f32 v{D+2}, v{D+2}, v{D+3}")
    A(f"v_add_f32 v{P+4}, v{P+4}, v{P+5}"); A(f"v_add_f32 v{D+4}, v{D+4}, v{D+5}")
    if not nopoll:
        if slp:
            A("s_cbranch_vccz L_got")
            A(f"s_sleep {slp}")
            A("s_branch L_poll")
            Lb("L_got")
        else:
            A("s_cbranch_vccnz L_poll")
    if stamp: A("s_memrealtime s[80:81]")
    A(f"v_add_f32 v{P+6}, v{P+6}, v{P+7}"); A(f"v_add_f32 v{D+6}, v{D+6}, v{D+7}")
    A(f"v_add_f32 v{S}, v{S}, v{P+2}"); A(f"v_add_f32 v{S+1}, v{S+1}, v{D+2}")
    A(f"v_add_f32 v{P+4}, v{P+4}, v{P+6}"); A(f"v_add_f32 v{D+4}, v{D+4}, v{D+6}")
    A(f"v_add_f32 v{S}, v{S}, v{P+4}"); A(f"v_add_f32 v{S+1}, v{S+1}, v{D+4}")
    A(f"v_cvt_pk_bf16_f32 v{S+2}, v{S}, v{S+1}")
    A(f"v_and_b32 v{S+1}, 0xffff0000, v{S+2}")
    A(f"v_lshlrev_b32 v{S}, 16, v{S+2}")
    A(f"v_add_f32 v{S+1}, v{S+1}, v{vEps}")
    A(f"v_cvt_pk_bf16_f32 v{S+1}, v{S+1}, v{S+1}"); A(f"v_and_b32 v{S+1}, 0xffff0000, v{S+1}")
    A(f"v_rcp_f32 v{S+2}, v{S+1}")
    A(f"s_lshl_b32 s18, s{sC}, 7"); A(f"s_add_u32 s18, s18, s19")
    A(f"v_mul_f32 v{S+3}, v{S}, v{S+2}")
    A(f"v_fma_f32 v{S+4}, -v{S+1}, v{S+3}, v{S}")
    A(f"v_fma_f32 v{S+3}, v{S+4}, v{S+2}, v{S+3}")
    A(f"v_div_fixup_f32 v{S+3}, v{S+3}, v{S+1}, v{S}")
    A(f"v_cvt_pk_bf16_f32 v{S+3}, v{S+3}, v{S+3}")
    A("v_lshlrev_b32 v1, 1, v0")
    A(f"buffer_store_short v{S+3}, v1, s[{sOUT}:{sOUT+3}], s18 offen {outf}")
    if stamp:
        A("s_branch L_fin")
    else:
        A("s_endpgm")

    Lb("L_sp0")
    if vpre:
        A(f"buffer_load_dword v3, v{vZero}, s[{sV}:{sV+3}], s{sOff} offen nt")
    A(f"s_cmp_lg_u32 s{sPart}, 0")
    A("s_cbranch_scc1 L_sp0_ret")
    for r in range(4): A(f"v_mov_b32 v{vB+r}, -1")
    A("v_lshlrev_b32 v2, 4, v0")
    A(f"buffer_store_dwordx4 v[{vB}:{vB+3}], v2, s[{sWS}:{sWS+3}], s67 offen {stf}")
    A(f"buffer_store_dwordx4 v[{vB}:{vB+3}], v2, s[{sWS}:{sWS+3}], s67 offen offset:1024 {stf}")
    A(f"buffer_store_dwordx4 v[{vB}:{vB+3}], v{vSd}, s[{sWS}:{sWS+3}], s69 offen {stf}")
    A(f"buffer_store_dwordx4 v[{vB}:{vB+3}], v{vSd}, s[{sWS}:{sWS+3}], s69 offen offset:16 {stf}")
    A("s_branch L_sp0_ret")

    Lb("L_sp1")
    A(f"v_add_u32 v2, {QL}, v11")
    for j in range(8):
        A(f"ds_read_b128 v[{vK+j*4}:{vK+j*4+3}], v2 offset:{j*64}")
    A("v_mov_b32 v5, 1")
    A("s_waitcnt lgkmcnt(0)")
    for j in range(8):
        qr = f"v[{vK+j*4}:{vK+j*4+3}]"
        c = "0" if j == 0 else f"v[{vKP}:{vKP+3}]"
        A(f"v_mfma_f32_16x16x32_bf16 v[{vKP}:{vKP+3}], v[{vOM+j*4}:{vOM+j*4+3}], {qr}, {c}")
        c = "0" if j == 0 else f"v[{vG}:{vG+3}]"
        A(f"v_mfma_f32_16x16x32_bf16 v[{vG}:{vG+3}], {qr}, {qr}, {c}")
    A("s_nop 7")
    round4(vKP, vKP)
    A(f"v_cvt_pk_bf16_f32 v{vX}, v{vG}, v{vG}")
    A(f"v_and_b32 v{vX}, 0xffff0000, v{vX}")
    for r in range(4): A(f"v_fma_f32 v{vY+r}, v{vX}, v{vM8}, v{vKP+r}")
    phi_tail()
    A(f"v_lshlrev_b32 v{vPQ}, 16, v{vPH}"); A(f"v_and_b32 v{vPQ+1}, 0xffff0000, v{vPH}")
    A(f"v_lshlrev_b32 v{vPQ+2}, 16, v{vPH+1}"); A(f"v_and_b32 v{vPQ+3}, 0xffff0000, v{vPH+1}")
    A(f"s_cmp_lg_u32 s{sPart}, 0")
    A("s_cbranch_scc1 L_sp_ret")
    A(f"s_lshl_b32 s18, s{sHead}, 2")
    A(f"buffer_store_dword v5, v{vSd}, s[{sDBG}:{sDBG+3}], s18 offen {stf}")
    A("s_branch L_sp_ret")

    Lb("L_sp2")
    if warm:
        A(f"buffer_load_dword v6, v{vZero}, s[{sWS}:{sWS+3}], s67 offen")
        A(f"buffer_load_dword v7, v{vZero}, s[{sOUT}:{sOUT+3}], s19 offen")
    A(f"buffer_load_dword v{vFl}, v{vDo}, s[{sDBG}:{sDBG+3}], 0 offen")
    A("s_branch L_sp_ret")
    Lb("L_sp3")
    A(f"s_mov_b32 s53, {1<<20}")
    Lb("L_sp3p")
    A("s_waitcnt vmcnt(0)")
    A(f"v_readfirstlane_b32 s18, v{vFl}")
    A("s_nop 3")
    A("s_cmp_lg_u32 s18, 0")
    A("s_cbranch_scc1 L_sp_ret")
    A(f"buffer_load_dword v{vFl}, v{vDo}, s[{sDBG}:{sDBG+3}], 0 offen sc0 sc1")
    A("s_sub_u32 s53, s53, 1")
    A("s_cmp_lg_u32 s53, 0")
    A("s_cbranch_scc1 L_sp3p")
    A("s_branch L_sp_ret")

    if stamp:
        Lb("L_fin")
        A("s_waitcnt vmcnt(0)")
        A("s_memrealtime s[74:75]")
        A("s_getreg_b32 s82, hwreg(HW_REG_XCC_ID)")
        A("s_getreg_b32 s83, hwreg(HW_REG_HW_ID)")
        A("s_waitcnt lgkmcnt(0)")
        A(f"s_mul_i32 s19, s2, 5"); A("s_add_u32 s19, s19, s3"); A("s_lshl_b32 s19, s19, 5"); A("s_add_u32 s19, s19, 0x100000")
        A("v_mov_b32 v2, s19")
        A("v_mov_b32 v4, s70"); A("v_mov_b32 v5, s76"); A("v_mov_b32 v6, s72"); A("v_mov_b32 v7, s82")
        A("v_mov_b32 v8, s83"); A("v_mov_b32 v9, s78"); A("v_mov_b32 v10, s80"); A("v_mov_b32 v11, s74")
        A("s_mov_b64 exec, 1")
        A("global_store_dwordx4 v2, v[4:7], s[16:17]")
        A("global_store_dwordx4 v2, v[8:11], s[16:17] offset:16")
        A("s_waitcnt vmcnt(0)")
    Lb("L_end")
    A("s_endpgm")
    o.append('.section .rodata,"a"'); o.append(".p2align 6"); o.append(f".amdhsa_kernel {KN}")
    A(f".amdhsa_next_free_vgpr {nv}"); A(".amdhsa_next_free_sgpr 96"); A(f".amdhsa_accum_offset {nv}")
    A(".amdhsa_group_segment_fixed_size 0"); A(".amdhsa_kernarg_size 56"); A(".amdhsa_user_sgpr_count 2")
    A(".amdhsa_user_sgpr_kernarg_segment_ptr 1"); A(".amdhsa_system_sgpr_workgroup_id_x 1")
    A(".amdhsa_float_denorm_mode_32 3")
    o.append(".end_amdhsa_kernel")
    return "\n".join(o) + "\n"

if __name__ == "__main__":
    out = sys.argv[1]
    kw = {}
    for kv in sys.argv[2:]:
        k, v = kv.split("=")
        kw[k] = int(v) if v.lstrip("-").isdigit() else v
    open(out, "w").write(gen(**kw))
```

```python
import sys, struct, math
KN = "standalone__linear_kernel_rfa__decode_kernel"
def f2u(x): return struct.unpack("<I", struct.pack("<f", x))[0]

HEADER = """; Kernarg layout for this problem (56 bytes, ptrs only, base s[0:1]):
"""

def gen(W=20, g=4, W0=0, WE=0, NE=0, stamp=0, outf="", prio=3, stf="sc1", ldf="sc1", nopoll=0, nocomp=0, slp=0, warm=0, vpre=0, spin=0):
    NWG = 256
    fix = lambda x: x.replace("none", "").replace("+", " ")
    outf, stf, ldf = fix(outf), fix(stf), fix(ldf)
    if not W0: W0 = W
    o = []
    A = lambda s: o.append("  " + s)
    Lb = lambda s: o.append(s + ":")
    PHI = 65536
    OMG = 131072
    QL = OMG + 8192
    lds = QL + 1024
    o.append(HEADER.rstrip("\n"))
    o.append(f"; @launch grid=({NWG},1,1) block=(320,1,1) lds={lds}")
    o.append('.amdgcn_target "amdgcn-amd-amdhsa--gfx950"')
    o.append(".text"); o.append(f".globl {KN}"); o.append(".p2align 8"); o.append(f".type {KN},@function"); Lb(KN)

    sK, sV, sOM, sQ, sOUT, sWS, sDBG = 20, 24, 28, 32, 36, 40, 44
    sOff, sRing, sCnt = 48, 49, 50
    sMask, sL2E = 54, 62
    sHead, sPart, sC = 64, 65, 66

    A(f"s_load_dwordx8 s[4:11], s[0:1], 0")
    A(f"s_load_dwordx4 s[12:15], s[0:1], 32")
    A(f"s_load_dwordx2 s[16:17], s[0:1], 48")
    if stamp or spin: A("s_memrealtime s[70:71]")
    A("v_lshrrev_b32 v1, 6, v0")
    A(f"s_cmp_ge_u32 s2, {NWG}")
    A("v_readfirstlane_b32 s3, v1")
    A("s_cbranch_scc1 L_end")
    A("v_and_b32 v0, 63, v0")
    A("v_lshrrev_b32 v1, 5, v0")
    A("v_and_b32 v2, 31, v0")
    A("v_lshlrev_b32 v3, 1, v1")
    A("v_xor_b32 v2, v2, v3")
    A("v_lshlrev_b32 v2, 4, v2")
    A("v_lshl_add_u32 v4, v1, 9, v2")
    A("v_xor_b32 v5, 64, v4")
    A("v_xor_b32 v6, 0x80, v4")
    A("v_xor_b32 v7, 0xc0, v4")
    A(f"s_lshl_b32 s{sOff}, s2, 20")
    A("s_cmp_lg_u32 s3, 0")
    A("s_cbranch_scc1 L_cons")

    if prio: A(f"s_setprio {prio}")
    A(f"s_mov_b32 s{sK+2}, {1<<28}"); A(f"s_mov_b32 s{sK+3}, 0x20000")
    A(f"s_mov_b32 s{sV+2}, {1<<28}"); A(f"s_mov_b32 s{sV+3}, 0x20000")
    A(f"s_mov_b32 s51, s{sOff}")
    A(f"s_mov_b32 m0, 0")
    A("s_waitcnt lgkmcnt(0)")
    A(f"s_mov_b32 s{sK}, s6"); A(f"s_and_b32 s{sK+1}, s7, 0xffff")
    assert W % g == 0 and 16 % g == 0 and 16 + g <= W <= 32 and W0 <= 32
    lag = 2
    def ld_round(srd, Wn, bar, ring=None, first=0):
        ustar = (Wn - g) % 16
        for u in range(16):
            k, n = divmod(u, 4)
            m0w = False
            if n == 0 and not (first == 1 and k == 0):
                if ring is None: A(f"s_add_u32 m0, s{sRing}, {k*4096}")
                else: A(f"s_mov_b32 m0, {ring + k*4096}")
                m0w = True
            need = u % g == 0 and not (first and (first - 1) * 16 + u + g <= Wn)
            if need: A(f"s_waitcnt vmcnt({Wn-g})")
            elif m0w: A("s_nop 0")
            A(f"buffer_load_dwordx4 v{4+n}, s[{srd}:{srd+3}], s{sOff} offen offset:{n*1024} nt lds")
            if n == 3: A(f"s_add_u32 s{sOff}, s{sOff}, 4096")
            if bar and u == ustar + g - 1: A("s_barrier")
    ld_round(sK, W0, False, ring=0, first=1)
    ld_round(sK, W0, False, ring=16384, first=2)
    A(f"s_mov_b32 s{sV}, s8"); A(f"s_and_b32 s{sV+1}, s9, 0xffff")
    A(f"s_mov_b32 s{sRing}, 32768")
    A(f"s_mov_b32 s{sCnt}, 2")
    loops = [("k", sK, W, 64), ("v", sV, W, 128 - NE)]
    if NE: loops.append(("e", sV, WE, 128))
    for ph, srd, Wn, end in loops:
        if ph == "v":
            A(f"s_mov_b32 s{sOff}, s51")
        Lb(f"L_ld_{ph}")
        ld_round(srd, Wn, True)
        A(f"s_add_u32 s{sRing}, s{sRing}, 16384"); A(f"s_and_b32 s{sRing}, s{sRing}, 0xffff")
        A(f"s_add_u32 s{sCnt}, s{sCnt}, 1")
        A(f"s_cmp_lt_u32 s{sCnt}, {end}")
        A(f"s_cbranch_scc1 L_ld_{ph}")
        if stamp and ph == "k": A("s_memrealtime s[76:77]")
    for i in range(lag):
        A(f"s_waitcnt vmcnt({16*(lag-1-i)})")
        A("s_barrier")
    if stamp:
        A("s_memrealtime s[72:73]"); A("s_mov_b32 s78, 0"); A("s_mov_b32 s80, 0")
        A("s_branch L_fin")
    else:
        if spin:
            Lb("L_spin")
            A("s_memrealtime s[72:73]"); A("s_waitcnt lgkmcnt(0)")
            A("s_sub_u32 s72, s72, s70"); A(f"s_cmp_lt_u32 s72, {spin}"); A("s_cbranch_scc1 L_spin")
        A("s_endpgm")

    vM8, vEps, vOnes = 8, 9, 12
    vKb = 16
    vVb = 20
    vAd = 24
    vPa = 28
    vSn = 29
    vFl = 30
    vDo = 31
    vKP = 32; vG = 36; vX = 40; vT = 42; vY = 44; vPH = 48; vPQ = 52
    vSd = 56
    vL4 = 57
    vZero = 58
    vOM = 64; vK = 96; vB = 128; vA = 144; vACC = 148
    nv = 168
    GRP = 2048
    DEN = 128 * GRP
    WSB = DEN + 32 * 128
    OOB = 0x7ff00000
    o.append(".p2align 6")
    Lb("L_cons")
    if nocomp:
        A("s_mov_b32 s50, 128")
        Lb("L_nc")
        A("s_barrier"); A("s_sub_u32 s50, s50, 1"); A("s_cmp_lg_u32 s50, 0"); A("s_cbranch_scc1 L_nc"); A("s_endpgm")
    A(f"s_sub_u32 s{sC}, s3, 1")
    A(f"s_lshr_b32 s{sHead}, s2, 3")
    A(f"s_sub_u32 s{sPart}, s2, s{sHead}"); A(f"s_and_b32 s{sPart}, s{sPart}, 7")
    A(f"s_mov_b32 s{sOM+2}, 8192"); A(f"s_mov_b32 s{sOM+3}, 0x20000")
    A(f"s_mov_b32 s{sQ+2}, 16384"); A(f"s_mov_b32 s{sQ+3}, 0x20000")
    A(f"s_mov_b32 s{sWS+2}, {WSB}"); A(f"s_mov_b32 s{sWS+3}, 0x20000")
    A(f"s_mov_b32 s{sOUT+2}, 16384"); A(f"s_mov_b32 s{sOUT+3}, 0x20000")
    A(f"s_mov_b32 s{sDBG+2}, 256"); A(f"s_mov_b32 s{sDBG+3}, 0x20000")
    A(f"s_lshl_b32 s19, s{sHead}, 9")
    A(f"s_mov_b32 m0, {OMG}")
    A(f"s_mov_b32 s18, 4096")
    A(f"s_cmp_lg_u32 s{sC}, 0")
    A("s_waitcnt lgkmcnt(0)")
    A(f"s_mov_b32 s{sOM}, s10"); A(f"s_mov_b32 s{sOM+1}, s11")
    A(f"s_mov_b32 s{sQ}, s4"); A(f"s_mov_b32 s{sQ+1}, s5")
    A("s_cbranch_scc1 L_noom")
    for n in range(4):
        A(f"buffer_load_dwordx4 v{4+n}, s[{sOM}:{sOM+3}], 0 offen offset:{n*1024} lds")
    A(f"s_mov_b32 m0, {OMG+4096}"); A("s_nop 0")
    for n in range(4):
        A(f"buffer_load_dwordx4 v{4+n}, s[{sOM}:{sOM+3}], s18 offen offset:{n*1024} lds")
    A(f"s_mov_b32 m0, {QL}"); A("s_nop 0")
    A(f"buffer_load_dwordx4 v4, s[{sQ}:{sQ+3}], s19 offen lds")
    Lb("L_noom")
    A(f"s_mov_b32 s{sWS}, s16"); A(f"s_mov_b32 s{sWS+1}, s17")
    A(f"s_mov_b32 s{sOUT}, s12"); A(f"s_mov_b32 s{sOUT+1}, s13")
    A(f"s_mov_b32 s{sDBG}, s14"); A(f"s_mov_b32 s{sDBG+1}, s15")
    if vpre:
        A(f"s_mov_b32 s{sV}, s8"); A(f"s_mov_b32 s{sV+1}, s9"); A(f"s_mov_b32 s{sV+2}, {1<<28}"); A(f"s_mov_b32 s{sV+3}, 0x20000")
    A("v_lshrrev_b32 v5, 4, v0")
    A("v_and_b32 v1, 15, v0")
    A(f"s_lshl_b32 s18, s{sHead}, 2"); A(f"v_mov_b32 v{vDo}, s18")
    A(f"v_lshlrev_b32 v{vL4}, 2, v0"); A(f"v_mov_b32 v{vZero}, 0")
    A(f"s_add_u32 s67, s18, s{sC}"); A("s_lshl_b32 s67, s67, 11")
    A(f"s_lshl_b32 s68, s{sPart}, 8"); A("s_add_u32 s68, s68, s67")
    A(f"s_lshl_b32 s69, s{sHead}, 7"); A(f"s_add_u32 s69, s69, {DEN}")
    A(f"s_lshl_b32 s63, s{sPart}, 2"); A("s_add_u32 s63, s63, s69")
    A("v_and_b32 v6, 3, v0"); A(f"v_mov_b32 v7, {OOB:#x}")
    A("v_cmp_eq_u32 vcc, 0, v6")
    A(f"v_or_b32 v2, s{sC}, v0")
    A("s_nop 0")
    A(f"v_cndmask_b32 v{vSn}, v7, v{vL4}, vcc")
    A("v_cmp_eq_u32 vcc, 0, v2")
    A("v_and_b32 v6, 7, v1"); A("v_lshlrev_b32 v6, 1, v6")
    A(f"v_cndmask_b32 v{vSd}, v7, v{vZero}, vcc")
    A("v_xor_b32 v6, v6, v5")
    A("v_lshlrev_b32 v6, 4, v6"); A(f"v_lshl_add_u32 v{vKb}, v1, 9, v6")
    for jj in range(1, 4): A(f"v_xor_b32 v{vKb+jj}, {jj*64}, v{vKb}")
    A(f"v_lshlrev_b32 v11, 4, v5")
    A("v_lshrrev_b32 v6, 2, v0")
    A("v_and_b32 v7, 7, v6")
    A(f"s_lshl_b32 s18, s{sC}, 2")
    A("v_xor_b32 v7, s18, v7")
    A("v_lshlrev_b32 v7, 5, v7"); A("v_lshl_add_u32 v7, v6, 9, v7")
    A("v_and_b32 v6, 3, v0"); A(f"v_lshl_add_u32 v{vVb}, v6, 3, v7")
    for t in range(1, 4): A(f"v_xor_b32 v{vVb+t}, {t*32}, v{vVb}")
    for r in range(4):
        m = (1 << r) | (1 << (20 + r)) | (1 << (40 + r)) | (1 << (60 + r))
        A(f"s_mov_b32 s{sMask+2*r}, {m & 0xffffffff:#x}"); A(f"s_mov_b32 s{sMask+2*r+1}, {m >> 32:#x}")
    A(f"s_mov_b32 s{sL2E}, {f2u(math.log2(math.e)/4):#x}")
    for r in range(4): A(f"v_mov_b32 v{vOnes+r}, 0x3f803f80")
    A(f"v_mov_b32 v{vM8}, {f2u(-0.125):#x}"); A(f"v_mov_b32 v{vEps}, {f2u(1e-6):#x}")
    for r in range(20): A(f"v_mov_b32 v{vACC+r}, 0")
    A(f"s_and_b32 s18, s{sC}, 1"); A(f"s_lshr_b32 s52, s{sC}, 1")
    A(f"s_lshl_b32 s{sRing}, s52, 14"); A("s_lshl_b32 s53, s18, 13"); A(f"s_add_u32 s{sRing}, s{sRing}, s53")
    A("s_lshl_b32 s53, s52, 10"); A("s_lshl_b32 s18, s18, 3"); A("s_add_u32 s53, s53, s18"); A(f"s_add_u32 s53, s53, {PHI}")
    A(f"v_lshl_add_u32 v{vPa}, v0, 4, s53")
    for jj in range(4): A(f"v_add_u32 v{vAd+jj}, {OMG}, v{vKb+jj}")
    A(f"s_mov_b32 s{sCnt}, 32")
    A("s_waitcnt vmcnt(0)")
    A("s_barrier")
    for j in range(8):
        A(f"ds_read_b128 v[{vOM+j*4}:{vOM+j*4+3}], v{vAd+(j&3)} offset:{(j>>2)*256}")
    for jj in range(4): A(f"v_add_u32 v{vAd+jj}, s{sRing}, v{vKb+jj}")
    A("s_cmp_eq_u32 s52, 0")
    A("s_cbranch_scc1 L_k_nb")

    def round4(src, dst):
        A(f"v_cvt_pk_bf16_f32 v{vT}, v{src}, v{src+1}")
        A(f"v_cvt_pk_bf16_f32 v{vT+1}, v{src+2}, v{src+3}")
        A(f"v_lshlrev_b32 v{dst}, 16, v{vT}"); A(f"v_and_b32 v{dst+1}, 0xffff0000, v{vT}")
        A(f"v_lshlrev_b32 v{dst+2}, 16, v{vT+1}"); A(f"v_and_b32 v{dst+3}, 0xffff0000, v{vT+1}")
    def phi_tail():
        round4(vY, vY)
        for r in range(4): A(f"v_mul_f32 v{vY+r}, s{sL2E}, v{vY+r}")
        for r in range(4): A(f"v_exp_f32 v{vY+r}, v{vY+r}")
        A("s_nop 0")
        round4(vY, vY)
        for r in range(4): A(f"v_fmamk_f32 v{vY+r}, v{vY+r}, 0x3e800000, v{vEps}")
        A(f"v_cvt_pk_bf16_f32 v{vPH}, v{vY}, v{vY+1}")
        A(f"v_cvt_pk_bf16_f32 v{vPH+1}, v{vY+2}, v{vY+3}")

    Lb("L_k")
    A("s_barrier")
    Lb("L_k_nb")
    for j in range(8):
        A(f"ds_read_b128 v[{vK+j*4}:{vK+j*4+3}], v{vAd+(j&3)} offset:{(j>>2)*256}")
    A(f"s_add_u32 s{sRing}, s{sRing}, 32768"); A(f"s_and_b32 s{sRing}, s{sRing}, 0xffff")
    for jj in range(4): A(f"v_add_u32 v{vAd+jj}, s{sRing}, v{vKb+jj}")
    for j in range(8):
        kr = f"v[{vK+j*4}:{vK+j*4+3}]"
        A(f"s_waitcnt lgkmcnt({7-j})")
        c = "0" if j == 0 else f"v[{vG}:{vG+3}]"
        A(f"v_mfma_f32_16x16x32_bf16 v[{vG}:{vG+3}], {kr}, {kr}, {c}")
        c = "0" if j == 0 else f"v[{vKP}:{vKP+3}]"
        A(f"v_mfma_f32_16x16x32_bf16 v[{vKP}:{vKP+3}], {kr}, v[{vOM+j*4}:{vOM+j*4+3}], {c}")
    A("s_barrier")
    A("s_nop 7")
    A(f"v_cndmask_b32 v{vX}, 0, v{vG}, s[{sMask}:{sMask+1}]")
    for r in range(1, 4):
        A(f"v_cndmask_b32 v{vX}, v{vX}, v{vG+r}, s[{sMask+2*r}:{sMask+2*r+1}]")
    A(f"v_cvt_pk_bf16_f32 v{vX}, v{vX}, v{vX}")
    A(f"v_and_b32 v{vX}, 0xffff0000, v{vX}")
    round4(vKP, vKP)
    A("s_nop 1")
    A(f"v_mfma_f32_16x16x4_f32 v[{vY}:{vY+3}], v{vX}, v{vM8}, v[{vKP}:{vKP+3}]")
    A("s_nop 9")
    phi_tail()
    A(f"ds_write_b64 v{vPa}, v[{vPH}:{vPH+1}]")
    A(f"v_add_u32 v{vPa}, 2048, v{vPa}")
    A(f"s_sub_u32 s{sCnt}, s{sCnt}, 1")
    A(f"s_cmp_eq_u32 s{sCnt}, 28")
    A("s_cbranch_scc1 L_sp0")
    Lb("L_sp0_ret")
    A(f"s_cmp_lg_u32 s{sCnt}, 0")
    A("s_waitcnt lgkmcnt(0)")
    A("s_cbranch_scc1 L_k")

    A(f"v_lshlrev_b32 v{vPa}, 4, v0"); A(f"v_add_u32 v{vPa}, {PHI}, v{vPa}")
    A(f"ds_read_b128 v[{vA}:{vA+3}], v{vPa}")
    A(f"s_mov_b32 s{sRing}, 0")
    A(f"s_mov_b32 s{sCnt}, 64")
    for t in range(4): A(f"v_mov_b32 v{vAd+t}, v{vVb+t}")
    A("s_waitcnt vmcnt(0) lgkmcnt(0)")
    A("s_cmp_lg_u32 s52, 0")
    A("s_cbranch_scc1 L_v_nb")
    Lb("L_v")
    A("s_barrier")
    Lb("L_v_nb")
    for t in range(4):
        A(f"ds_read_b64_tr_b16 v[{vB+t*4}:{vB+t*4+1}], v{vAd+t}")
        A(f"ds_read_b64_tr_b16 v[{vB+t*4+2}:{vB+t*4+3}], v{vAd+t} offset:8192")
    A(f"v_mfma_f32_16x16x32_bf16 v[{vACC+16}:{vACC+19}], v[{vA}:{vA+3}], v[{vOnes}:{vOnes+3}], v[{vACC+16}:{vACC+19}]")
    A(f"s_add_u32 s{sRing}, s{sRing}, 16384"); A(f"s_and_b32 s{sRing}, s{sRing}, 0xffff")
    A(f"v_add_u32 v{vPa}, 1024, v{vPa}")
    A(f"s_sub_u32 s{sCnt}, s{sCnt}, 1")
    for t in range(4):
        A(f"s_waitcnt lgkmcnt({6-2*t})")
        a = vACC + t * 4
        A(f"v_mfma_f32_16x16x32_bf16 v[{a}:{a+3}], v[{vA}:{vA+3}], v[{vB+t*4}:{vB+t*4+3}], v[{a}:{a+3}]")
    A(f"s_cmp_eq_u32 s{sCnt}, 0")
    A("s_cbranch_scc1 L_epi")
    A(f"ds_read_b128 v[{vA}:{vA+3}], v{vPa}")
    for t in range(4): A(f"v_add_u32 v{vAd+t}, s{sRing}, v{vVb+t}")
    A(f"s_cmp_eq_u32 s{sCnt}, 60")
    A("s_cbranch_scc1 L_sp1")
    A(f"s_cmp_eq_u32 s{sCnt}, 16")
    A("s_cbranch_scc1 L_sp2")
    A(f"s_cmp_eq_u32 s{sCnt}, 8")
    A("s_cbranch_scc1 L_sp3")
    Lb("L_sp_ret")
    A("s_waitcnt lgkmcnt(0)")
    A("s_branch L_v")

    Lb("L_epi")
    if stamp: A("s_memrealtime s[72:73]")
    S = vK
    for t in (4, 0, 2, 1, 3):
        a = vACC + t * 4
        A(f"v_mul_f32 v{S+t}, v{vPQ}, v{a}")
        for r in range(1, 4): A(f"v_fmac_f32 v{S+t}, v{vPQ+r}, v{a+r}")
        if t == 4: A(f"v_mov_b32 v{S+5}, v{S+4}")
    A(f"v_permlane32_swap_b32 v{S+4}, v{S+5}")
    A(f"v_permlane32_swap_b32 v{S}, v{S+2}")
    A(f"v_permlane32_swap_b32 v{S+1}, v{S+3}")
    A(f"v_add_f32 v{S+4}, v{S+4}, v{S+5}")
    A(f"v_add_f32 v{S}, v{S}, v{S+2}")
    A(f"v_add_f32 v{S+1}, v{S+1}, v{S+3}")
    A(f"v_mov_b32 v{S+5}, v{S+4}")
    A("s_nop 0")
    A(f"v_permlane16_swap_b32 v{S}, v{S+1}")
    A(f"v_permlane16_swap_b32 v{S+4}, v{S+5}")
    A(f"s_cmp_eq_u32 s{sPart}, 0")
    A(f"v_add_f32 v{S+8}, v{S}, v{S+1}")
    A(f"v_add_f32 v{S+7}, v{S+4}, v{S+5}")
    A("s_cbranch_scc1 L_final")
    for i in range(1, 4):
        A(f"v_mov_b32_dpp v{S+8+i}, v{S+8} quad_perm:[{i},{i},{i},{i}] row_mask:0xf bank_mask:0xf")
    A(f"buffer_store_dword v{S+7}, v{vSd}, s[{sWS}:{sWS+3}], s63 offen {stf}")
    A(f"buffer_store_dwordx4 v[{S+8}:{S+11}], v{vSn}, s[{sWS}:{sWS+3}], s68 offen {stf}")
    if stamp:
        A("s_mov_b32 s76, 0"); A("s_mov_b32 s78, 0"); A("s_mov_b32 s80, 0")
        A("s_branch L_fin")
    else:
        A("s_endpgm")
    Lb("L_final")
    if stamp: A("s_memrealtime s[78:79]"); A("s_mov_b32 s76, 0")
    P = vOM; D = vOM + 8
    A(f"s_mov_b32 s53, {1<<20}")
    Lb("L_poll")
    for p in range(1, 8):
        A(f"buffer_load_dword v{P+p}, v{vL4}, s[{sWS}:{sWS+3}], s67 offen offset:{p*256} {ldf}")
    A(f"buffer_load_dwordx4 v[{D}:{D+3}], v{vZero}, s[{sWS}:{sWS+3}], s69 offen {ldf}")
    A(f"buffer_load_dwordx4 v[{D+4}:{D+7}], v{vZero}, s[{sWS}:{sWS+3}], s69 offen offset:16 {ldf}")
    A("s_sub_u32 s53, s53, 1")
    A("s_cbranch_scc1 L_end")
    if stamp: A("s_add_u32 s76, s76, 1")
    A("s_waitcnt vmcnt(0)")
    A(f"v_max3_u32 v{P}, v{P+1}, v{P+2}, v{P+3}")
    A(f"v_max3_u32 v{D}, v{D+1}, v{D+2}, v{D+3}")
    A(f"v_max3_u32 v{P}, v{P}, v{P+4}, v{P+5}")
    A(f"v_max3_u32 v{D}, v{D}, v{D+4}, v{D+5}")
    A(f"v_max3_u32 v{P}, v{P}, v{P+6}, v{P+7}")
    A(f"v_max3_u32 v{D}, v{D}, v{D+6}, v{D+7}")
    A(f"v_max_u32 v{P}, v{P}, v{D}")
    A(f"v_cmp_eq_u32 vcc, -1, v{P}")
    A(f"v_add_f32 v{S}, v{S+8}, v{P+1}"); A(f"v_add_f32 v{S+1}, v{S+7}, v{D+1}")
    A(f"v_add_f32 v{P+2}, v{P+2}, v{P+3}"); A(f"v_add_f32 v{D+2}, v{D+2}, v{D+3}")
    A(f"v_add_f32 v{P+4}, v{P+4}, v{P+5}"); A(f"v_add_f32 v{D+4}, v{D+4}, v{D+5}")
    if not nopoll:
        if slp:
            A("s_cbranch_vccz L_got")
            A(f"s_sleep {slp}")
            A("s_branch L_poll")
            Lb("L_got")
        else:
            A("s_cbranch_vccnz L_poll")
    if stamp: A("s_memrealtime s[80:81]")
    A(f"v_add_f32 v{P+6}, v{P+6}, v{P+7}"); A(f"v_add_f32 v{D+6}, v{D+6}, v{D+7}")
    A(f"v_add_f32 v{S}, v{S}, v{P+2}"); A(f"v_add_f32 v{S+1}, v{S+1}, v{D+2}")
    A(f"v_add_f32 v{P+4}, v{P+4}, v{P+6}"); A(f"v_add_f32 v{D+4}, v{D+4}, v{D+6}")
    A(f"v_add_f32 v{S}, v{S}, v{P+4}"); A(f"v_add_f32 v{S+1}, v{S+1}, v{D+4}")
    A(f"v_cvt_pk_bf16_f32 v{S+2}, v{S}, v{S+1}")
    A(f"v_and_b32 v{S+1}, 0xffff0000, v{S+2}")
    A(f"v_lshlrev_b32 v{S}, 16, v{S+2}")
    A(f"v_add_f32 v{S+1}, v{S+1}, v{vEps}")
    A(f"v_cvt_pk_bf16_f32 v{S+1}, v{S+1}, v{S+1}"); A(f"v_and_b32 v{S+1}, 0xffff0000, v{S+1}")
    A(f"v_rcp_f32 v{S+2}, v{S+1}")
    A(f"s_lshl_b32 s18, s{sC}, 7"); A(f"s_add_u32 s18, s18, s19")
    A(f"v_mul_f32 v{S+3}, v{S}, v{S+2}")
    A(f"v_fma_f32 v{S+4}, -v{S+1}, v{S+3}, v{S}")
    A(f"v_fma_f32 v{S+3}, v{S+4}, v{S+2}, v{S+3}")
    A(f"v_div_fixup_f32 v{S+3}, v{S+3}, v{S+1}, v{S}")
    A(f"v_cvt_pk_bf16_f32 v{S+3}, v{S+3}, v{S+3}")
    A("v_lshlrev_b32 v1, 1, v0")
    A(f"buffer_store_short v{S+3}, v1, s[{sOUT}:{sOUT+3}], s18 offen {outf}")
    if stamp:
        A("s_branch L_fin")
    else:
        A("s_endpgm")

    Lb("L_sp0")
    if vpre:
        A(f"buffer_load_dword v3, v{vZero}, s[{sV}:{sV+3}], s{sOff} offen nt")
    A(f"s_cmp_lg_u32 s{sPart}, 0")
    A("s_cbranch_scc1 L_sp0_ret")
    for r in range(4): A(f"v_mov_b32 v{vB+r}, -1")
    A("v_lshlrev_b32 v2, 4, v0")
    A(f"buffer_store_dwordx4 v[{vB}:{vB+3}], v2, s[{sWS}:{sWS+3}], s67 offen {stf}")
    A(f"buffer_store_dwordx4 v[{vB}:{vB+3}], v2, s[{sWS}:{sWS+3}], s67 offen offset:1024 {stf}")
    A(f"buffer_store_dwordx4 v[{vB}:{vB+3}], v{vSd}, s[{sWS}:{sWS+3}], s69 offen {stf}")
    A(f"buffer_store_dwordx4 v[{vB}:{vB+3}], v{vSd}, s[{sWS}:{sWS+3}], s69 offen offset:16 {stf}")
    A("s_branch L_sp0_ret")

    Lb("L_sp1")
    A(f"v_add_u32 v2, {QL}, v11")
    for j in range(8):
        A(f"ds_read_b128 v[{vK+j*4}:{vK+j*4+3}], v2 offset:{j*64}")
    A("v_mov_b32 v5, 1")
    A("s_waitcnt lgkmcnt(0)")
    for j in range(8):
        qr = f"v[{vK+j*4}:{vK+j*4+3}]"
        c = "0" if j == 0 else f"v[{vKP}:{vKP+3}]"
        A(f"v_mfma_f32_16x16x32_bf16 v[{vKP}:{vKP+3}], v[{vOM+j*4}:{vOM+j*4+3}], {qr}, {c}")
        c = "0" if j == 0 else f"v[{vG}:{vG+3}]"
        A(f"v_mfma_f32_16x16x32_bf16 v[{vG}:{vG+3}], {qr}, {qr}, {c}")
    A("s_nop 7")
    round4(vKP, vKP)
    A(f"v_cvt_pk_bf16_f32 v{vX}, v{vG}, v{vG}")
    A(f"v_and_b32 v{vX}, 0xffff0000, v{vX}")
    for r in range(4): A(f"v_fma_f32 v{vY+r}, v{vX}, v{vM8}, v{vKP+r}")
    phi_tail()
    A(f"v_lshlrev_b32 v{vPQ}, 16, v{vPH}"); A(f"v_and_b32 v{vPQ+1}, 0xffff0000, v{vPH}")
    A(f"v_lshlrev_b32 v{vPQ+2}, 16, v{vPH+1}"); A(f"v_and_b32 v{vPQ+3}, 0xffff0000, v{vPH+1}")
    A(f"s_cmp_lg_u32 s{sPart}, 0")
    A("s_cbranch_scc1 L_sp_ret")
    A(f"s_lshl_b32 s18, s{sHead}, 2")
    A(f"buffer_store_dword v5, v{vSd}, s[{sDBG}:{sDBG+3}], s18 offen {stf}")
    A("s_branch L_sp_ret")

    Lb("L_sp2")
    if warm:
        A(f"buffer_load_dword v6, v{vZero}, s[{sWS}:{sWS+3}], s67 offen")
        A(f"buffer_load_dword v7, v{vZero}, s[{sOUT}:{sOUT+3}], s19 offen")
    A(f"buffer_load_dword v{vFl}, v{vDo}, s[{sDBG}:{sDBG+3}], 0 offen")
    A("s_branch L_sp_ret")
    Lb("L_sp3")
    A(f"s_mov_b32 s53, {1<<20}")
    Lb("L_sp3p")
    A("s_waitcnt vmcnt(0)")
    A(f"v_readfirstlane_b32 s18, v{vFl}")
    A("s_nop 3")
    A("s_cmp_lg_u32 s18, 0")
    A("s_cbranch_scc1 L_sp_ret")
    A(f"buffer_load_dword v{vFl}, v{vDo}, s[{sDBG}:{sDBG+3}], 0 offen sc0 sc1")
    A("s_sub_u32 s53, s53, 1")
    A("s_cmp_lg_u32 s53, 0")
    A("s_cbranch_scc1 L_sp3p")
    A("s_branch L_sp_ret")

    if stamp:
        Lb("L_fin")
        A("s_waitcnt vmcnt(0)")
        A("s_memrealtime s[74:75]")
        A("s_getreg_b32 s82, hwreg(HW_REG_XCC_ID)")
        A("s_getreg_b32 s83, hwreg(HW_REG_HW_ID)")
        A("s_waitcnt lgkmcnt(0)")
        A(f"s_mul_i32 s19, s2, 5"); A("s_add_u32 s19, s19, s3"); A("s_lshl_b32 s19, s19, 5"); A("s_add_u32 s19, s19, 0x100000")
        A("v_mov_b32 v2, s19")
        A("v_mov_b32 v4, s70"); A("v_mov_b32 v5, s76"); A("v_mov_b32 v6, s72"); A("v_mov_b32 v7, s82")
        A("v_mov_b32 v8, s83"); A("v_mov_b32 v9, s78"); A("v_mov_b32 v10, s80"); A("v_mov_b32 v11, s74")
        A("s_mov_b64 exec, 1")
        A("global_store_dwordx4 v2, v[4:7], s[16:17]")
        A("global_store_dwordx4 v2, v[8:11], s[16:17] offset:16")
        A("s_waitcnt vmcnt(0)")
    Lb("L_end")
    A("s_endpgm")
    o.append('.section .rodata,"a"'); o.append(".p2align 6"); o.append(f".amdhsa_kernel {KN}")
    A(f".amdhsa_next_free_vgpr {nv}"); A(".amdhsa_next_free_sgpr 96"); A(f".amdhsa_accum_offset {nv}")
    A(".amdhsa_group_segment_fixed_size 0"); A(".amdhsa_kernarg_size 56"); A(".amdhsa_user_sgpr_count 2")
    A(".amdhsa_user_sgpr_kernarg_segment_ptr 1"); A(".amdhsa_system_sgpr_workgroup_id_x 1")
    A(".amdhsa_float_denorm_mode_32 3")
    o.append(".end_amdhsa_kernel")
    return "\n".join(o) + "\n"

if __name__ == "__main__":
    out = sys.argv[1]
    kw = {}
    for kv in sys.argv[2:]:
        k, v = kv.split("=")
        kw[k] = int(v) if v.lstrip("-").isdigit() else v
    open(out, "w").write(gen(**kw))
```

```python
import sys, struct, math
KN = "standalone__linear_kernel_rfa__decode_kernel"
def f2u(x): return struct.unpack("<I", struct.pack("<f", x))[0]

HEADER = """; Kernarg layout for this problem (56 bytes, ptrs only, base s[0:1]):
"""

def gen(W=20, g=4, W0=0, WE=0, NE=0, stamp=0, outf="", prio=3, stf="sc1", ldf="sc1", nopoll=0, nocomp=0, slp=0, warm=0, vpre=0, spin=0, probe=0):
    NWG = 256
    fix = lambda x: x.replace("none", "").replace("+", " ")
    outf, stf, ldf = fix(outf), fix(stf), fix(ldf)
    if not W0: W0 = W
    o = []
    A = lambda s: o.append("  " + s)
    Lb = lambda s: o.append(s + ":")
    PHI = 65536
    OMG = 131072
    QL = OMG + 8192
    lds = QL + 1024
    o.append(HEADER.rstrip("\n"))
    o.append(f"; @launch grid=({NWG},1,1) block=(320,1,1) lds={lds}")
    o.append('.amdgcn_target "amdgcn-amd-amdhsa--gfx950"')
    o.append(".text"); o.append(f".globl {KN}"); o.append(".p2align 8"); o.append(f".type {KN},@function"); Lb(KN)

    sK, sV, sOM, sQ, sOUT, sWS, sDBG = 20, 24, 28, 32, 36, 40, 44
    sOff, sRing, sCnt = 48, 49, 50
    sMask, sL2E = 54, 62
    sHead, sPart, sC = 64, 65, 66

    A(f"s_load_dwordx8 s[4:11], s[0:1], 0")
    A(f"s_load_dwordx4 s[12:15], s[0:1], 32")
    A(f"s_load_dwordx2 s[16:17], s[0:1], 48")
    if stamp or spin: A("s_memrealtime s[70:71]")
    A("v_lshrrev_b32 v1, 6, v0")
    A(f"s_cmp_ge_u32 s2, {NWG}")
    A("v_readfirstlane_b32 s3, v1")
    A("s_cbranch_scc1 L_end")
    A("v_and_b32 v0, 63, v0")
    A("v_lshrrev_b32 v1, 5, v0")
    A("v_and_b32 v2, 31, v0")
    A("v_lshlrev_b32 v3, 1, v1")
    A("v_xor_b32 v2, v2, v3")
    A("v_lshlrev_b32 v2, 4, v2")
    A("v_lshl_add_u32 v4, v1, 9, v2")
    A("v_xor_b32 v5, 64, v4")
    A("v_xor_b32 v6, 0x80, v4")
    A("v_xor_b32 v7, 0xc0, v4")
    A(f"s_lshl_b32 s{sOff}, s2, 20")
    A("s_cmp_lg_u32 s3, 0")
    A("s_cbranch_scc1 L_cons")

    if prio: A(f"s_setprio {prio}")
    A(f"s_mov_b32 s{sK+2}, {1<<28}"); A(f"s_mov_b32 s{sK+3}, 0x20000")
    A(f"s_mov_b32 s{sV+2}, {1<<28}"); A(f"s_mov_b32 s{sV+3}, 0x20000")
    A(f"s_mov_b32 s51, s{sOff}")
    A(f"s_mov_b32 m0, 0")
    A("s_waitcnt lgkmcnt(0)")
    if probe == 1: A("s_memrealtime s[74:75]")
    A(f"s_mov_b32 s{sK}, s6"); A(f"s_and_b32 s{sK+1}, s7, 0xffff")
    assert W % g == 0 and 16 % g == 0 and 16 + g <= W <= 32 and W0 <= 32
    lag = 2
    def ld_round(srd, Wn, bar, ring=None, first=0):
        ustar = (Wn - g) % 16
        for u in range(16):
            k, n = divmod(u, 4)
            m0w = False
            if n == 0 and not (first == 1 and k == 0):
                if ring is None: A(f"s_add_u32 m0, s{sRing}, {k*4096}")
                else: A(f"s_mov_b32 m0, {ring + k*4096}")
                m0w = True
            need = u % g == 0 and not (first and (first - 1) * 16 + u + g <= Wn)
            if need: A(f"s_waitcnt vmcnt({Wn-g})")
            elif m0w: A("s_nop 0")
            A(f"buffer_load_dwordx4 v{4+n}, s[{srd}:{srd+3}], s{sOff} offen offset:{n*1024} nt lds")
            if n == 3: A(f"s_add_u32 s{sOff}, s{sOff}, 4096")
            if bar and u == ustar + g - 1: A("s_barrier")
    ld_round(sK, W0, False, ring=0, first=1)
    if probe == 2: A("s_memrealtime s[74:75]")
    if probe == 5: A("s_waitcnt vmcnt(15)"); A("s_memrealtime s[74:75]")
    ld_round(sK, W0, False, ring=16384, first=2)
    if probe == 3: A("s_memrealtime s[74:75]")
    A(f"s_mov_b32 s{sV}, s8"); A(f"s_and_b32 s{sV+1}, s9, 0xffff")
    A(f"s_mov_b32 s{sRing}, 32768")
    A(f"s_mov_b32 s{sCnt}, 2")
    loops = [("k", sK, W, 64), ("v", sV, W, 128 - NE)]
    if NE: loops.append(("e", sV, WE, 128))
    for ph, srd, Wn, end in loops:
        if ph == "v":
            A(f"s_mov_b32 s{sOff}, s51")
        Lb(f"L_ld_{ph}")
        ld_round(srd, Wn, True)
        A(f"s_add_u32 s{sRing}, s{sRing}, 16384"); A(f"s_and_b32 s{sRing}, s{sRing}, 0xffff")
        A(f"s_add_u32 s{sCnt}, s{sCnt}, 1")
        A(f"s_cmp_lt_u32 s{sCnt}, {end}")
        A(f"s_cbranch_scc1 L_ld_{ph}")
        if stamp and ph == "k": A("s_memrealtime s[76:77]")
        if probe == 4 and ph == "k": A("s_memrealtime s[74:75]")
    for i in range(lag):
        A(f"s_waitcnt vmcnt({16*(lag-1-i)})")
        A("s_barrier")
    if stamp:
        A("s_memrealtime s[72:73]"); A("s_mov_b32 s78, 0"); A("s_mov_b32 s80, 0")
        A("s_branch L_fin")
    else:
        if spin:
            if probe == 6: A("s_memrealtime s[74:75]")
            A("s_waitcnt lgkmcnt(0)")
            A(f"s_mov_b32 s76, {spin}")
            if probe:
                A("s_sub_u32 s74, s74, s70"); A(f"s_mul_i32 s74, s74, {10 if probe not in (4,6) else 1}"); A("s_add_u32 s76, s76, s74")
            Lb("L_spin")
            A("s_memrealtime s[72:73]"); A("s_waitcnt lgkmcnt(0)")
            A("s_sub_u32 s72, s72, s70"); A(f"s_cmp_lt_u32 s72, s76"); A("s_cbranch_scc1 L_spin")
        A("s_endpgm")

    vM8, vEps, vOnes = 8, 9, 12
    vKb = 16
    vVb = 20
    vAd = 24
    vPa = 28
    vSn = 29
    vFl = 30
    vDo = 31
    vKP = 32; vG = 36; vX = 40; vT = 42; vY = 44; vPH = 48; vPQ = 52
    vSd = 56
    vL4 = 57
    vZero = 58
    vOM = 64; vK = 96; vB = 128; vA = 144; vACC = 148
    nv = 168
    GRP = 2048
    DEN = 128 * GRP
    WSB = DEN + 32 * 128
    OOB = 0x7ff00000
    o.append(".p2align 6")
    Lb("L_cons")
    if nocomp:
        A("s_mov_b32 s50, 128")
        Lb("L_nc")
        A("s_barrier"); A("s_sub_u32 s50, s50, 1"); A("s_cmp_lg_u32 s50, 0"); A("s_cbranch_scc1 L_nc"); A("s_endpgm")
    A(f"s_sub_u32 s{sC}, s3, 1")
    A(f"s_lshr_b32 s{sHead}, s2, 3")
    A(f"s_sub_u32 s{sPart}, s2, s{sHead}"); A(f"s_and_b32 s{sPart}, s{sPart}, 7")
    A(f"s_mov_b32 s{sOM+2}, 8192"); A(f"s_mov_b32 s{sOM+3}, 0x20000")
    A(f"s_mov_b32 s{sQ+2}, 16384"); A(f"s_mov_b32 s{sQ+3}, 0x20000")
    A(f"s_mov_b32 s{sWS+2}, {WSB}"); A(f"s_mov_b32 s{sWS+3}, 0x20000")
    A(f"s_mov_b32 s{sOUT+2}, 16384"); A(f"s_mov_b32 s{sOUT+3}, 0x20000")
    A(f"s_mov_b32 s{sDBG+2}, 256"); A(f"s_mov_b32 s{sDBG+3}, 0x20000")
    A(f"s_lshl_b32 s19, s{sHead}, 9")
    A(f"s_mov_b32 m0, {OMG}")
    A(f"s_mov_b32 s18, 4096")
    A(f"s_cmp_lg_u32 s{sC}, 0")
    A("s_waitcnt lgkmcnt(0)")
    A(f"s_mov_b32 s{sOM}, s10"); A(f"s_mov_b32 s{sOM+1}, s11")
    A(f"s_mov_b32 s{sQ}, s4"); A(f"s_mov_b32 s{sQ+1}, s5")
    A("s_cbranch_scc1 L_noom")
    for n in range(4):
        A(f"buffer_load_dwordx4 v{4+n}, s[{sOM}:{sOM+3}], 0 offen offset:{n*1024} lds")
    A(f"s_mov_b32 m0, {OMG+4096}"); A("s_nop 0")
    for n in range(4):
        A(f"buffer_load_dwordx4 v{4+n}, s[{sOM}:{sOM+3}], s18 offen offset:{n*1024} lds")
    A(f"s_mov_b32 m0, {QL}"); A("s_nop 0")
    A(f"buffer_load_dwordx4 v4, s[{sQ}:{sQ+3}], s19 offen lds")
    Lb("L_noom")
    A(f"s_mov_b32 s{sWS}, s16"); A(f"s_mov_b32 s{sWS+1}, s17")
    A(f"s_mov_b32 s{sOUT}, s12"); A(f"s_mov_b32 s{sOUT+1}, s13")
    A(f"s_mov_b32 s{sDBG}, s14"); A(f"s_mov_b32 s{sDBG+1}, s15")
    if vpre:
        A(f"s_mov_b32 s{sV}, s8"); A(f"s_mov_b32 s{sV+1}, s9"); A(f"s_mov_b32 s{sV+2}, {1<<28}"); A(f"s_mov_b32 s{sV+3}, 0x20000")
    A("v_lshrrev_b32 v5, 4, v0")
    A("v_and_b32 v1, 15, v0")
    A(f"s_lshl_b32 s18, s{sHead}, 2"); A(f"v_mov_b32 v{vDo}, s18")
    A(f"v_lshlrev_b32 v{vL4}, 2, v0"); A(f"v_mov_b32 v{vZero}, 0")
    A(f"s_add_u32 s67, s18, s{sC}"); A("s_lshl_b32 s67, s67, 11")
    A(f"s_lshl_b32 s68, s{sPart}, 8"); A("s_add_u32 s68, s68, s67")
    A(f"s_lshl_b32 s69, s{sHead}, 7"); A(f"s_add_u32 s69, s69, {DEN}")
    A(f"s_lshl_b32 s63, s{sPart}, 2"); A("s_add_u32 s63, s63, s69")
    A("v_and_b32 v6, 3, v0"); A(f"v_mov_b32 v7, {OOB:#x}")
    A("v_cmp_eq_u32 vcc, 0, v6")
    A(f"v_or_b32 v2, s{sC}, v0")
    A("s_nop 0")
    A(f"v_cndmask_b32 v{vSn}, v7, v{vL4}, vcc")
    A("v_cmp_eq_u32 vcc, 0, v2")
    A("v_and_b32 v6, 7, v1"); A("v_lshlrev_b32 v6, 1, v6")
    A(f"v_cndmask_b32 v{vSd}, v7, v{vZero}, vcc")
    A("v_xor_b32 v6, v6, v5")
    A("v_lshlrev_b32 v6, 4, v6"); A(f"v_lshl_add_u32 v{vKb}, v1, 9, v6")
    for jj in range(1, 4): A(f"v_xor_b32 v{vKb+jj}, {jj*64}, v{vKb}")
    A(f"v_lshlrev_b32 v11, 4, v5")
    A("v_lshrrev_b32 v6, 2, v0")
    A("v_and_b32 v7, 7, v6")
    A(f"s_lshl_b32 s18, s{sC}, 2")
    A("v_xor_b32 v7, s18, v7")
    A("v_lshlrev_b32 v7, 5, v7"); A("v_lshl_add_u32 v7, v6, 9, v7")
    A("v_and_b32 v6, 3, v0"); A(f"v_lshl_add_u32 v{vVb}, v6, 3, v7")
    for t in range(1, 4): A(f"v_xor_b32 v{vVb+t}, {t*32}, v{vVb}")
    for r in range(4):
        m = (1 << r) | (1 << (20 + r)) | (1 << (40 + r)) | (1 << (60 + r))
        A(f"s_mov_b32 s{sMask+2*r}, {m & 0xffffffff:#x}"); A(f"s_mov_b32 s{sMask+2*r+1}, {m >> 32:#x}")
    A(f"s_mov_b32 s{sL2E}, {f2u(math.log2(math.e)/4):#x}")
    for r in range(4): A(f"v_mov_b32 v{vOnes+r}, 0x3f803f80")
    A(f"v_mov_b32 v{vM8}, {f2u(-0.125):#x}"); A(f"v_mov_b32 v{vEps}, {f2u(1e-6):#x}")
    for r in range(20): A(f"v_mov_b32 v{vACC+r}, 0")
    A(f"s_and_b32 s18, s{sC}, 1"); A(f"s_lshr_b32 s52, s{sC}, 1")
    A(f"s_lshl_b32 s{sRing}, s52, 14"); A("s_lshl_b32 s53, s18, 13"); A(f"s_add_u32 s{sRing}, s{sRing}, s53")
    A("s_lshl_b32 s53, s52, 10"); A("s_lshl_b32 s18, s18, 3"); A("s_add_u32 s53, s53, s18"); A(f"s_add_u32 s53, s53, {PHI}")
    A(f"v_lshl_add_u32 v{vPa}, v0, 4, s53")
    for jj in range(4): A(f"v_add_u32 v{vAd+jj}, {OMG}, v{vKb+jj}")
    A(f"s_mov_b32 s{sCnt}, 32")
    A("s_waitcnt vmcnt(0)")
    A("s_barrier")
    for j in range(8):
        A(f"ds_read_b128 v[{vOM+j*4}:{vOM+j*4+3}], v{vAd+(j&3)} offset:{(j>>2)*256}")
    for jj in range(4): A(f"v_add_u32 v{vAd+jj}, s{sRing}, v{vKb+jj}")
    A("s_cmp_eq_u32 s52, 0")
    A("s_cbranch_scc1 L_k_nb")

    def round4(src, dst):
        A(f"v_cvt_pk_bf16_f32 v{vT}, v{src}, v{src+1}")
        A(f"v_cvt_pk_bf16_f32 v{vT+1}, v{src+2}, v{src+3}")
        A(f"v_lshlrev_b32 v{dst}, 16, v{vT}"); A(f"v_and_b32 v{dst+1}, 0xffff0000, v{vT}")
        A(f"v_lshlrev_b32 v{dst+2}, 16, v{vT+1}"); A(f"v_and_b32 v{dst+3}, 0xffff0000, v{vT+1}")
    def phi_tail():
        round4(vY, vY)
        for r in range(4): A(f"v_mul_f32 v{vY+r}, s{sL2E}, v{vY+r}")
        for r in range(4): A(f"v_exp_f32 v{vY+r}, v{vY+r}")
        A("s_nop 0")
        round4(vY, vY)
        for r in range(4): A(f"v_fmamk_f32 v{vY+r}, v{vY+r}, 0x3e800000, v{vEps}")
        A(f"v_cvt_pk_bf16_f32 v{vPH}, v{vY}, v{vY+1}")
        A(f"v_cvt_pk_bf16_f32 v{vPH+1}, v{vY+2}, v{vY+3}")

    Lb("L_k")
    A("s_barrier")
    Lb("L_k_nb")
    for j in range(8):
        A(f"ds_read_b128 v[{vK+j*4}:{vK+j*4+3}], v{vAd+(j&3)} offset:{(j>>2)*256}")
    A(f"s_add_u32 s{sRing}, s{sRing}, 32768"); A(f"s_and_b32 s{sRing}, s{sRing}, 0xffff")
    for jj in range(4): A(f"v_add_u32 v{vAd+jj}, s{sRing}, v{vKb+jj}")
    for j in range(8):
        kr = f"v[{vK+j*4}:{vK+j*4+3}]"
        A(f"s_waitcnt lgkmcnt({7-j})")
        c = "0" if j == 0 else f"v[{vG}:{vG+3}]"
        A(f"v_mfma_f32_16x16x32_bf16 v[{vG}:{vG+3}], {kr}, {kr}, {c}")
        c = "0" if j == 0 else f"v[{vKP}:{vKP+3}]"
        A(f"v_mfma_f32_16x16x32_bf16 v[{vKP}:{vKP+3}], {kr}, v[{vOM+j*4}:{vOM+j*4+3}], {c}")
    A("s_barrier")
    A("s_nop 7")
    A(f"v_cndmask_b32 v{vX}, 0, v{vG}, s[{sMask}:{sMask+1}]")
    for r in range(1, 4):
        A(f"v_cndmask_b32 v{vX}, v{vX}, v{vG+r}, s[{sMask+2*r}:{sMask+2*r+1}]")
    A(f"v_cvt_pk_bf16_f32 v{vX}, v{vX}, v{vX}")
    A(f"v_and_b32 v{vX}, 0xffff0000, v{vX}")
    round4(vKP, vKP)
    A("s_nop 1")
    A(f"v_mfma_f32_16x16x4_f32 v[{vY}:{vY+3}], v{vX}, v{vM8}, v[{vKP}:{vKP+3}]")
    A("s_nop 9")
    phi_tail()
    A(f"ds_write_b64 v{vPa}, v[{vPH}:{vPH+1}]")
    A(f"v_add_u32 v{vPa}, 2048, v{vPa}")
    A(f"s_sub_u32 s{sCnt}, s{sCnt}, 1")
    A(f"s_cmp_eq_u32 s{sCnt}, 28")
    A("s_cbranch_scc1 L_sp0")
    Lb("L_sp0_ret")
    A(f"s_cmp_lg_u32 s{sCnt}, 0")
    A("s_waitcnt lgkmcnt(0)")
    A("s_cbranch_scc1 L_k")

    A(f"v_lshlrev_b32 v{vPa}, 4, v0"); A(f"v_add_u32 v{vPa}, {PHI}, v{vPa}")
    A(f"ds_read_b128 v[{vA}:{vA+3}], v{vPa}")
    A(f"s_mov_b32 s{sRing}, 0")
    A(f"s_mov_b32 s{sCnt}, 64")
    for t in range(4): A(f"v_mov_b32 v{vAd+t}, v{vVb+t}")
    A("s_waitcnt vmcnt(0) lgkmcnt(0)")
    A("s_cmp_lg_u32 s52, 0")
    A("s_cbranch_scc1 L_v_nb")
    Lb("L_v")
    A("s_barrier")
    Lb("L_v_nb")
    for t in range(4):
        A(f"ds_read_b64_tr_b16 v[{vB+t*4}:{vB+t*4+1}], v{vAd+t}")
        A(f"ds_read_b64_tr_b16 v[{vB+t*4+2}:{vB+t*4+3}], v{vAd+t} offset:8192")
    A(f"v_mfma_f32_16x16x32_bf16 v[{vACC+16}:{vACC+19}], v[{vA}:{vA+3}], v[{vOnes}:{vOnes+3}], v[{vACC+16}:{vACC+19}]")
    A(f"s_add_u32 s{sRing}, s{sRing}, 16384"); A(f"s_and_b32 s{sRing}, s{sRing}, 0xffff")
    A(f"v_add_u32 v{vPa}, 1024, v{vPa}")
    A(f"s_sub_u32 s{sCnt}, s{sCnt}, 1")
    for t in range(4):
        A(f"s_waitcnt lgkmcnt({6-2*t})")
        a = vACC + t * 4
        A(f"v_mfma_f32_16x16x32_bf16 v[{a}:{a+3}], v[{vA}:{vA+3}], v[{vB+t*4}:{vB+t*4+3}], v[{a}:{a+3}]")
    A(f"s_cmp_eq_u32 s{sCnt}, 0")
    A("s_cbranch_scc1 L_epi")
    A(f"ds_read_b128 v[{vA}:{vA+3}], v{vPa}")
    for t in range(4): A(f"v_add_u32 v{vAd+t}, s{sRing}, v{vVb+t}")
    A(f"s_cmp_eq_u32 s{sCnt}, 60")
    A("s_cbranch_scc1 L_sp1")
    A(f"s_cmp_eq_u32 s{sCnt}, 16")
    A("s_cbranch_scc1 L_sp2")
    A(f"s_cmp_eq_u32 s{sCnt}, 8")
    A("s_cbranch_scc1 L_sp3")
    Lb("L_sp_ret")
    A("s_waitcnt lgkmcnt(0)")
    A("s_branch L_v")

    Lb("L_epi")
    if stamp: A("s_memrealtime s[72:73]")
    S = vK
    for t in (4, 0, 2, 1, 3):
        a = vACC + t * 4
        A(f"v_mul_f32 v{S+t}, v{vPQ}, v{a}")
        for r in range(1, 4): A(f"v_fmac_f32 v{S+t}, v{vPQ+r}, v{a+r}")
        if t == 4: A(f"v_mov_b32 v{S+5}, v{S+4}")
    A(f"v_permlane32_swap_b32 v{S+4}, v{S+5}")
    A(f"v_permlane32_swap_b32 v{S}, v{S+2}")
    A(f"v_permlane32_swap_b32 v{S+1}, v{S+3}")
    A(f"v_add_f32 v{S+4}, v{S+4}, v{S+5}")
    A(f"v_add_f32 v{S}, v{S}, v{S+2}")
    A(f"v_add_f32 v{S+1}, v{S+1}, v{S+3}")
    A(f"v_mov_b32 v{S+5}, v{S+4}")
    A("s_nop 0")
    A(f"v_permlane16_swap_b32 v{S}, v{S+1}")
    A(f"v_permlane16_swap_b32 v{S+4}, v{S+5}")
    A(f"s_cmp_eq_u32 s{sPart}, 0")
    A(f"v_add_f32 v{S+8}, v{S}, v{S+1}")
    A(f"v_add_f32 v{S+7}, v{S+4}, v{S+5}")
    A("s_cbranch_scc1 L_final")
    for i in range(1, 4):
        A(f"v_mov_b32_dpp v{S+8+i}, v{S+8} quad_perm:[{i},{i},{i},{i}] row_mask:0xf bank_mask:0xf")
    A(f"buffer_store_dword v{S+7}, v{vSd}, s[{sWS}:{sWS+3}], s63 offen {stf}")
    A(f"buffer_store_dwordx4 v[{S+8}:{S+11}], v{vSn}, s[{sWS}:{sWS+3}], s68 offen {stf}")
    if stamp:
        A("s_mov_b32 s76, 0"); A("s_mov_b32 s78, 0"); A("s_mov_b32 s80, 0")
        A("s_branch L_fin")
    else:
        A("s_endpgm")
    Lb("L_final")
    if stamp: A("s_memrealtime s[78:79]"); A("s_mov_b32 s76, 0")
    P = vOM; D = vOM + 8
    A(f"s_mov_b32 s53, {1<<20}")
    Lb("L_poll")
    for p in range(1, 8):
        A(f"buffer_load_dword v{P+p}, v{vL4}, s[{sWS}:{sWS+3}], s67 offen offset:{p*256} {ldf}")
    A(f"buffer_load_dwordx4 v[{D}:{D+3}], v{vZero}, s[{sWS}:{sWS+3}], s69 offen {ldf}")
    A(f"buffer_load_dwordx4 v[{D+4}:{D+7}], v{vZero}, s[{sWS}:{sWS+3}], s69 offen offset:16 {ldf}")
    A("s_sub_u32 s53, s53, 1")
    A("s_cbranch_scc1 L_end")
    if stamp: A("s_add_u32 s76, s76, 1")
    A("s_waitcnt vmcnt(0)")
    A(f"v_max3_u32 v{P}, v{P+1}, v{P+2}, v{P+3}")
    A(f"v_max3_u32 v{D}, v{D+1}, v{D+2}, v{D+3}")
    A(f"v_max3_u32 v{P}, v{P}, v{P+4}, v{P+5}")
    A(f"v_max3_u32 v{D}, v{D}, v{D+4}, v{D+5}")
    A(f"v_max3_u32 v{P}, v{P}, v{P+6}, v{P+7}")
    A(f"v_max3_u32 v{D}, v{D}, v{D+6}, v{D+7}")
    A(f"v_max_u32 v{P}, v{P}, v{D}")
    A(f"v_cmp_eq_u32 vcc, -1, v{P}")
    A(f"v_add_f32 v{S}, v{S+8}, v{P+1}"); A(f"v_add_f32 v{S+1}, v{S+7}, v{D+1}")
    A(f"v_add_f32 v{P+2}, v{P+2}, v{P+3}"); A(f"v_add_f32 v{D+2}, v{D+2}, v{D+3}")
    A(f"v_add_f32 v{P+4}, v{P+4}, v{P+5}"); A(f"v_add_f32 v{D+4}, v{D+4}, v{D+5}")
    if not nopoll:
        if slp:
            A("s_cbranch_vccz L_got")
            A(f"s_sleep {slp}")
            A("s_branch L_poll")
            Lb("L_got")
        else:
            A("s_cbranch_vccnz L_poll")
    if stamp: A("s_memrealtime s[80:81]")
    A(f"v_add_f32 v{P+6}, v{P+6}, v{P+7}"); A(f"v_add_f32 v{D+6}, v{D+6}, v{D+7}")
    A(f"v_add_f32 v{S}, v{S}, v{P+2}"); A(f"v_add_f32 v{S+1}, v{S+1}, v{D+2}")
    A(f"v_add_f32 v{P+4}, v{P+4}, v{P+6}"); A(f"v_add_f32 v{D+4}, v{D+4}, v{D+6}")
    A(f"v_add_f32 v{S}, v{S}, v{P+4}"); A(f"v_add_f32 v{S+1}, v{S+1}, v{D+4}")
    A(f"v_cvt_pk_bf16_f32 v{S+2}, v{S}, v{S+1}")
    A(f"v_and_b32 v{S+1}, 0xffff0000, v{S+2}")
    A(f"v_lshlrev_b32 v{S}, 16, v{S+2}")
    A(f"v_add_f32 v{S+1}, v{S+1}, v{vEps}")
    A(f"v_cvt_pk_bf16_f32 v{S+1}, v{S+1}, v{S+1}"); A(f"v_and_b32 v{S+1}, 0xffff0000, v{S+1}")
    A(f"v_rcp_f32 v{S+2}, v{S+1}")
    A(f"s_lshl_b32 s18, s{sC}, 7"); A(f"s_add_u32 s18, s18, s19")
    A(f"v_mul_f32 v{S+3}, v{S}, v{S+2}")
    A(f"v_fma_f32 v{S+4}, -v{S+1}, v{S+3}, v{S}")
    A(f"v_fma_f32 v{S+3}, v{S+4}, v{S+2}, v{S+3}")
    A(f"v_div_fixup_f32 v{S+3}, v{S+3}, v{S+1}, v{S}")
    A(f"v_cvt_pk_bf16_f32 v{S+3}, v{S+3}, v{S+3}")
    A("v_lshlrev_b32 v1, 1, v0")
    A(f"buffer_store_short v{S+3}, v1, s[{sOUT}:{sOUT+3}], s18 offen {outf}")
    if stamp:
        A("s_branch L_fin")
    else:
        A("s_endpgm")

    Lb("L_sp0")
    if vpre:
        A(f"buffer_load_dword v3, v{vZero}, s[{sV}:{sV+3}], s{sOff} offen nt")
    A(f"s_cmp_lg_u32 s{sPart}, 0")
    A("s_cbranch_scc1 L_sp0_ret")
    for r in range(4): A(f"v_mov_b32 v{vB+r}, -1")
    A("v_lshlrev_b32 v2, 4, v0")
    A(f"buffer_store_dwordx4 v[{vB}:{vB+3}], v2, s[{sWS}:{sWS+3}], s67 offen {stf}")
    A(f"buffer_store_dwordx4 v[{vB}:{vB+3}], v2, s[{sWS}:{sWS+3}], s67 offen offset:1024 {stf}")
    A(f"buffer_store_dwordx4 v[{vB}:{vB+3}], v{vSd}, s[{sWS}:{sWS+3}], s69 offen {stf}")
    A(f"buffer_store_dwordx4 v[{vB}:{vB+3}], v{vSd}, s[{sWS}:{sWS+3}], s69 offen offset:16 {stf}")
    A("s_branch L_sp0_ret")

    Lb("L_sp1")
    A(f"v_add_u32 v2, {QL}, v11")
    for j in range(8):
        A(f"ds_read_b128 v[{vK+j*4}:{vK+j*4+3}], v2 offset:{j*64}")
    A("v_mov_b32 v5, 1")
    A("s_waitcnt lgkmcnt(0)")
    for j in range(8):
        qr = f"v[{vK+j*4}:{vK+j*4+3}]"
        c = "0" if j == 0 else f"v[{vKP}:{vKP+3}]"
        A(f"v_mfma_f32_16x16x32_bf16 v[{vKP}:{vKP+3}], v[{vOM+j*4}:{vOM+j*4+3}], {qr}, {c}")
        c = "0" if j == 0 else f"v[{vG}:{vG+3}]"
        A(f"v_mfma_f32_16x16x32_bf16 v[{vG}:{vG+3}], {qr}, {qr}, {c}")
    A("s_nop 7")
    round4(vKP, vKP)
    A(f"v_cvt_pk_bf16_f32 v{vX}, v{vG}, v{vG}")
    A(f"v_and_b32 v{vX}, 0xffff0000, v{vX}")
    for r in range(4): A(f"v_fma_f32 v{vY+r}, v{vX}, v{vM8}, v{vKP+r}")
    phi_tail()
    A(f"v_lshlrev_b32 v{vPQ}, 16, v{vPH}"); A(f"v_and_b32 v{vPQ+1}, 0xffff0000, v{vPH}")
    A(f"v_lshlrev_b32 v{vPQ+2}, 16, v{vPH+1}"); A(f"v_and_b32 v{vPQ+3}, 0xffff0000, v{vPH+1}")
    A(f"s_cmp_lg_u32 s{sPart}, 0")
    A("s_cbranch_scc1 L_sp_ret")
    A(f"s_lshl_b32 s18, s{sHead}, 2")
    A(f"buffer_store_dword v5, v{vSd}, s[{sDBG}:{sDBG+3}], s18 offen {stf}")
    A("s_branch L_sp_ret")

    Lb("L_sp2")
    if warm:
        A(f"buffer_load_dword v6, v{vZero}, s[{sWS}:{sWS+3}], s67 offen")
        A(f"buffer_load_dword v7, v{vZero}, s[{sOUT}:{sOUT+3}], s19 offen")
    A(f"buffer_load_dword v{vFl}, v{vDo}, s[{sDBG}:{sDBG+3}], 0 offen")
    A("s_branch L_sp_ret")
    Lb("L_sp3")
    A(f"s_mov_b32 s53, {1<<20}")
    Lb("L_sp3p")
    A("s_waitcnt vmcnt(0)")
    A(f"v_readfirstlane_b32 s18, v{vFl}")
    A("s_nop 3")
    A("s_cmp_lg_u32 s18, 0")
    A("s_cbranch_scc1 L_sp_ret")
    A(f"buffer_load_dword v{vFl}, v{vDo}, s[{sDBG}:{sDBG+3}], 0 offen sc0 sc1")
    A("s_sub_u32 s53, s53, 1")
    A("s_cmp_lg_u32 s53, 0")
    A("s_cbranch_scc1 L_sp3p")
    A("s_branch L_sp_ret")

    if stamp:
        Lb("L_fin")
        A("s_waitcnt vmcnt(0)")
        A("s_memrealtime s[74:75]")
        A("s_getreg_b32 s82, hwreg(HW_REG_XCC_ID)")
        A("s_getreg_b32 s83, hwreg(HW_REG_HW_ID)")
        A("s_waitcnt lgkmcnt(0)")
        A(f"s_mul_i32 s19, s2, 5"); A("s_add_u32 s19, s19, s3"); A("s_lshl_b32 s19, s19, 5"); A("s_add_u32 s19, s19, 0x100000")
        A("v_mov_b32 v2, s19")
        A("v_mov_b32 v4, s70"); A("v_mov_b32 v5, s76"); A("v_mov_b32 v6, s72"); A("v_mov_b32 v7, s82")
        A("v_mov_b32 v8, s83"); A("v_mov_b32 v9, s78"); A("v_mov_b32 v10, s80"); A("v_mov_b32 v11, s74")
        A("s_mov_b64 exec, 1")
        A("global_store_dwordx4 v2, v[4:7], s[16:17]")
        A("global_store_dwordx4 v2, v[8:11], s[16:17] offset:16")
        A("s_waitcnt vmcnt(0)")
    Lb("L_end")
    A("s_endpgm")
    o.append('.section .rodata,"a"'); o.append(".p2align 6"); o.append(f".amdhsa_kernel {KN}")
    A(f".amdhsa_next_free_vgpr {nv}"); A(".amdhsa_next_free_sgpr 96"); A(f".amdhsa_accum_offset {nv}")
    A(".amdhsa_group_segment_fixed_size 0"); A(".amdhsa_kernarg_size 56"); A(".amdhsa_user_sgpr_count 2")
    A(".amdhsa_user_sgpr_kernarg_segment_ptr 1"); A(".amdhsa_system_sgpr_workgroup_id_x 1")
    A(".amdhsa_float_denorm_mode_32 3")
    o.append(".end_amdhsa_kernel")
    return "\n".join(o) + "\n"

if __name__ == "__main__":
    out = sys.argv[1]
    kw = {}
    for kv in sys.argv[2:]:
        k, v = kv.split("=")
        kw[k] = int(v) if v.lstrip("-").isdigit() else v
    open(out, "w").write(gen(**kw))
```

```python
import sys, struct, math
KN = "standalone__linear_kernel_rfa__decode_kernel"
def f2u(x): return struct.unpack("<I", struct.pack("<f", x))[0]

HEADER = """; Kernarg layout for this problem (56 bytes, ptrs only, base s[0:1]):
"""

def gen(W=20, g=4, W0=0, WE=0, NE=0, stamp=0, outf="", prio=3, stf="sc1", ldf="sc1", nopoll=0, nocomp=0, slp=0, warm=0, vpre=0, spin=0, probe=0, amp=0):
    NWG = 256
    fix = lambda x: x.replace("none", "").replace("+", " ")
    outf, stf, ldf = fix(outf), fix(stf), fix(ldf)
    if not W0: W0 = W
    o = []
    A = lambda s: o.append("  " + s)
    Lb = lambda s: o.append(s + ":")
    PHI = 65536
    OMG = 131072
    QL = OMG + 8192
    lds = QL + 1024
    o.append(HEADER.rstrip("\n"))
    o.append(f"; @launch grid=({NWG},1,1) block=(320,1,1) lds={lds}")
    o.append('.amdgcn_target "amdgcn-amd-amdhsa--gfx950"')
    o.append(".text"); o.append(f".globl {KN}"); o.append(".p2align 8"); o.append(f".type {KN},@function"); Lb(KN)

    sK, sV, sOM, sQ, sOUT, sWS, sDBG = 20, 24, 28, 32, 36, 40, 44
    sOff, sRing, sCnt = 48, 49, 50
    sMask, sL2E = 54, 62
    sHead, sPart, sC = 64, 65, 66

    A(f"s_load_dwordx8 s[4:11], s[0:1], 0")
    A(f"s_load_dwordx4 s[12:15], s[0:1], 32")
    A(f"s_load_dwordx2 s[16:17], s[0:1], 48")
    if stamp or spin or amp: A("s_memrealtime s[70:71]")
    A("v_lshrrev_b32 v1, 6, v0")
    A(f"s_cmp_ge_u32 s2, {NWG}")
    A("v_readfirstlane_b32 s3, v1")
    A("s_cbranch_scc1 L_end")
    A("v_and_b32 v0, 63, v0")
    A("v_lshrrev_b32 v1, 5, v0")
    A("v_and_b32 v2, 31, v0")
    A("v_lshlrev_b32 v3, 1, v1")
    A("v_xor_b32 v2, v2, v3")
    A("v_lshlrev_b32 v2, 4, v2")
    A("v_lshl_add_u32 v4, v1, 9, v2")
    A("v_xor_b32 v5, 64, v4")
    A("v_xor_b32 v6, 0x80, v4")
    A("v_xor_b32 v7, 0xc0, v4")
    A(f"s_lshl_b32 s{sOff}, s2, 20")
    A("s_cmp_lg_u32 s3, 0")
    A("s_cbranch_scc1 L_cons")

    if prio: A(f"s_setprio {prio}")
    A(f"s_mov_b32 s{sK+2}, {1<<28}"); A(f"s_mov_b32 s{sK+3}, 0x20000")
    A(f"s_mov_b32 s{sV+2}, {1<<28}"); A(f"s_mov_b32 s{sV+3}, 0x20000")
    A(f"s_mov_b32 s51, s{sOff}")
    A(f"s_mov_b32 m0, 0")
    A("s_waitcnt lgkmcnt(0)")
    if probe == 1: A("s_memrealtime s[74:75]")
    A(f"s_mov_b32 s{sK}, s6"); A(f"s_and_b32 s{sK+1}, s7, 0xffff")
    assert W % g == 0 and 16 % g == 0 and 16 + g <= W <= 32 and W0 <= 32
    lag = 2
    def ld_round(srd, Wn, bar, ring=None, first=0):
        ustar = (Wn - g) % 16
        for u in range(16):
            k, n = divmod(u, 4)
            m0w = False
            if n == 0 and not (first == 1 and k == 0):
                if ring is None: A(f"s_add_u32 m0, s{sRing}, {k*4096}")
                else: A(f"s_mov_b32 m0, {ring + k*4096}")
                m0w = True
            need = u % g == 0 and not (first and (first - 1) * 16 + u + g <= Wn)
            if need: A(f"s_waitcnt vmcnt({Wn-g})")
            elif m0w: A("s_nop 0")
            A(f"buffer_load_dwordx4 v{4+n}, s[{srd}:{srd+3}], s{sOff} offen offset:{n*1024} nt lds")
            if n == 3: A(f"s_add_u32 s{sOff}, s{sOff}, 4096")
            if bar and u == ustar + g - 1: A("s_barrier")
    ld_round(sK, W0, False, ring=0, first=1)
    if probe == 2: A("s_memrealtime s[74:75]")
    if probe == 5: A("s_waitcnt vmcnt(15)"); A("s_memrealtime s[74:75]")
    ld_round(sK, W0, False, ring=16384, first=2)
    if probe == 3: A("s_memrealtime s[74:75]")
    A(f"s_mov_b32 s{sV}, s8"); A(f"s_and_b32 s{sV+1}, s9, 0xffff")
    A(f"s_mov_b32 s{sRing}, 32768")
    A(f"s_mov_b32 s{sCnt}, 2")
    loops = [("k", sK, W, 64), ("v", sV, W, 128 - NE)]
    if NE: loops.append(("e", sV, WE, 128))
    for ph, srd, Wn, end in loops:
        if ph == "v":
            A(f"s_mov_b32 s{sOff}, s51")
        Lb(f"L_ld_{ph}")
        ld_round(srd, Wn, True)
        A(f"s_add_u32 s{sRing}, s{sRing}, 16384"); A(f"s_and_b32 s{sRing}, s{sRing}, 0xffff")
        A(f"s_add_u32 s{sCnt}, s{sCnt}, 1")
        A(f"s_cmp_lt_u32 s{sCnt}, {end}")
        A(f"s_cbranch_scc1 L_ld_{ph}")
        if stamp and ph == "k": A("s_memrealtime s[76:77]")
        if probe == 4 and ph == "k": A("s_memrealtime s[74:75]")
    for i in range(lag):
        A(f"s_waitcnt vmcnt({16*(lag-1-i)})")
        A("s_barrier")
    if stamp:
        A("s_memrealtime s[72:73]"); A("s_mov_b32 s78, 0"); A("s_mov_b32 s80, 0")
        A("s_branch L_fin")
    else:
        if spin:
            if probe == 6: A("s_memrealtime s[74:75]")
            A("s_waitcnt lgkmcnt(0)")
            A(f"s_mov_b32 s76, {spin}")
            if probe:
                A("s_sub_u32 s74, s74, s70"); A(f"s_mul_i32 s74, s74, {10 if probe not in (4,6) else 1}"); A("s_add_u32 s76, s76, s74")
            Lb("L_spin")
            A("s_memrealtime s[72:73]"); A("s_waitcnt lgkmcnt(0)")
            A("s_sub_u32 s72, s72, s70"); A(f"s_cmp_lt_u32 s72, s76"); A("s_cbranch_scc1 L_spin")
        A("s_endpgm")

    vM8, vEps, vOnes = 8, 9, 12
    vKb = 16
    vVb = 20
    vAd = 24
    vPa = 28
    vSn = 29
    vFl = 30
    vDo = 31
    vKP = 32; vG = 36; vX = 40; vT = 42; vY = 44; vPH = 48; vPQ = 52
    vSd = 56
    vL4 = 57
    vZero = 58
    vOM = 64; vK = 96; vB = 128; vA = 144; vACC = 148
    nv = 168
    GRP = 2048
    DEN = 128 * GRP
    WSB = DEN + 32 * 128
    OOB = 0x7ff00000
    o.append(".p2align 6")
    Lb("L_cons")
    if nocomp:
        A("s_mov_b32 s50, 128")
        Lb("L_nc")
        A("s_barrier"); A("s_sub_u32 s50, s50, 1"); A("s_cmp_lg_u32 s50, 0"); A("s_cbranch_scc1 L_nc"); A("s_endpgm")
    A(f"s_sub_u32 s{sC}, s3, 1")
    A(f"s_lshr_b32 s{sHead}, s2, 3")
    A(f"s_sub_u32 s{sPart}, s2, s{sHead}"); A(f"s_and_b32 s{sPart}, s{sPart}, 7")
    A(f"s_mov_b32 s{sOM+2}, 8192"); A(f"s_mov_b32 s{sOM+3}, 0x20000")
    A(f"s_mov_b32 s{sQ+2}, 16384"); A(f"s_mov_b32 s{sQ+3}, 0x20000")
    A(f"s_mov_b32 s{sWS+2}, {WSB}"); A(f"s_mov_b32 s{sWS+3}, 0x20000")
    A(f"s_mov_b32 s{sOUT+2}, 16384"); A(f"s_mov_b32 s{sOUT+3}, 0x20000")
    A(f"s_mov_b32 s{sDBG+2}, 256"); A(f"s_mov_b32 s{sDBG+3}, 0x20000")
    A(f"s_lshl_b32 s19, s{sHead}, 9")
    A(f"s_mov_b32 m0, {OMG}")
    A(f"s_mov_b32 s18, 4096")
    A(f"s_cmp_lg_u32 s{sC}, 0")
    A("s_waitcnt lgkmcnt(0)")
    A(f"s_mov_b32 s{sOM}, s10"); A(f"s_mov_b32 s{sOM+1}, s11")
    A(f"s_mov_b32 s{sQ}, s4"); A(f"s_mov_b32 s{sQ+1}, s5")
    A("s_cbranch_scc1 L_noom")
    for n in range(4):
        A(f"buffer_load_dwordx4 v{4+n}, s[{sOM}:{sOM+3}], 0 offen offset:{n*1024} lds")
    A(f"s_mov_b32 m0, {OMG+4096}"); A("s_nop 0")
    for n in range(4):
        A(f"buffer_load_dwordx4 v{4+n}, s[{sOM}:{sOM+3}], s18 offen offset:{n*1024} lds")
    A(f"s_mov_b32 m0, {QL}"); A("s_nop 0")
    A(f"buffer_load_dwordx4 v4, s[{sQ}:{sQ+3}], s19 offen lds")
    Lb("L_noom")
    A(f"s_mov_b32 s{sWS}, s16"); A(f"s_mov_b32 s{sWS+1}, s17")
    A(f"s_mov_b32 s{sOUT}, s12"); A(f"s_mov_b32 s{sOUT+1}, s13")
    A(f"s_mov_b32 s{sDBG}, s14"); A(f"s_mov_b32 s{sDBG+1}, s15")
    if vpre:
        A(f"s_mov_b32 s{sV}, s8"); A(f"s_mov_b32 s{sV+1}, s9"); A(f"s_mov_b32 s{sV+2}, {1<<28}"); A(f"s_mov_b32 s{sV+3}, 0x20000")
    A("v_lshrrev_b32 v5, 4, v0")
    A("v_and_b32 v1, 15, v0")
    A(f"s_lshl_b32 s18, s{sHead}, 2"); A(f"v_mov_b32 v{vDo}, s18")
    A(f"v_lshlrev_b32 v{vL4}, 2, v0"); A(f"v_mov_b32 v{vZero}, 0")
    A(f"s_add_u32 s67, s18, s{sC}"); A("s_lshl_b32 s67, s67, 11")
    A(f"s_lshl_b32 s68, s{sPart}, 8"); A("s_add_u32 s68, s68, s67")
    A(f"s_lshl_b32 s69, s{sHead}, 7"); A(f"s_add_u32 s69, s69, {DEN}")
    A(f"s_lshl_b32 s63, s{sPart}, 2"); A("s_add_u32 s63, s63, s69")
    A("v_and_b32 v6, 3, v0"); A(f"v_mov_b32 v7, {OOB:#x}")
    A("v_cmp_eq_u32 vcc, 0, v6")
    A(f"v_or_b32 v2, s{sC}, v0")
    A("s_nop 0")
    A(f"v_cndmask_b32 v{vSn}, v7, v{vL4}, vcc")
    A("v_cmp_eq_u32 vcc, 0, v2")
    A("v_and_b32 v6, 7, v1"); A("v_lshlrev_b32 v6, 1, v6")
    A(f"v_cndmask_b32 v{vSd}, v7, v{vZero}, vcc")
    A("v_xor_b32 v6, v6, v5")
    A("v_lshlrev_b32 v6, 4, v6"); A(f"v_lshl_add_u32 v{vKb}, v1, 9, v6")
    for jj in range(1, 4): A(f"v_xor_b32 v{vKb+jj}, {jj*64}, v{vKb}")
    A(f"v_lshlrev_b32 v11, 4, v5")
    A("v_lshrrev_b32 v6, 2, v0")
    A("v_and_b32 v7, 7, v6")
    A(f"s_lshl_b32 s18, s{sC}, 2")
    A("v_xor_b32 v7, s18, v7")
    A("v_lshlrev_b32 v7, 5, v7"); A("v_lshl_add_u32 v7, v6, 9, v7")
    A("v_and_b32 v6, 3, v0"); A(f"v_lshl_add_u32 v{vVb}, v6, 3, v7")
    for t in range(1, 4): A(f"v_xor_b32 v{vVb+t}, {t*32}, v{vVb}")
    for r in range(4):
        m = (1 << r) | (1 << (20 + r)) | (1 << (40 + r)) | (1 << (60 + r))
        A(f"s_mov_b32 s{sMask+2*r}, {m & 0xffffffff:#x}"); A(f"s_mov_b32 s{sMask+2*r+1}, {m >> 32:#x}")
    A(f"s_mov_b32 s{sL2E}, {f2u(math.log2(math.e)/4):#x}")
    for r in range(4): A(f"v_mov_b32 v{vOnes+r}, 0x3f803f80")
    A(f"v_mov_b32 v{vM8}, {f2u(-0.125):#x}"); A(f"v_mov_b32 v{vEps}, {f2u(1e-6):#x}")
    for r in range(20): A(f"v_mov_b32 v{vACC+r}, 0")
    A(f"s_and_b32 s18, s{sC}, 1"); A(f"s_lshr_b32 s52, s{sC}, 1")
    A(f"s_lshl_b32 s{sRing}, s52, 14"); A("s_lshl_b32 s53, s18, 13"); A(f"s_add_u32 s{sRing}, s{sRing}, s53")
    A("s_lshl_b32 s53, s52, 10"); A("s_lshl_b32 s18, s18, 3"); A("s_add_u32 s53, s53, s18"); A(f"s_add_u32 s53, s53, {PHI}")
    A(f"v_lshl_add_u32 v{vPa}, v0, 4, s53")
    for jj in range(4): A(f"v_add_u32 v{vAd+jj}, {OMG}, v{vKb+jj}")
    A(f"s_mov_b32 s{sCnt}, 32")
    A("s_waitcnt vmcnt(0)")
    A("s_barrier")
    for j in range(8):
        A(f"ds_read_b128 v[{vOM+j*4}:{vOM+j*4+3}], v{vAd+(j&3)} offset:{(j>>2)*256}")
    for jj in range(4): A(f"v_add_u32 v{vAd+jj}, s{sRing}, v{vKb+jj}")
    A("s_cmp_eq_u32 s52, 0")
    A("s_cbranch_scc1 L_k_nb")

    def round4(src, dst):
        A(f"v_cvt_pk_bf16_f32 v{vT}, v{src}, v{src+1}")
        A(f"v_cvt_pk_bf16_f32 v{vT+1}, v{src+2}, v{src+3}")
        A(f"v_lshlrev_b32 v{dst}, 16, v{vT}"); A(f"v_and_b32 v{dst+1}, 0xffff0000, v{vT}")
        A(f"v_lshlrev_b32 v{dst+2}, 16, v{vT+1}"); A(f"v_and_b32 v{dst+3}, 0xffff0000, v{vT+1}")
    def phi_tail():
        round4(vY, vY)
        for r in range(4): A(f"v_mul_f32 v{vY+r}, s{sL2E}, v{vY+r}")
        for r in range(4): A(f"v_exp_f32 v{vY+r}, v{vY+r}")
        A("s_nop 0")
        round4(vY, vY)
        for r in range(4): A(f"v_fmamk_f32 v{vY+r}, v{vY+r}, 0x3e800000, v{vEps}")
        A(f"v_cvt_pk_bf16_f32 v{vPH}, v{vY}, v{vY+1}")
        A(f"v_cvt_pk_bf16_f32 v{vPH+1}, v{vY+2}, v{vY+3}")

    Lb("L_k")
    A("s_barrier")
    Lb("L_k_nb")
    for j in range(8):
        A(f"ds_read_b128 v[{vK+j*4}:{vK+j*4+3}], v{vAd+(j&3)} offset:{(j>>2)*256}")
    A(f"s_add_u32 s{sRing}, s{sRing}, 32768"); A(f"s_and_b32 s{sRing}, s{sRing}, 0xffff")
    for jj in range(4): A(f"v_add_u32 v{vAd+jj}, s{sRing}, v{vKb+jj}")
    for j in range(8):
        kr = f"v[{vK+j*4}:{vK+j*4+3}]"
        A(f"s_waitcnt lgkmcnt({7-j})")
        c = "0" if j == 0 else f"v[{vG}:{vG+3}]"
        A(f"v_mfma_f32_16x16x32_bf16 v[{vG}:{vG+3}], {kr}, {kr}, {c}")
        c = "0" if j == 0 else f"v[{vKP}:{vKP+3}]"
        A(f"v_mfma_f32_16x16x32_bf16 v[{vKP}:{vKP+3}], {kr}, v[{vOM+j*4}:{vOM+j*4+3}], {c}")
    A("s_barrier")
    A("s_nop 7")
    A(f"v_cndmask_b32 v{vX}, 0, v{vG}, s[{sMask}:{sMask+1}]")
    for r in range(1, 4):
        A(f"v_cndmask_b32 v{vX}, v{vX}, v{vG+r}, s[{sMask+2*r}:{sMask+2*r+1}]")
    A(f"v_cvt_pk_bf16_f32 v{vX}, v{vX}, v{vX}")
    A(f"v_and_b32 v{vX}, 0xffff0000, v{vX}")
    round4(vKP, vKP)
    A("s_nop 1")
    A(f"v_mfma_f32_16x16x4_f32 v[{vY}:{vY+3}], v{vX}, v{vM8}, v[{vKP}:{vKP+3}]")
    A("s_nop 9")
    phi_tail()
    A(f"ds_write_b64 v{vPa}, v[{vPH}:{vPH+1}]")
    A(f"v_add_u32 v{vPa}, 2048, v{vPa}")
    A(f"s_sub_u32 s{sCnt}, s{sCnt}, 1")
    A(f"s_cmp_eq_u32 s{sCnt}, 28")
    A("s_cbranch_scc1 L_sp0")
    Lb("L_sp0_ret")
    A(f"s_cmp_lg_u32 s{sCnt}, 0")
    A("s_waitcnt lgkmcnt(0)")
    A("s_cbranch_scc1 L_k")

    A(f"v_lshlrev_b32 v{vPa}, 4, v0"); A(f"v_add_u32 v{vPa}, {PHI}, v{vPa}")
    A(f"ds_read_b128 v[{vA}:{vA+3}], v{vPa}")
    A(f"s_mov_b32 s{sRing}, 0")
    A(f"s_mov_b32 s{sCnt}, 64")
    for t in range(4): A(f"v_mov_b32 v{vAd+t}, v{vVb+t}")
    A("s_waitcnt vmcnt(0) lgkmcnt(0)")
    A("s_cmp_lg_u32 s52, 0")
    A("s_cbranch_scc1 L_v_nb")
    Lb("L_v")
    A("s_barrier")
    Lb("L_v_nb")
    for t in range(4):
        A(f"ds_read_b64_tr_b16 v[{vB+t*4}:{vB+t*4+1}], v{vAd+t}")
        A(f"ds_read_b64_tr_b16 v[{vB+t*4+2}:{vB+t*4+3}], v{vAd+t} offset:8192")
    A(f"v_mfma_f32_16x16x32_bf16 v[{vACC+16}:{vACC+19}], v[{vA}:{vA+3}], v[{vOnes}:{vOnes+3}], v[{vACC+16}:{vACC+19}]")
    A(f"s_add_u32 s{sRing}, s{sRing}, 16384"); A(f"s_and_b32 s{sRing}, s{sRing}, 0xffff")
    A(f"v_add_u32 v{vPa}, 1024, v{vPa}")
    A(f"s_sub_u32 s{sCnt}, s{sCnt}, 1")
    for t in range(4):
        A(f"s_waitcnt lgkmcnt({6-2*t})")
        a = vACC + t * 4
        A(f"v_mfma_f32_16x16x32_bf16 v[{a}:{a+3}], v[{vA}:{vA+3}], v[{vB+t*4}:{vB+t*4+3}], v[{a}:{a+3}]")
    A(f"s_cmp_eq_u32 s{sCnt}, 0")
    A("s_cbranch_scc1 L_epi")
    A(f"ds_read_b128 v[{vA}:{vA+3}], v{vPa}")
    for t in range(4): A(f"v_add_u32 v{vAd+t}, s{sRing}, v{vVb+t}")
    A(f"s_cmp_eq_u32 s{sCnt}, 60")
    A("s_cbranch_scc1 L_sp1")
    A(f"s_cmp_eq_u32 s{sCnt}, 16")
    A("s_cbranch_scc1 L_sp2")
    A(f"s_cmp_eq_u32 s{sCnt}, 8")
    A("s_cbranch_scc1 L_sp3")
    Lb("L_sp_ret")
    A("s_waitcnt lgkmcnt(0)")
    A("s_branch L_v")

    Lb("L_epi")
    if stamp: A("s_memrealtime s[72:73]")
    S = vK
    for t in (4, 0, 2, 1, 3):
        a = vACC + t * 4
        A(f"v_mul_f32 v{S+t}, v{vPQ}, v{a}")
        for r in range(1, 4): A(f"v_fmac_f32 v{S+t}, v{vPQ+r}, v{a+r}")
        if t == 4: A(f"v_mov_b32 v{S+5}, v{S+4}")
    A(f"v_permlane32_swap_b32 v{S+4}, v{S+5}")
    A(f"v_permlane32_swap_b32 v{S}, v{S+2}")
    A(f"v_permlane32_swap_b32 v{S+1}, v{S+3}")
    A(f"v_add_f32 v{S+4}, v{S+4}, v{S+5}")
    A(f"v_add_f32 v{S}, v{S}, v{S+2}")
    A(f"v_add_f32 v{S+1}, v{S+1}, v{S+3}")
    A(f"v_mov_b32 v{S+5}, v{S+4}")
    A("s_nop 0")
    A(f"v_permlane16_swap_b32 v{S}, v{S+1}")
    A(f"v_permlane16_swap_b32 v{S+4}, v{S+5}")
    A(f"s_cmp_eq_u32 s{sPart}, 0")
    A(f"v_add_f32 v{S+8}, v{S}, v{S+1}")
    A(f"v_add_f32 v{S+7}, v{S+4}, v{S+5}")
    A("s_cbranch_scc1 L_final")
    for i in range(1, 4):
        A(f"v_mov_b32_dpp v{S+8+i}, v{S+8} quad_perm:[{i},{i},{i},{i}] row_mask:0xf bank_mask:0xf")
    A(f"buffer_store_dword v{S+7}, v{vSd}, s[{sWS}:{sWS+3}], s63 offen {stf}")
    A(f"buffer_store_dwordx4 v[{S+8}:{S+11}], v{vSn}, s[{sWS}:{sWS+3}], s68 offen {stf}")
    if stamp:
        A("s_mov_b32 s76, 0"); A("s_mov_b32 s78, 0"); A("s_mov_b32 s80, 0")
        A("s_branch L_fin")
    else:
        A("s_endpgm")
    Lb("L_final")
    if stamp: A("s_memrealtime s[78:79]"); A("s_mov_b32 s76, 0")
    P = vOM; D = vOM + 8
    A(f"s_mov_b32 s53, {1<<20}")
    Lb("L_poll")
    for p in range(1, 8):
        A(f"buffer_load_dword v{P+p}, v{vL4}, s[{sWS}:{sWS+3}], s67 offen offset:{p*256} {ldf}")
    A(f"buffer_load_dwordx4 v[{D}:{D+3}], v{vZero}, s[{sWS}:{sWS+3}], s69 offen {ldf}")
    A(f"buffer_load_dwordx4 v[{D+4}:{D+7}], v{vZero}, s[{sWS}:{sWS+3}], s69 offen offset:16 {ldf}")
    A("s_sub_u32 s53, s53, 1")
    A("s_cbranch_scc1 L_end")
    if stamp: A("s_add_u32 s76, s76, 1")
    A("s_waitcnt vmcnt(0)")
    A(f"v_max3_u32 v{P}, v{P+1}, v{P+2}, v{P+3}")
    A(f"v_max3_u32 v{D}, v{D+1}, v{D+2}, v{D+3}")
    A(f"v_max3_u32 v{P}, v{P}, v{P+4}, v{P+5}")
    A(f"v_max3_u32 v{D}, v{D}, v{D+4}, v{D+5}")
    A(f"v_max3_u32 v{P}, v{P}, v{P+6}, v{P+7}")
    A(f"v_max3_u32 v{D}, v{D}, v{D+6}, v{D+7}")
    A(f"v_max_u32 v{P}, v{P}, v{D}")
    A(f"v_cmp_eq_u32 vcc, -1, v{P}")
    A(f"v_add_f32 v{S}, v{S+8}, v{P+1}"); A(f"v_add_f32 v{S+1}, v{S+7}, v{D+1}")
    A(f"v_add_f32 v{P+2}, v{P+2}, v{P+3}"); A(f"v_add_f32 v{D+2}, v{D+2}, v{D+3}")
    A(f"v_add_f32 v{P+4}, v{P+4}, v{P+5}"); A(f"v_add_f32 v{D+4}, v{D+4}, v{D+5}")
    if not nopoll:
        if slp:
            A("s_cbranch_vccz L_got")
            A(f"s_sleep {slp}")
            A("s_branch L_poll")
            Lb("L_got")
        else:
            A("s_cbranch_vccnz L_poll")
    if stamp: A("s_memrealtime s[80:81]")
    A(f"v_add_f32 v{P+6}, v{P+6}, v{P+7}"); A(f"v_add_f32 v{D+6}, v{D+6}, v{D+7}")
    A(f"v_add_f32 v{S}, v{S}, v{P+2}"); A(f"v_add_f32 v{S+1}, v{S+1}, v{D+2}")
    A(f"v_add_f32 v{P+4}, v{P+4}, v{P+6}"); A(f"v_add_f32 v{D+4}, v{D+4}, v{D+6}")
    A(f"v_add_f32 v{S}, v{S}, v{P+4}"); A(f"v_add_f32 v{S+1}, v{S+1}, v{D+4}")
    A(f"v_cvt_pk_bf16_f32 v{S+2}, v{S}, v{S+1}")
    A(f"v_and_b32 v{S+1}, 0xffff0000, v{S+2}")
    A(f"v_lshlrev_b32 v{S}, 16, v{S+2}")
    A(f"v_add_f32 v{S+1}, v{S+1}, v{vEps}")
    A(f"v_cvt_pk_bf16_f32 v{S+1}, v{S+1}, v{S+1}"); A(f"v_and_b32 v{S+1}, 0xffff0000, v{S+1}")
    A(f"v_rcp_f32 v{S+2}, v{S+1}")
    A(f"s_lshl_b32 s18, s{sC}, 7"); A(f"s_add_u32 s18, s18, s19")
    A(f"v_mul_f32 v{S+3}, v{S}, v{S+2}")
    A(f"v_fma_f32 v{S+4}, -v{S+1}, v{S+3}, v{S}")
    A(f"v_fma_f32 v{S+3}, v{S+4}, v{S+2}, v{S+3}")
    A(f"v_div_fixup_f32 v{S+3}, v{S+3}, v{S+1}, v{S}")
    A(f"v_cvt_pk_bf16_f32 v{S+3}, v{S+3}, v{S+3}")
    A("v_lshlrev_b32 v1, 1, v0")
    A(f"buffer_store_short v{S+3}, v1, s[{sOUT}:{sOUT+3}], s18 offen {outf}")
    if stamp:
        A("s_branch L_fin")
    else:
        A("s_endpgm")

    Lb("L_sp0")
    if vpre:
        A(f"buffer_load_dword v3, v{vZero}, s[{sV}:{sV+3}], s{sOff} offen nt")
    A(f"s_cmp_lg_u32 s{sPart}, 0")
    A("s_cbranch_scc1 L_sp0_ret")
    for r in range(4): A(f"v_mov_b32 v{vB+r}, -1")
    A("v_lshlrev_b32 v2, 4, v0")
    A(f"buffer_store_dwordx4 v[{vB}:{vB+3}], v2, s[{sWS}:{sWS+3}], s67 offen {stf}")
    A(f"buffer_store_dwordx4 v[{vB}:{vB+3}], v2, s[{sWS}:{sWS+3}], s67 offen offset:1024 {stf}")
    A(f"buffer_store_dwordx4 v[{vB}:{vB+3}], v{vSd}, s[{sWS}:{sWS+3}], s69 offen {stf}")
    A(f"buffer_store_dwordx4 v[{vB}:{vB+3}], v{vSd}, s[{sWS}:{sWS+3}], s69 offen offset:16 {stf}")
    A("s_branch L_sp0_ret")

    Lb("L_sp1")
    A(f"v_add_u32 v2, {QL}, v11")
    for j in range(8):
        A(f"ds_read_b128 v[{vK+j*4}:{vK+j*4+3}], v2 offset:{j*64}")
    A("v_mov_b32 v5, 1")
    A("s_waitcnt lgkmcnt(0)")
    for j in range(8):
        qr = f"v[{vK+j*4}:{vK+j*4+3}]"
        c = "0" if j == 0 else f"v[{vKP}:{vKP+3}]"
        A(f"v_mfma_f32_16x16x32_bf16 v[{vKP}:{vKP+3}], v[{vOM+j*4}:{vOM+j*4+3}], {qr}, {c}")
        c = "0" if j == 0 else f"v[{vG}:{vG+3}]"
        A(f"v_mfma_f32_16x16x32_bf16 v[{vG}:{vG+3}], {qr}, {qr}, {c}")
    A("s_nop 7")
    round4(vKP, vKP)
    A(f"v_cvt_pk_bf16_f32 v{vX}, v{vG}, v{vG}")
    A(f"v_and_b32 v{vX}, 0xffff0000, v{vX}")
    for r in range(4): A(f"v_fma_f32 v{vY+r}, v{vX}, v{vM8}, v{vKP+r}")
    phi_tail()
    A(f"v_lshlrev_b32 v{vPQ}, 16, v{vPH}"); A(f"v_and_b32 v{vPQ+1}, 0xffff0000, v{vPH}")
    A(f"v_lshlrev_b32 v{vPQ+2}, 16, v{vPH+1}"); A(f"v_and_b32 v{vPQ+3}, 0xffff0000, v{vPH+1}")
    A(f"s_cmp_lg_u32 s{sPart}, 0")
    A("s_cbranch_scc1 L_sp_ret")
    A(f"s_lshl_b32 s18, s{sHead}, 2")
    A(f"buffer_store_dword v5, v{vSd}, s[{sDBG}:{sDBG+3}], s18 offen {stf}")
    A("s_branch L_sp_ret")

    Lb("L_sp2")
    if warm:
        A(f"buffer_load_dword v6, v{vZero}, s[{sWS}:{sWS+3}], s67 offen")
        A(f"buffer_load_dword v7, v{vZero}, s[{sOUT}:{sOUT+3}], s19 offen")
    A(f"buffer_load_dword v{vFl}, v{vDo}, s[{sDBG}:{sDBG+3}], 0 offen")
    A("s_branch L_sp_ret")
    Lb("L_sp3")
    A(f"s_mov_b32 s53, {1<<20}")
    Lb("L_sp3p")
    A("s_waitcnt vmcnt(0)")
    A(f"v_readfirstlane_b32 s18, v{vFl}")
    A("s_nop 3")
    A("s_cmp_lg_u32 s18, 0")
    A("s_cbranch_scc1 L_sp_ret")
    A(f"buffer_load_dword v{vFl}, v{vDo}, s[{sDBG}:{sDBG+3}], 0 offen sc0 sc1")
    A("s_sub_u32 s53, s53, 1")
    A("s_cmp_lg_u32 s53, 0")
    A("s_cbranch_scc1 L_sp3p")
    A("s_branch L_sp_ret")

    if stamp:
        Lb("L_fin")
        A("s_waitcnt vmcnt(0)")
        A("s_memrealtime s[74:75]")
        A("s_getreg_b32 s82, hwreg(HW_REG_XCC_ID)")
        A("s_getreg_b32 s83, hwreg(HW_REG_HW_ID)")
        A("s_waitcnt lgkmcnt(0)")
        A(f"s_mul_i32 s19, s2, 5"); A("s_add_u32 s19, s19, s3"); A("s_lshl_b32 s19, s19, 5"); A("s_add_u32 s19, s19, 0x100000")
        A("v_mov_b32 v2, s19")
        A("v_mov_b32 v4, s70"); A("v_mov_b32 v5, s76"); A("v_mov_b32 v6, s72"); A("v_mov_b32 v7, s82")
        A("v_mov_b32 v8, s83"); A("v_mov_b32 v9, s78"); A("v_mov_b32 v10, s80"); A("v_mov_b32 v11, s74")
        A("s_mov_b64 exec, 1")
        A("global_store_dwordx4 v2, v[4:7], s[16:17]")
        A("global_store_dwordx4 v2, v[8:11], s[16:17] offset:16")
        A("s_waitcnt vmcnt(0)")
    if amp:
        for i in range(len(o)):
            if o[i].strip() == "s_endpgm": o[i] = "  s_branch L_amp"
        Lb("L_amp")
        A("s_waitcnt vmcnt(0)")
        A("s_memrealtime s[74:75]"); A("s_waitcnt lgkmcnt(0)")
        A("s_sub_u32 s74, s74, s70"); A(f"s_mul_i32 s76, s74, {amp}")
        Lb("L_amp2")
        A("s_memrealtime s[72:73]"); A("s_waitcnt lgkmcnt(0)")
        A("s_sub_u32 s72, s72, s70"); A(f"s_cmp_lt_u32 s72, s76"); A("s_cbranch_scc1 L_amp2")
    Lb("L_end")
    A("s_endpgm")
    o.append('.section .rodata,"a"'); o.append(".p2align 6"); o.append(f".amdhsa_kernel {KN}")
    A(f".amdhsa_next_free_vgpr {nv}"); A(".amdhsa_next_free_sgpr 96"); A(f".amdhsa_accum_offset {nv}")
    A(".amdhsa_group_segment_fixed_size 0"); A(".amdhsa_kernarg_size 56"); A(".amdhsa_user_sgpr_count 2")
    A(".amdhsa_user_sgpr_kernarg_segment_ptr 1"); A(".amdhsa_system_sgpr_workgroup_id_x 1")
    A(".amdhsa_float_denorm_mode_32 3")
    o.append(".end_amdhsa_kernel")
    return "\n".join(o) + "\n"

if __name__ == "__main__":
    out = sys.argv[1]
    kw = {}
    for kv in sys.argv[2:]:
        k, v = kv.split("=")
        kw[k] = int(v) if v.lstrip("-").isdigit() else v
    open(out, "w").write(gen(**kw))
```

```python
import sys, struct, math
KN = "standalone__linear_kernel_rfa__decode_kernel"
def f2u(x): return struct.unpack("<I", struct.pack("<f", x))[0]

HEADER = """; Kernarg layout for this problem (56 bytes, ptrs only, base s[0:1]):
"""

def gen(W=20, WB=28, WT=16, ck="32", CG=3, SB="30", ST="20", tB="0,0,0,0,3,9,17,28", tT="28,17,9,3,0,0,0,0",
        fk=0, TK=6, TG=3, F1=48, stamp=0, outf="", prio=3, stf="sc1", ldf="sc1", chkf="sc1+nt", flf="", vpre=0, amp=0, dyn=1):
    NWG = 256
    fix = lambda x: x.replace("none", "").replace("+", " ")
    outf, stf, ldf, chkf, flf = fix(outf), fix(stf), fix(ldf), fix(chkf), fix(flf)
    cks = [int(x) for x in str(ck).split(",") if x not in ("", "none")]
    SBs = [int(x) for x in str(SB).split(",")]; STs = [int(x) for x in str(ST).split(",")]
    while len(SBs) < len(cks): SBs.append(SBs[-1])
    while len(STs) < len(cks): STs.append(STs[-1])
    o = []
    A = lambda s: o.append("  " + s)
    Lb = lambda s: o.append(s + ":")
    PHI = 65536
    OMG = 131072
    QL = OMG + 8192
    MB = QL + 512
    lds = QL + 1024
    o.append(HEADER.rstrip("\n"))
    o.append(f"; @launch grid=({NWG},1,1) block=(320,1,1) lds={lds}")
    o.append('.amdgcn_target "amdgcn-amd-amdhsa--gfx950"')
    o.append(".text"); o.append(f".globl {KN}"); o.append(".p2align 8"); o.append(f".type {KN},@function"); Lb(KN)

    sK, sV, sOM, sQ, sOUT, sWS, sDBG = 20, 24, 28, 32, 36, 40, 44
    sOff, sRing, sCnt = 48, 49, 50
    sMask, sL2E = 54, 62
    sHead, sPart, sC = 64, 65, 66
    sEv, sFin = 84, 85
    sSl = 86
    sT = 51

    A(f"s_load_dwordx8 s[4:11], s[0:1], 0")
    A(f"s_load_dwordx4 s[12:15], s[0:1], 32")
    A(f"s_load_dwordx2 s[16:17], s[0:1], 48")
    if stamp or amp: A("s_memrealtime s[70:71]")
    A("v_lshrrev_b32 v1, 6, v0")
    A(f"s_lshr_b32 s18, s2, 8")
    A("v_readfirstlane_b32 s3, v1")
    A("s_cbranch_scc1 L_end")
    A("v_and_b32 v0, 63, v0")
    A("v_and_b32 v1, 32, v0")
    A("v_lshlrev_b32 v4, 4, v0")
    A("v_xor_b32 v4, v4, v1")
    A("v_xor_b32 v5, 64, v4")
    A("v_xor_b32 v6, 0x80, v4")
    A("v_xor_b32 v7, 64, v6")
    A(f"s_lshl_b32 s{sOff}, s2, 20")
    A("s_cmp_lg_u32 s3, 0")
    A("s_cbranch_scc1 L_cons")

    sJ, sBE, sTE, sR = 50, 51, 52, 53
    ev = [(256, "v"), (512, "end")]
    for i, c in enumerate(cks):
        ev.append((4 * (131 - (c - CG)), f"b{i}"))
    ev.sort()
    assert len(set(j for j, _ in ev)) == len(ev) and all(j % 4 == 0 and j >= 12 for j, _ in ev) and ev[-1][1] == "end"
    if prio: A(f"s_setprio {prio}")
    A(f"s_mov_b32 s{sK+2}, {1<<28}"); A(f"s_mov_b32 s{sK+3}, 0x20000")
    A(f"s_mov_b32 s{sJ}, 0")
    if cks: A(f"s_mov_b32 s{sBE}, 0"); A(f"s_mov_b32 s{sTE}, 0")
    A(f"s_movk_i32 s{sEv}, {ev[0][0]}")
    A(f"s_mov_b32 m0, 0")
    if stamp: A("s_mov_b32 s78, 0"); A("s_mov_b32 s80, 0")
    A("s_waitcnt lgkmcnt(0)")
    A(f"s_mov_b32 s{sK}, s6"); A(f"s_mov_b32 s{sK+1}, s7")
    Lb("L_ld")
    if cks:
        A(f"s_cmp_lt_u32 s{sJ}, s{sTE}")
        A("s_cbranch_scc0 L_nt")
        A(f"s_waitcnt vmcnt({WT-4})")
        Lb("L_nt")
        A(f"s_cmp_lt_u32 s{sJ}, s{sBE}")
        A("s_cbranch_scc1 L_w")
    A(f"s_waitcnt vmcnt({W-4})")
    if cks:
        Lb("L_w")
        A(f"s_waitcnt vmcnt({WB-4})")
    for n in range(4):
        A(f"buffer_load_dwordx4 v{4+n}, s[{sK}:{sK+3}], s{sOff} offen offset:{n*1024} nt lds")
    A(f"s_add_u32 s{sJ}, s{sJ}, 1")
    A(f"s_addk_i32 s{sOff}, 0x1000")
    A(f"s_lshl_b32 s18, s{sJ}, 12")
    A(f"s_and_b32 m0, s18, 0xffff")
    A(f"s_and_b32 s18, s{sJ}, 3")
    A("s_cbranch_scc1 L_ld")
    A(f"s_cmp_lt_u32 s{sJ}, 12")
    A("s_cbranch_scc1 L_ld")
    A("s_barrier")
    A(f"s_cmp_lg_u32 s{sJ}, s{sEv}")
    A("s_cbranch_scc1 L_ld")
    for i, (j, nm) in enumerate(ev):
        if nm == "end": break
        A(f"s_cmpk_lg_u32 s{sJ}, {j}")
        A(f"s_cbranch_scc1 L_ev{i+1}")
        A(f"s_movk_i32 s{sEv}, {ev[i+1][0]}")
        if nm == "v":
            A(f"s_mov_b32 s{sK}, s8"); A(f"s_mov_b32 s{sK+1}, s9")
            A(f"s_lshl_b32 s{sOff}, s2, 20")
            A(f"v_mov_b32 v9, {MB}")
            if stamp: A("s_memrealtime s[76:77]")
        else:
            A(f"ds_read_b32 v8, v9 offset:4")
            A("s_waitcnt lgkmcnt(0)")
            A(f"v_readfirstlane_b32 s{sR}, v8")
            if stamp: A(f"s_lshr_b32 s78, s{sR}, 16"); A("s_lshl_b32 s78, s78, 5")
            A(f"s_and_b32 s{sBE}, s{sR}, 0xff"); A(f"s_add_u32 s{sBE}, s{sBE}, s{sJ}")
            A(f"s_bfe_u32 s{sTE}, s{sR}, 0x80008"); A(f"s_add_u32 s{sTE}, s{sTE}, s{sJ}")
        A("s_branch L_ld")
        Lb(f"L_ev{i+1}")
    A("s_waitcnt vmcnt(16)")
    A("s_barrier")
    A("s_waitcnt vmcnt(0)")
    A("s_barrier")
    if stamp:
        A("s_memrealtime s[72:73]")
        A("s_branch L_fin")
    else:
        A("s_endpgm")

    vM8, vEps, vOnes = 8, 9, 12
    vKb = 16
    vVb = 20
    vAd = 24
    vPa = 28
    vSn = 29
    vFl = 30
    vDp = 31
    vKP = 32; vG = 36; vX = 40; vT = 42; vY = 44; vPH = 48; vPQ = 52
    vSd = 56
    vL4 = 57
    vZero = 58
    vMB = 59
    vTg = 60
    vOM = 64; vK = 96; vB = 128; vA = 144; vACC = 148
    nv = 168
    sOwn = 94
    GRP = 2048
    CTR = 128 * GRP
    HS = 8448
    WSB = CTR + 32 * HS
    OOB = 0x7ff00000
    o.append(".p2align 6")
    Lb("L_cons")
    A(f"s_sub_u32 s{sC}, s3, 1")
    A(f"s_lshr_b32 s{sHead}, s2, 3")
    A(f"s_sub_u32 s{sPart}, s2, s{sHead}"); A(f"s_and_b32 s{sPart}, s{sPart}, 7")
    A(f"s_mov_b32 s{sOM+2}, 8192"); A(f"s_mov_b32 s{sOM+3}, 0x20000")
    A(f"s_mov_b32 s{sQ+2}, 16384"); A(f"s_mov_b32 s{sQ+3}, 0x20000")
    A(f"s_mov_b32 s{sWS+2}, {WSB}"); A(f"s_mov_b32 s{sWS+3}, 0x20000")
    A(f"s_mov_b32 s{sOUT+2}, 16384"); A(f"s_mov_b32 s{sOUT+3}, 0x20000")
    A(f"s_mov_b32 s{sDBG+2}, 256"); A(f"s_mov_b32 s{sDBG+3}, 0x20000")
    A(f"s_lshl_b32 s19, s{sHead}, 9")
    A(f"s_mov_b32 m0, {OMG}")
    A(f"s_mov_b32 s18, 4096")
    A(f"s_cmp_lg_u32 s{sC}, 0")
    A("s_waitcnt lgkmcnt(0)")
    A(f"s_mov_b32 s{sOM}, s10"); A(f"s_mov_b32 s{sOM+1}, s11")
    A(f"s_mov_b32 s{sQ}, s4"); A(f"s_mov_b32 s{sQ+1}, s5")
    A("s_cbranch_scc1 L_noom")
    for n in range(4):
        A(f"buffer_load_dwordx4 v{4+n}, s[{sOM}:{sOM+3}], 0 offen offset:{n*1024} lds")
    A(f"s_mov_b32 m0, {OMG+4096}"); A("s_nop 0")
    for n in range(4):
        A(f"buffer_load_dwordx4 v{4+n}, s[{sOM}:{sOM+3}], s18 offen offset:{n*1024} lds")
    A(f"s_mov_b32 m0, {QL}"); A("s_nop 0")
    A(f"buffer_load_dwordx4 v4, s[{sQ}:{sQ+3}], s19 offen lds")
    Lb("L_noom")
    A(f"s_mov_b32 s{sWS}, s16"); A(f"s_mov_b32 s{sWS+1}, s17")
    A(f"s_mov_b32 s{sOUT}, s12"); A(f"s_mov_b32 s{sOUT+1}, s13")
    A(f"s_mov_b32 s{sDBG}, s14"); A(f"s_mov_b32 s{sDBG+1}, s15")
    if vpre:
        A(f"s_mov_b32 s{sV}, s8"); A(f"s_mov_b32 s{sV+1}, s9"); A(f"s_mov_b32 s{sV+2}, {1<<28}"); A(f"s_mov_b32 s{sV+3}, 0x20000")
    A("v_lshrrev_b32 v5, 4, v0")
    A("v_and_b32 v1, 15, v0")
    A(f"s_lshl_b32 s93, s{sHead}, 2")
    A(f"v_lshlrev_b32 v{vL4}, 2, v0"); A(f"v_mov_b32 v{vZero}, 0"); A(f"v_mov_b32 v{vMB}, {MB}")
    A(f"s_add_u32 s67, s93, s{sC}"); A("s_lshl_b32 s67, s67, 11")
    A(f"s_lshl_b32 s68, s{sPart}, 8"); A("s_add_u32 s68, s68, s67")
    A(f"s_mul_i32 s69, s{sHead}, {HS}"); A(f"s_add_u32 s69, s69, {CTR}")
    A(f"s_lshl_b32 s63, s{sPart}, 3"); A("s_add_u32 s63, s63, s69")
    for i in range(1, 8):
        A(f"s_xor_b32 s{sSl+i-1}, s68, {i << 8:#x}")
    A("v_and_b32 v6, 3, v0"); A(f"v_mov_b32 v7, {OOB:#x}")
    A("v_cmp_eq_u32 vcc, 0, v6")
    A(f"v_or_b32 v2, s{sC}, v0")
    A("v_and_b32 v3, 7, v0")
    A(f"v_cndmask_b32 v{vSn}, v7, v{vL4}, vcc")
    A("v_cmp_eq_u32 vcc, 0, v2")
    A(f"v_cmp_eq_u32 s[{sOwn}:{sOwn+1}], s{sPart}, v3")
    A(f"v_lshlrev_b32 v{vDp}, 3, v3")
    A(f"v_mul_u32_u24 v{vTg}, 6, v6")
    A("v_and_b32 v6, 7, v1"); A("v_lshlrev_b32 v6, 1, v6")
    A(f"v_cndmask_b32 v{vSd}, v7, v{vZero}, vcc")
    A("v_xor_b32 v6, v6, v5")
    A("v_lshlrev_b32 v6, 4, v6"); A(f"v_lshl_add_u32 v{vKb}, v1, 9, v6")
    for jj in range(1, 4): A(f"v_xor_b32 v{vKb+jj}, {jj*64}, v{vKb}")
    A(f"v_lshlrev_b32 v11, 4, v5")
    A("v_lshrrev_b32 v6, 2, v0")
    A("v_and_b32 v7, 7, v6")
    A(f"s_lshl_b32 s18, s{sC}, 2")
    A("v_xor_b32 v7, s18, v7")
    A("v_lshlrev_b32 v7, 5, v7"); A("v_lshl_add_u32 v7, v6, 9, v7")
    A("v_and_b32 v6, 3, v0"); A(f"v_lshl_add_u32 v{vVb}, v6, 3, v7")
    for t in range(1, 4): A(f"v_xor_b32 v{vVb+t}, {t*32}, v{vVb}")
    for r in range(4):
        m = (1 << r) | (1 << (20 + r)) | (1 << (40 + r)) | (1 << (60 + r))
        A(f"s_mov_b32 s{sMask+2*r}, {m & 0xffffffff:#x}"); A(f"s_mov_b32 s{sMask+2*r+1}, {m >> 32:#x}")
    A(f"s_mov_b32 s{sL2E}, {f2u(math.log2(math.e)/4):#x}")
    for r in range(4): A(f"v_mov_b32 v{vOnes+r}, 0x3f803f80")
    A(f"v_mov_b32 v{vM8}, {f2u(-0.125):#x}"); A(f"v_mov_b32 v{vEps}, {f2u(1e-6):#x}")
    for r in range(20): A(f"v_mov_b32 v{vACC+r}, 0")
    A(f"s_and_b32 s18, s{sC}, 1"); A(f"s_lshr_b32 s52, s{sC}, 1")
    A(f"s_lshl_b32 s{sRing}, s52, 14"); A("s_lshl_b32 s53, s18, 13"); A(f"s_add_u32 s{sRing}, s{sRing}, s53")
    A("s_lshl_b32 s53, s52, 10"); A("s_lshl_b32 s18, s18, 3"); A("s_add_u32 s53, s53, s18"); A(f"s_add_u32 s53, s53, {PHI}")
    A(f"v_lshl_add_u32 v{vPa}, v0, 4, s53")
    for jj in range(4): A(f"v_add_u32 v{vAd+jj}, {OMG}, v{vKb+jj}")
    A(f"s_mov_b32 s{sCnt}, 32")
    A(f"s_mov_b32 s{sEv}, 28")
    A(f"s_mov_b32 s{sT}, 0")
    A("s_waitcnt vmcnt(0)")
    A("s_barrier")
    for j in range(8):
        A(f"ds_read_b128 v[{vOM+j*4}:{vOM+j*4+3}], v{vAd+(j&3)} offset:{(j>>2)*256}")
    for jj in range(4): A(f"v_add_u32 v{vAd+jj}, s{sRing}, v{vKb+jj}")
    A("s_cmp_eq_u32 s52, 0")
    A("s_cbranch_scc1 L_k_nb")

    def round4(src, dst):
        A(f"v_cvt_pk_bf16_f32 v{vT}, v{src}, v{src+1}")
        A(f"v_cvt_pk_bf16_f32 v{vT+1}, v{src+2}, v{src+3}")
        A(f"v_lshlrev_b32 v{dst}, 16, v{vT}"); A(f"v_and_b32 v{dst+1}, 0xffff0000, v{vT}")
        A(f"v_lshlrev_b32 v{dst+2}, 16, v{vT+1}"); A(f"v_and_b32 v{dst+3}, 0xffff0000, v{vT+1}")
    def phi_tail():
        round4(vY, vY)
        for r in range(4): A(f"v_mul_f32 v{vY+r}, s{sL2E}, v{vY+r}")
        for r in range(4): A(f"v_exp_f32 v{vY+r}, v{vY+r}")
        A("s_nop 0")
        round4(vY, vY)
        for r in range(4): A(f"v_fmamk_f32 v{vY+r}, v{vY+r}, 0x3e800000, v{vEps}")
        A(f"v_cvt_pk_bf16_f32 v{vPH}, v{vY}, v{vY+1}")
        A(f"v_cvt_pk_bf16_f32 v{vPH+1}, v{vY+2}, v{vY+3}")

    Lb("L_k")
    A("s_barrier")
    Lb("L_k_nb")
    for j in range(8):
        A(f"ds_read_b128 v[{vK+j*4}:{vK+j*4+3}], v{vAd+(j&3)} offset:{(j>>2)*256}")
    A(f"s_add_u32 s{sRing}, s{sRing}, 32768"); A(f"s_and_b32 s{sRing}, s{sRing}, 0xffff")
    for jj in range(4): A(f"v_add_u32 v{vAd+jj}, s{sRing}, v{vKb+jj}")
    for j in range(8):
        kr = f"v[{vK+j*4}:{vK+j*4+3}]"
        A(f"s_waitcnt lgkmcnt({7-j})")
        c = "0" if j == 0 else f"v[{vG}:{vG+3}]"
        A(f"v_mfma_f32_16x16x32_bf16 v[{vG}:{vG+3}], {kr}, {kr}, {c}")
        c = "0" if j == 0 else f"v[{vKP}:{vKP+3}]"
        A(f"v_mfma_f32_16x16x32_bf16 v[{vKP}:{vKP+3}], {kr}, v[{vOM+j*4}:{vOM+j*4+3}], {c}")
    A("s_barrier")
    A("s_nop 7")
    A(f"v_cndmask_b32 v{vX}, 0, v{vG}, s[{sMask}:{sMask+1}]")
    for r in range(1, 4):
        A(f"v_cndmask_b32 v{vX}, v{vX}, v{vG+r}, s[{sMask+2*r}:{sMask+2*r+1}]")
    A(f"v_cvt_pk_bf16_f32 v{vX}, v{vX}, v{vX}")
    A(f"v_and_b32 v{vX}, 0xffff0000, v{vX}")
    round4(vKP, vKP)
    A("s_nop 1")
    A(f"v_mfma_f32_16x16x4_f32 v[{vY}:{vY+3}], v{vX}, v{vM8}, v[{vKP}:{vKP+3}]")
    A("s_nop 9")
    phi_tail()
    A(f"ds_write_b64 v{vPa}, v[{vPH}:{vPH+1}]")
    A(f"v_add_u32 v{vPa}, 2048, v{vPa}")
    A(f"s_sub_u32 s{sCnt}, s{sCnt}, 1")
    A(f"s_cmp_eq_u32 s{sCnt}, s{sEv}")
    A("s_cbranch_scc1 L_ke")
    Lb("L_ke_ret")
    A(f"s_cmp_lg_u32 s{sCnt}, 0")
    A("s_waitcnt lgkmcnt(0)")
    A("s_cbranch_scc1 L_k")

    A(f"v_lshlrev_b32 v{vPa}, 4, v0"); A(f"v_add_u32 v{vPa}, {PHI}, v{vPa}")
    A(f"ds_read_b128 v[{vA}:{vA+3}], v{vPa}")
    A(f"s_mov_b32 s{sRing}, 0")
    A(f"s_mov_b32 s{sCnt}, 64")
    A(f"s_mov_b32 s{sEv}, 60")
    for t in range(4): A(f"v_mov_b32 v{vAd+t}, v{vVb+t}")
    A("s_waitcnt vmcnt(0) lgkmcnt(0)")
    A("s_cmp_lg_u32 s52, 0")
    A("s_cbranch_scc1 L_v_nb")
    Lb("L_v")
    A("s_barrier")
    Lb("L_v_nb")
    for t in range(4):
        A(f"ds_read_b64_tr_b16 v[{vB+t*4}:{vB+t*4+1}], v{vAd+t}")
        A(f"ds_read_b64_tr_b16 v[{vB+t*4+2}:{vB+t*4+3}], v{vAd+t} offset:8192")
    A(f"v_mfma_f32_16x16x32_bf16 v[{vACC+16}:{vACC+19}], v[{vA}:{vA+3}], v[{vOnes}:{vOnes+3}], v[{vACC+16}:{vACC+19}]")
    A(f"s_add_u32 s{sRing}, s{sRing}, 16384"); A(f"s_and_b32 s{sRing}, s{sRing}, 0xffff")
    A(f"v_add_u32 v{vPa}, 1024, v{vPa}")
    A(f"s_sub_u32 s{sCnt}, s{sCnt}, 1")
    for t in range(4):
        A(f"s_waitcnt lgkmcnt({6-2*t})")
        a = vACC + t * 4
        A(f"v_mfma_f32_16x16x32_bf16 v[{a}:{a+3}], v[{vA}:{vA+3}], v[{vB+t*4}:{vB+t*4+3}], v[{a}:{a+3}]")
    A(f"s_cmp_eq_u32 s{sCnt}, 0")
    A("s_cbranch_scc1 L_epi")
    A(f"ds_read_b128 v[{vA}:{vA+3}], v{vPa}")
    for t in range(4): A(f"v_add_u32 v{vAd+t}, s{sRing}, v{vVb+t}")
    A(f"s_cmp_eq_u32 s{sCnt}, s{sEv}")
    A("s_cbranch_scc1 L_ve")
    Lb("L_ve_ret")
    A("s_waitcnt lgkmcnt(0)")
    A("s_branch L_v")

    P = vOM; D = vOM + 8
    def polls():
        for i in range(1, 8):
            A(f"buffer_load_dword v{P+i}, v{vL4}, s[{sWS}:{sWS+3}], s{sSl+i-1} offen {ldf}")
        A(f"buffer_load_dwordx2 v[{D}:{D+1}], v{vDp}, s[{sWS}:{sWS+3}], s69 offen offset:256 {ldf}")
    S = vK
    Lb("L_epi")
    if stamp: A("s_memrealtime s[72:73]")
    for t in (4, 0, 2, 1, 3):
        a = vACC + t * 4
        A(f"v_mul_f32 v{S+t}, v{vPQ}, v{a}")
        for r in range(1, 4): A(f"v_fmac_f32 v{S+t}, v{vPQ+r}, v{a+r}")
        if t == 4: A(f"v_mov_b32 v{S+5}, v{S+4}")
    A(f"v_permlane32_swap_b32 v{S+4}, v{S+5}")
    A(f"v_permlane32_swap_b32 v{S}, v{S+2}")
    A(f"v_permlane32_swap_b32 v{S+1}, v{S+3}")
    A(f"v_add_f32 v{S+4}, v{S+4}, v{S+5}")
    A(f"v_add_f32 v{S}, v{S}, v{S+2}")
    A(f"v_add_f32 v{S+1}, v{S+1}, v{S+3}")
    A(f"v_mov_b32 v{S+5}, v{S+4}")
    A("s_nop 0")
    A(f"v_permlane16_swap_b32 v{S}, v{S+1}")
    A(f"v_permlane16_swap_b32 v{S+4}, v{S+5}")
    A(f"s_cmp_lg_u32 s{sFin}, 0")
    A(f"v_add_f32 v{S+8}, v{S}, v{S+1}")
    A(f"v_add_f32 v{S+6}, v{S+4}, v{S+5}")
    A("s_cbranch_scc1 L_final")
    A(f"v_bfi_b32 v{S+8}, 63, v{vTg}, v{S+8}")
    A(f"buffer_store_dwordx2 v[{S+6}:{S+7}], v{vSd}, s[{sWS}:{sWS+3}], s63 offen offset:256 {stf}")
    A("s_nop 0")
    for i in range(1, 4):
        A(f"v_mov_b32_dpp v{S+8+i}, v{S+8} quad_perm:[{i},{i},{i},{i}] row_mask:0xf bank_mask:0xf")
    A(f"buffer_store_dwordx4 v[{S+8}:{S+11}], v{vSn}, s[{sWS}:{sWS+3}], s68 offen {stf}")
    if stamp:
        A("s_mov_b32 s76, 0"); A("s_mov_b32 s78, 0"); A("s_mov_b32 s80, 0")
        A("s_branch L_fin")
    else:
        A("s_endpgm")
    Lb("L_poll")
    polls()
    A("s_sub_u32 s53, s53, 1")
    A("s_cbranch_scc1 L_end")
    if stamp: A("s_add_u32 s76, s76, 1"); A("s_branch L_chk")
    Lb("L_final")
    if stamp:
        A("s_memrealtime s[78:79]"); A("s_mov_b32 s76, 1")
    Lb("L_chk")
    A("s_waitcnt vmcnt(0)")
    A(f"v_cndmask_b32 v{D}, v{D}, v{S+6}, s[{sOwn}:{sOwn+1}]")
    A(f"v_cndmask_b32 v{D+1}, v{D+1}, v{S+7}, s[{sOwn}:{sOwn+1}]")
    A(f"v_xor_b32 v{P}, v{P+1}, v{vTg}")
    A(f"v_add_f32_dpp v{D+2}, v{D}, v{D} quad_perm:[1,0,3,2] row_mask:0xf bank_mask:0xf")
    A(f"v_xor_b32 v{D+3}, v{P+2}, v{vTg}")
    A(f"v_bitop3_b32 v{P}, v{P+3}, v{P}, v{vTg} bitop3:0xde")
    A(f"v_add_f32_dpp v{D+2}, v{D+2}, v{D+2} quad_perm:[2,3,0,1] row_mask:0xf bank_mask:0xf")
    A(f"v_bitop3_b32 v{D+3}, v{P+4}, v{D+3}, v{vTg} bitop3:0xde")
    A(f"v_bitop3_b32 v{P}, v{P+5}, v{P}, v{vTg} bitop3:0xde")
    A(f"v_add_f32_dpp v{S+1}, v{D+2}, v{D+2} row_half_mirror row_mask:0xf bank_mask:0xf")
    A(f"v_bitop3_b32 v{D+3}, v{P+6}, v{D+3}, v{vTg} bitop3:0xde")
    A(f"v_bitop3_b32 v{P}, v{P+7}, v{P}, v{vTg} bitop3:0xde")
    A(f"v_xor_b32 v{D+1}, v{D+1}, v{S+7}")
    A(f"v_or_b32 v{P}, v{P}, v{D+3}")
    A(f"v_cvt_pk_bf16_f32 v{S+1}, v{S+1}, v{S+1}")
    A(f"v_and_or_b32 v{P}, v{P}, 63, v{D+1}")
    A(f"v_add_f32 v{S}, v{S+8}, v{P+1}")
    A(f"v_cmp_ne_u32 vcc, 0, v{P}")
    A(f"v_and_b32 v{S+1}, 0xffff0000, v{S+1}")
    A(f"v_add_f32 v{P+2}, v{P+2}, v{P+3}")
    A(f"v_add_f32 v{P+4}, v{P+4}, v{P+5}")
    A(f"v_add_f32 v{S+1}, v{S+1}, v{vEps}")
    A("s_cbranch_vccnz L_poll")
    if stamp: A("s_memrealtime s[80:81]")
    A(f"v_add_f32 v{P+6}, v{P+6}, v{P+7}")
    A(f"v_cvt_pk_bf16_f32 v{S+1}, v{S+1}, v{S+1}")
    A(f"v_add_f32 v{S}, v{S}, v{P+2}")
    A(f"v_and_b32 v{S+1}, 0xffff0000, v{S+1}")
    A(f"v_add_f32 v{P+4}, v{P+4}, v{P+6}")
    A(f"v_rcp_f32 v{S+2}, v{S+1}")
    A(f"v_add_f32 v{S}, v{S}, v{P+4}")
    A(f"v_cvt_pk_bf16_f32 v{S}, v{S}, v{S}")
    A(f"v_and_b32 v{S}, 0xffff0000, v{S}")
    A(f"v_mul_f32 v{S+3}, v{S}, v{S+2}")
    A(f"v_fma_f32 v{S+4}, -v{S+1}, v{S+3}, v{S}")
    A(f"v_fma_f32 v{S+3}, v{S+4}, v{S+2}, v{S+3}")
    A(f"v_div_fixup_f32 v{S+3}, v{S+3}, v{S+1}, v{S}")
    A(f"v_cvt_pk_bf16_f32 v{S+3}, v{S+3}, v{S+3}")
    A(f"buffer_store_short v{S+3}, v1, s[{sOUT}:{sOUT+3}], s19 offen {outf}")
    if stamp:
        A("s_branch L_fin")
    else:
        A("s_endpgm")

    Lb("L_ke")
    A(f"s_cmp_eq_u32 s{sCnt}, 24")
    A("s_cbranch_scc1 L_ke2")
    if vpre:
        A(f"buffer_load_dword v3, v{vSd}, s[{sV}:{sV+3}], s{sOff} offen nt")
    A(f"s_cmp_lg_u32 s{sPart}, 0")
    A("s_cbranch_scc1 L_ke_ret")
    A(f"s_mov_b32 s{sEv}, 24")
    A("v_lshlrev_b32 v2, 4, v0")
    A(f"buffer_load_dword v{vB+10}, v{vZero}, s[{sWS}:{sWS+3}], s69 offen {chkf}")
    A(f"buffer_load_dwordx2 v[{vB+8}:{vB+9}], v{vDp}, s[{sWS}:{sWS+3}], s69 offen offset:256 {chkf}")
    A(f"buffer_load_dwordx4 v[{vB}:{vB+3}], v2, s[{sWS}:{sWS+3}], s67 offen {chkf}")
    A(f"buffer_load_dwordx4 v[{vB+4}:{vB+7}], v2, s[{sWS}:{sWS+3}], s67 offen offset:1024 {chkf}")
    A("s_branch L_ke_ret")
    Lb("L_ke2")
    A("s_waitcnt vmcnt(0)")
    A(f"v_readfirstlane_b32 s{sT}, v{vB+10}")
    A(f"s_add_u32 s{sT}, s{sT}, 1"); A(f"s_and_b32 s{sT}, s{sT}, 0xffffff"); A(f"s_bitset1_b32 s{sT}, 31")
    for h in range(2):
        g = vB + 4 * h
        A(f"v_xor_b32 v3, s{sT}, v{g}")
        for j in range(1, 4):
            A(f"s_lshr_b32 s18, s{sT}, {6*j}")
            A(f"v_bitop3_b32 v3, v{g+j}, v3, s18 bitop3:0xde")
        A("v_and_b32 v3, 63, v3")
        A("v_cmp_eq_u32 vcc, 0, v3")
        A(f"v_xor_b32 v{g}, 1, v{g}")
        A(f"s_cbranch_vccz L_kc{h}")
        A("s_mov_b64 exec, vcc")
        A(f"buffer_store_dword v{g}, v2, s[{sWS}:{sWS+3}], s67 offen offset:{1024*h} {stf}")
        A("s_mov_b64 exec, -1")
        Lb(f"L_kc{h}")
    A(f"v_cmp_eq_u32 vcc, s{sT}, v{vB+9}")
    A(f"s_cbranch_vccz L_ke_ret")
    A("s_mov_b64 exec, vcc")
    A(f"buffer_store_dword v{vZero}, v{vDp}, s[{sWS}:{sWS+3}], s69 offen offset:260 {stf}")
    A("s_mov_b64 exec, -1")
    A("s_branch L_ke_ret")

    T1, T2, T3 = TK, TK - TG, TK - TG - 1
    assert T3 >= 2
    evs0 = [(60, "q"), (F1, "f")]
    for k, c in enumerate(cks): evs0 += [(c, f"a{k}"), (c - CG, f"b{k}")]
    if not fk: evs0 += [(T1, "t1"), (T2, "t2")]
    evs0 += [(T3, "t3"), (1, "t4")]
    assert all(evs0[i][0] > evs0[i+1][0] for i in range(len(evs0) - 1))
    nxt = {nm: evs0[i+1][0] for i, (_, nm) in enumerate(evs0[:-1])}
    first_at = evs0[2][1]
    Lb("L_ve")
    for n, nm in reversed(evs0[1:]):
        A(f"s_cmp_eq_u32 s{sCnt}, {n}")
        A(f"s_cbranch_scc1 L_ve_{nm}")
    A(f"v_add_u32 v2, {QL}, v11")
    for j in range(8):
        A(f"ds_read_b128 v[{vK+j*4}:{vK+j*4+3}], v2 offset:{j*64}")
    A(f"v_mov_b32 v5, s{sT}")
    A(f"s_cmp_eq_u32 s{sC}, 0")
    A(f"s_cselect_b32 s{sEv}, {nxt['q']}, {T3}")
    A("v_lshlrev_b32 v1, 1, v0")
    A(f"s_lshl_b32 s18, s{sC}, 7"); A(f"s_add_u32 s19, s18, s19")
    A("s_waitcnt lgkmcnt(0)")
    for j in range(8):
        qr = f"v[{vK+j*4}:{vK+j*4+3}]"
        c = "0" if j == 0 else f"v[{vKP}:{vKP+3}]"
        A(f"v_mfma_f32_16x16x32_bf16 v[{vKP}:{vKP+3}], v[{vOM+j*4}:{vOM+j*4+3}], {qr}, {c}")
        c = "0" if j == 0 else f"v[{vG}:{vG+3}]"
        A(f"v_mfma_f32_16x16x32_bf16 v[{vG}:{vG+3}], {qr}, {qr}, {c}")
    A("s_nop 7")
    round4(vKP, vKP)
    A(f"v_cvt_pk_bf16_f32 v{vX}, v{vG}, v{vG}")
    A(f"v_and_b32 v{vX}, 0xffff0000, v{vX}")
    for r in range(4): A(f"v_fma_f32 v{vY+r}, v{vX}, v{vM8}, v{vKP+r}")
    phi_tail()
    A(f"v_lshlrev_b32 v{vPQ}, 16, v{vPH}"); A(f"v_and_b32 v{vPQ+1}, 0xffff0000, v{vPH}")
    A(f"v_lshlrev_b32 v{vPQ+2}, 16, v{vPH+1}"); A(f"v_and_b32 v{vPQ+3}, 0xffff0000, v{vPH+1}")
    A(f"s_or_b32 s18, s{sPart}, s{sC}")
    A("s_cbranch_scc1 L_ve_ret")
    A(f"buffer_store_dword v5, v{vSd}, s[{sDBG}:{sDBG+3}], s93 offen {stf}")
    A("s_branch L_ve_ret")

    Lb("L_ve_f")
    A(f"s_mov_b32 s{sEv}, {nxt['f']}")
    A(f"buffer_load_dword v{vFl}, v{vSd}, s[{sDBG}:{sDBG+3}], s93 offen {flf}")
    A("s_branch L_ve_ret")
    def get_epoch():
        A(f"s_mov_b32 s53, {1<<20}")
        Lb("L_ep")
        A("s_waitcnt vmcnt(0)")
        A(f"v_readfirstlane_b32 s{sT}, v{vFl}")
        A(f"s_cmp_lg_u32 s{sT}, 0")
        A("s_cbranch_scc1 L_ep_ok")
        A(f"buffer_load_dword v{vFl}, v{vSd}, s[{sDBG}:{sDBG+3}], s93 offen sc1")
        A("s_sub_u32 s53, s53, 1")
        A("s_cbranch_scc0 L_ep")
        A("s_waitcnt vmcnt(0)")
        Lb("L_ep_ok")
    def draw(nm, inc):
        Lb(f"L_ve_{nm}")
        if nm == first_at: get_epoch()
        A(f"s_mov_b32 s{sEv}, {nxt[nm]}")
        A(f"v_mov_b32 v{vFl}, {inc:#x}")
        A(f"buffer_atomic_add v{vFl}, v{vSd}, s[{sWS}:{sWS+3}], s69 offen sc0 sc1")
        A("s_branch L_ve_ret")
    def rank(nm, sh):
        Lb(f"L_ve_{nm}")
        A(f"s_mov_b32 s{sEv}, {nxt[nm]}")
        A("s_waitcnt vmcnt(0)")
        A(f"v_readfirstlane_b32 s18, v{vFl}")
        A(f"s_sub_u32 s18, s18, s{sT}"); A("s_add_u32 s18, s18, 1")
        A(f"s_bfe_u32 s18, s18, {hex(sh | (4 << 16))}")
    def post_fin():
        if dyn: A("s_cmp_eq_u32 s18, 7")
        else: A(f"s_cmp_eq_u32 s{sPart}, 0")
        A(f"s_cselect_b32 s53, {1<<30:#x}, 0")
        A(f"s_or_b32 s53, s53, s{sT}")
        A("v_mov_b32 v2, s53")
        A(f"ds_write_b32 v{vMB}, v2")
    for k, c in enumerate(cks):
        draw(f"a{k}", 16 << (4 * k))
        rank(f"b{k}", 4 * (k + 1))
        if fk and k == len(cks) - 1: post_fin()
        tb = [min(255, int(x) * SBs[k] // 20) for x in str(tB).split(",")]
        tt = [min(255, int(x) * STs[k] // 20) for x in str(tT).split(",")]
        A("s_and_b32 s18, s18, 7")
        if stamp: A("s_lshl_b32 s58, s18, 16")
        A("s_lshl_b32 s18, s18, 3")
        for t, r in ((tb, 54), (tt, 56)):
            lo = sum(v << (8 * q) for q, v in enumerate(t[:4])); hi = sum(v << (8 * q) for q, v in enumerate(t[4:]))
            A(f"s_mov_b32 s{r}, {lo:#x}"); A(f"s_mov_b32 s{r+1}, {hi:#x}")
            A(f"s_lshr_b64 s[{r}:{r+1}], s[{r}:{r+1}], s18"); A(f"s_and_b32 s{r}, s{r}, 0xff")
        A("s_lshl_b32 s56, s56, 8"); A("s_or_b32 s54, s54, s56")
        if stamp: A("s_or_b32 s54, s54, s58")
        A("v_mov_b32 v2, s54")
        A(f"ds_write_b32 v{vMB}, v2 offset:4")
        A("s_branch L_ve_ret")
    if not fk:
        draw("t1", 1)
        rank("t2", 0)
        post_fin()
        A("s_branch L_ve_ret")
    Lb("L_ve_t3")
    A(f"ds_read_b32 v{vFl}, v{vMB}")
    A(f"s_mov_b32 s{sEv}, 1")
    A("s_branch L_ve_ret")
    Lb("L_ve_t4")
    A(f"v_readfirstlane_b32 s{sT}, v{vFl}")
    A(f"s_mov_b32 s53, {1<<20}")
    A(f"s_bitcmp1_b32 s{sT}, 30")
    A(f"s_cselect_b32 s{sFin}, 1, 0")
    A(f"s_bitset0_b32 s{sT}, 30")
    A(f"v_bfe_u32 v{vTg}, s{sT}, v{vTg}, 6")
    A(f"v_mov_b32 v{S+7}, s{sT}")
    A("s_cbranch_scc0 L_ve_ret")
    polls()
    A("s_branch L_ve_ret")

    if stamp:
        Lb("L_fin")
        A("s_waitcnt vmcnt(0)")
        A("s_memrealtime s[74:75]")
        A("s_getreg_b32 s82, hwreg(HW_REG_XCC_ID)")
        A("s_getreg_b32 s83, hwreg(HW_REG_HW_ID)")
        A("s_waitcnt lgkmcnt(0)")
        A(f"s_mul_i32 s19, s2, 5"); A("s_add_u32 s19, s19, s3"); A("s_lshl_b32 s19, s19, 5"); A("s_add_u32 s19, s19, 0x100000")
        A("v_mov_b32 v2, s19")
        A("v_mov_b32 v4, s70"); A("v_mov_b32 v5, s76"); A("v_mov_b32 v6, s72"); A("v_mov_b32 v7, s82")
        A("v_mov_b32 v8, s83"); A("v_mov_b32 v9, s78"); A("v_mov_b32 v10, s80"); A("v_mov_b32 v11, s74")
        A("s_mov_b64 exec, 1")
        A("global_store_dwordx4 v2, v[4:7], s[16:17]")
        A("global_store_dwordx4 v2, v[8:11], s[16:17] offset:16")
        A("s_waitcnt vmcnt(0)")
    if amp:
        for i in range(len(o)):
            if o[i].strip() == "s_endpgm": o[i] = "  s_branch L_amp"
        Lb("L_amp")
        A("s_waitcnt vmcnt(0)")
        A("s_memrealtime s[74:75]"); A("s_waitcnt lgkmcnt(0)")
        A("s_sub_u32 s74, s74, s70"); A(f"s_mul_i32 s76, s74, {amp}")
        Lb("L_amp2")
        A("s_memrealtime s[72:73]"); A("s_waitcnt lgkmcnt(0)")
        A("s_sub_u32 s72, s72, s70"); A(f"s_cmp_lt_u32 s72, s76"); A("s_cbranch_scc1 L_amp2")
    Lb("L_end")
    A("s_endpgm")
    o.append('.section .rodata,"a"'); o.append(".p2align 6"); o.append(f".amdhsa_kernel {KN}")
    A(f".amdhsa_next_free_vgpr {nv}"); A(".amdhsa_next_free_sgpr 96"); A(f".amdhsa_accum_offset {nv}")
    A(".amdhsa_group_segment_fixed_size 0"); A(".amdhsa_kernarg_size 56"); A(".amdhsa_user_sgpr_count 2")
    A(".amdhsa_user_sgpr_kernarg_segment_ptr 1"); A(".amdhsa_system_sgpr_workgroup_id_x 1")
    A(".amdhsa_float_denorm_mode_32 3")
    o.append(".end_amdhsa_kernel")
    return "\n".join(o) + "\n"

if __name__ == "__main__":
    out = sys.argv[1]
    kw = {}
    for kv in sys.argv[2:]:
        k, v = kv.split("=")
        kw[k] = int(v) if v.lstrip("-").isdigit() else v
    open(out, "w").write(gen(**kw))
```

```python
import sys, struct, math
KN = "standalone__linear_kernel_rfa__decode_kernel"
def f2u(x): return struct.unpack("<I", struct.pack("<f", x))[0]

HEADER = """; Kernarg layout for this problem (56 bytes, ptrs only, base s[0:1]):
"""

def gen(W=20, WB=28, WT=16, ck="32", CG=3, SB="30", ST="20", tB="0,0,0,0,3,9,17,28", tT="28,17,9,3,0,0,0,0",
        fk=0, TK=6, TG=3, F1=48, stamp=0, outf="", prio=3, stf="sc1", ldf="sc1", chkf="sc1+nt", flf="", vpre=0, amp=0, dyn=1, B0=0, xm=0, pubf="sc1", probe=0):
    NWG = 256
    fix = lambda x: x.replace("none", "").replace("+", " ")
    outf, stf, ldf, chkf, flf = fix(outf), fix(stf), fix(ldf), fix(chkf), fix(flf)
    cks = [int(x) for x in str(ck).split(",") if x not in ("", "none")]
    SBs = [int(x) for x in str(SB).split(",")]; STs = [int(x) for x in str(ST).split(",")]
    while len(SBs) < len(cks): SBs.append(SBs[-1])
    while len(STs) < len(cks): STs.append(STs[-1])
    o = []
    A = lambda s: o.append("  " + s)
    Lb = lambda s: o.append(s + ":")
    PHI = 65536
    OMG = 131072
    QL = OMG + 8192
    MB = QL + 512
    lds = QL + 1024
    o.append(HEADER.rstrip("\n"))
    o.append(f"; @launch grid=({NWG},1,1) block=(320,1,1) lds={lds}")
    o.append('.amdgcn_target "amdgcn-amd-amdhsa--gfx950"')
    o.append(".text"); o.append(f".globl {KN}"); o.append(".p2align 8"); o.append(f".type {KN},@function"); Lb(KN)

    sK, sV, sOM, sQ, sOUT, sWS, sDBG = 20, 24, 28, 32, 36, 40, 44
    sOff, sRing, sCnt = 48, 49, 50
    sMask, sL2E = 54, 62
    sHead, sPart, sC = 64, 65, 66
    sEv, sFin = 84, 85
    sSl = 86
    sT = 51

    A(f"s_load_dwordx8 s[4:11], s[0:1], 0")
    A(f"s_load_dwordx4 s[12:15], s[0:1], 32")
    A(f"s_load_dwordx2 s[16:17], s[0:1], 48")
    if stamp or amp or probe: A("s_memrealtime s[70:71]")
    A("v_lshrrev_b32 v1, 6, v0")
    A(f"s_lshr_b32 s18, s2, 8")
    A("v_readfirstlane_b32 s3, v1")
    A("s_cbranch_scc1 L_end")
    if xm == 1:
        A("s_and_b32 s18, s2, 7"); A("s_lshl_b32 s18, s18, 3"); A("s_bfe_u32 s19, s2, 0x30003"); A("s_or_b32 s18, s18, s19")
        A("s_and_b32 s2, s2, 0xc0"); A("s_or_b32 s2, s2, s18")
    if xm == 2:
        A("s_and_b32 s18, s2, 7"); A("s_lshl_b32 s18, s18, 5"); A("s_lshr_b32 s2, s2, 3"); A("s_or_b32 s2, s2, s18")
    A("v_and_b32 v0, 63, v0")
    A("v_and_b32 v1, 32, v0")
    A("v_lshlrev_b32 v4, 4, v0")
    A("v_xor_b32 v4, v4, v1")
    A("v_xor_b32 v5, 64, v4")
    A("v_xor_b32 v6, 0x80, v4")
    A("v_xor_b32 v7, 64, v6")
    A(f"s_lshl_b32 s{sOff}, s2, 20")
    A("s_cmp_lg_u32 s3, 0")
    A("s_cbranch_scc1 L_cons")

    sJ, sBE, sTE, sR = 50, 51, 52, 53
    ev = [(256, "v"), (512, "end")]
    for i, c in enumerate(cks):
        ev.append((4 * (131 - (c - CG)), f"b{i}"))
    ev.sort()
    assert len(set(j for j, _ in ev)) == len(ev) and all(j % 4 == 0 and j >= 12 for j, _ in ev) and ev[-1][1] == "end"
    if prio: A(f"s_setprio {prio}")
    A(f"s_mov_b32 s{sK+2}, {1<<28}"); A(f"s_mov_b32 s{sK+3}, 0x20000")
    A(f"s_mov_b32 s{sJ}, 0")
    if cks: A(f"s_mov_b32 s{sBE}, {B0}"); A(f"s_mov_b32 s{sTE}, 0")
    A(f"s_movk_i32 s{sEv}, {ev[0][0]}")
    A(f"s_mov_b32 m0, 0")
    if stamp: A("s_mov_b32 s78, 0"); A("s_mov_b32 s80, 0")
    A("s_waitcnt lgkmcnt(0)")
    A(f"s_mov_b32 s{sK}, s6"); A(f"s_mov_b32 s{sK+1}, s7")
    if probe == 1:
        A(f"buffer_load_dwordx4 v4, s[{sK}:{sK+3}], s{sOff} offen nt lds")
        A("s_waitcnt vmcnt(0)"); A("s_memrealtime s[74:75]"); A("s_mov_b32 s76, s70")
    Lb("L_ld")
    if cks:
        A(f"s_cmp_lt_u32 s{sJ}, s{sTE}")
        A("s_cbranch_scc0 L_nt")
        A(f"s_waitcnt vmcnt({WT-4})")
        Lb("L_nt")
        A(f"s_cmp_lt_u32 s{sJ}, s{sBE}")
        A("s_cbranch_scc1 L_w")
    A(f"s_waitcnt vmcnt({W-4})")
    if cks:
        Lb("L_w")
        A(f"s_waitcnt vmcnt({WB-4})")
    for n in range(4):
        A(f"buffer_load_dwordx4 v{4+n}, s[{sK}:{sK+3}], s{sOff} offen offset:{n*1024} nt lds")
    A(f"s_add_u32 s{sJ}, s{sJ}, 1")
    A(f"s_addk_i32 s{sOff}, 0x1000")
    A(f"s_lshl_b32 s18, s{sJ}, 12")
    A(f"s_and_b32 m0, s18, 0xffff")
    A(f"s_and_b32 s18, s{sJ}, 3")
    A("s_cbranch_scc1 L_ld")
    A(f"s_cmp_lt_u32 s{sJ}, 12")
    A("s_cbranch_scc1 L_ld")
    A("s_barrier")
    A(f"s_cmp_lg_u32 s{sJ}, s{sEv}")
    A("s_cbranch_scc1 L_ld")
    for i, (j, nm) in enumerate(ev):
        if nm == "end": break
        A(f"s_cmpk_lg_u32 s{sJ}, {j}")
        A(f"s_cbranch_scc1 L_ev{i+1}")
        A(f"s_movk_i32 s{sEv}, {ev[i+1][0]}")
        if nm == "v":
            A(f"s_mov_b32 s{sK}, s8"); A(f"s_mov_b32 s{sK+1}, s9")
            A(f"s_lshl_b32 s{sOff}, s2, 20")
            A(f"v_mov_b32 v9, {MB}")
            if stamp: A("s_memrealtime s[76:77]")
            if probe == 2:
                A("s_waitcnt vmcnt(0)"); A("s_memrealtime s[76:77]"); A("s_waitcnt lgkmcnt(0)")
                A(f"buffer_load_dwordx4 v4, s[{sK}:{sK+3}], s{sOff} offen nt lds")
                A("s_waitcnt vmcnt(0)"); A("s_memrealtime s[74:75]")
        else:
            A(f"ds_read_b32 v8, v9 offset:4")
            A("s_waitcnt lgkmcnt(0)")
            A(f"v_readfirstlane_b32 s{sR}, v8")
            if stamp: A(f"s_lshr_b32 s78, s{sR}, 16"); A("s_lshl_b32 s78, s78, 5")
            A(f"s_and_b32 s{sBE}, s{sR}, 0xff"); A(f"s_add_u32 s{sBE}, s{sBE}, s{sJ}")
            A(f"s_bfe_u32 s{sTE}, s{sR}, 0x80008"); A(f"s_add_u32 s{sTE}, s{sTE}, s{sJ}")
        A("s_branch L_ld")
        Lb(f"L_ev{i+1}")
    A("s_waitcnt vmcnt(16)")
    A("s_barrier")
    A("s_waitcnt vmcnt(0)")
    A("s_barrier")
    if stamp:
        A("s_memrealtime s[72:73]")
        A("s_branch L_fin")
    else:
        if probe:
            A("s_waitcnt lgkmcnt(0)")
            A("s_sub_u32 s74, s74, s76"); A("s_mul_i32 s74, s74, 10"); A("s_add_u32 s74, s74, 10000")
            Lb("L_spin")
            A("s_memrealtime s[72:73]"); A("s_waitcnt lgkmcnt(0)")
            A("s_sub_u32 s72, s72, s70"); A(f"s_cmp_lt_u32 s72, s74"); A("s_cbranch_scc1 L_spin")
        A("s_endpgm")

    vM8, vEps, vOnes = 8, 9, 12
    vKb = 16
    vVb = 20
    vAd = 24
    vPa = 28
    vSn = 29
    vFl = 30
    vDp = 31
    vKP = 32; vG = 36; vX = 40; vT = 42; vY = 44; vPH = 48; vPQ = 52
    vSd = 56
    vL4 = 57
    vZero = 58
    vMB = 59
    vTg = 60
    vOM = 64; vK = 96; vB = 128; vA = 144; vACC = 148
    nv = 168
    sOwn = 94
    GRP = 2048
    CTR = 128 * GRP
    HS = 8448
    WSB = CTR + 32 * HS
    OOB = 0x7ff00000
    o.append(".p2align 6")
    Lb("L_cons")
    A(f"s_sub_u32 s{sC}, s3, 1")
    A(f"s_lshr_b32 s{sHead}, s2, 3")
    A(f"s_sub_u32 s{sPart}, s2, s{sHead}"); A(f"s_and_b32 s{sPart}, s{sPart}, 7")
    A(f"s_mov_b32 s{sOM+2}, 8192"); A(f"s_mov_b32 s{sOM+3}, 0x20000")
    A(f"s_mov_b32 s{sQ+2}, 16384"); A(f"s_mov_b32 s{sQ+3}, 0x20000")
    A(f"s_mov_b32 s{sWS+2}, {WSB}"); A(f"s_mov_b32 s{sWS+3}, 0x20000")
    A(f"s_mov_b32 s{sOUT+2}, 16384"); A(f"s_mov_b32 s{sOUT+3}, 0x20000")
    A(f"s_mov_b32 s{sDBG+2}, 256"); A(f"s_mov_b32 s{sDBG+3}, 0x20000")
    A(f"s_lshl_b32 s19, s{sHead}, 9")
    A(f"s_mov_b32 m0, {OMG}")
    A(f"s_mov_b32 s18, 4096")
    A(f"s_cmp_lg_u32 s{sC}, 0")
    A("s_waitcnt lgkmcnt(0)")
    A(f"s_mov_b32 s{sOM}, s10"); A(f"s_mov_b32 s{sOM+1}, s11")
    A(f"s_mov_b32 s{sQ}, s4"); A(f"s_mov_b32 s{sQ+1}, s5")
    A("s_cbranch_scc1 L_noom")
    for n in range(4):
        A(f"buffer_load_dwordx4 v{4+n}, s[{sOM}:{sOM+3}], 0 offen offset:{n*1024} lds")
    A(f"s_mov_b32 m0, {OMG+4096}"); A("s_nop 0")
    for n in range(4):
        A(f"buffer_load_dwordx4 v{4+n}, s[{sOM}:{sOM+3}], s18 offen offset:{n*1024} lds")
    A(f"s_mov_b32 m0, {QL}"); A("s_nop 0")
    A(f"buffer_load_dwordx4 v4, s[{sQ}:{sQ+3}], s19 offen lds")
    Lb("L_noom")
    A(f"s_mov_b32 s{sWS}, s16"); A(f"s_mov_b32 s{sWS+1}, s17")
    A(f"s_mov_b32 s{sOUT}, s12"); A(f"s_mov_b32 s{sOUT+1}, s13")
    A(f"s_mov_b32 s{sDBG}, s14"); A(f"s_mov_b32 s{sDBG+1}, s15")
    if vpre:
        A(f"s_mov_b32 s{sV}, s8"); A(f"s_mov_b32 s{sV+1}, s9"); A(f"s_mov_b32 s{sV+2}, {1<<28}"); A(f"s_mov_b32 s{sV+3}, 0x20000")
    A("v_lshrrev_b32 v5, 4, v0")
    A("v_and_b32 v1, 15, v0")
    A(f"s_lshl_b32 s93, s{sHead}, 2")
    A(f"v_lshlrev_b32 v{vL4}, 2, v0"); A(f"v_mov_b32 v{vZero}, 0"); A(f"v_mov_b32 v{vMB}, {MB}")
    A(f"s_add_u32 s67, s93, s{sC}"); A("s_lshl_b32 s67, s67, 11")
    A(f"s_lshl_b32 s68, s{sPart}, 8"); A("s_add_u32 s68, s68, s67")
    A(f"s_mul_i32 s69, s{sHead}, {HS}"); A(f"s_add_u32 s69, s69, {CTR}")
    A(f"s_lshl_b32 s63, s{sPart}, 3"); A("s_add_u32 s63, s63, s69")
    for i in range(1, 8):
        A(f"s_xor_b32 s{sSl+i-1}, s68, {i << 8:#x}")
    A("v_and_b32 v6, 3, v0"); A(f"v_mov_b32 v7, {OOB:#x}")
    A("v_cmp_eq_u32 vcc, 0, v6")
    A(f"v_or_b32 v2, s{sC}, v0")
    A("v_and_b32 v3, 7, v0")
    A(f"v_cndmask_b32 v{vSn}, v7, v{vL4}, vcc")
    A("v_cmp_eq_u32 vcc, 0, v2")
    A(f"v_cmp_eq_u32 s[{sOwn}:{sOwn+1}], s{sPart}, v3")
    A(f"v_lshlrev_b32 v{vDp}, 3, v3")
    A(f"v_mul_u32_u24 v{vTg}, 6, v6")
    A("v_and_b32 v6, 7, v1"); A("v_lshlrev_b32 v6, 1, v6")
    A(f"v_cndmask_b32 v{vSd}, v7, v{vZero}, vcc")
    A("v_xor_b32 v6, v6, v5")
    A("v_lshlrev_b32 v6, 4, v6"); A(f"v_lshl_add_u32 v{vKb}, v1, 9, v6")
    for jj in range(1, 4): A(f"v_xor_b32 v{vKb+jj}, {jj*64}, v{vKb}")
    A(f"v_lshlrev_b32 v11, 4, v5")
    A("v_lshrrev_b32 v6, 2, v0")
    A("v_and_b32 v7, 7, v6")
    A(f"s_lshl_b32 s18, s{sC}, 2")
    A("v_xor_b32 v7, s18, v7")
    A("v_lshlrev_b32 v7, 5, v7"); A("v_lshl_add_u32 v7, v6, 9, v7")
    A("v_and_b32 v6, 3, v0"); A(f"v_lshl_add_u32 v{vVb}, v6, 3, v7")
    for t in range(1, 4): A(f"v_xor_b32 v{vVb+t}, {t*32}, v{vVb}")
    for r in range(4):
        m = (1 << r) | (1 << (20 + r)) | (1 << (40 + r)) | (1 << (60 + r))
        A(f"s_mov_b32 s{sMask+2*r}, {m & 0xffffffff:#x}"); A(f"s_mov_b32 s{sMask+2*r+1}, {m >> 32:#x}")
    A(f"s_mov_b32 s{sL2E}, {f2u(math.log2(math.e)/4):#x}")
    for r in range(4): A(f"v_mov_b32 v{vOnes+r}, 0x3f803f80")
    A(f"v_mov_b32 v{vM8}, {f2u(-0.125):#x}"); A(f"v_mov_b32 v{vEps}, {f2u(1e-6):#x}")
    for r in range(20): A(f"v_mov_b32 v{vACC+r}, 0")
    A(f"s_and_b32 s18, s{sC}, 1"); A(f"s_lshr_b32 s52, s{sC}, 1")
    A(f"s_lshl_b32 s{sRing}, s52, 14"); A("s_lshl_b32 s53, s18, 13"); A(f"s_add_u32 s{sRing}, s{sRing}, s53")
    A("s_lshl_b32 s53, s52, 10"); A("s_lshl_b32 s18, s18, 3"); A("s_add_u32 s53, s53, s18"); A(f"s_add_u32 s53, s53, {PHI}")
    A(f"v_lshl_add_u32 v{vPa}, v0, 4, s53")
    for jj in range(4): A(f"v_add_u32 v{vAd+jj}, {OMG}, v{vKb+jj}")
    A(f"s_mov_b32 s{sCnt}, 32")
    A(f"s_mov_b32 s{sEv}, 28")
    A(f"s_mov_b32 s{sT}, 0")
    A("s_waitcnt vmcnt(0)")
    A("s_barrier")
    for j in range(8):
        A(f"ds_read_b128 v[{vOM+j*4}:{vOM+j*4+3}], v{vAd+(j&3)} offset:{(j>>2)*256}")
    for jj in range(4): A(f"v_add_u32 v{vAd+jj}, s{sRing}, v{vKb+jj}")
    A("s_cmp_eq_u32 s52, 0")
    A("s_cbranch_scc1 L_k_nb")

    def round4(src, dst):
        A(f"v_cvt_pk_bf16_f32 v{vT}, v{src}, v{src+1}")
        A(f"v_cvt_pk_bf16_f32 v{vT+1}, v{src+2}, v{src+3}")
        A(f"v_lshlrev_b32 v{dst}, 16, v{vT}"); A(f"v_and_b32 v{dst+1}, 0xffff0000, v{vT}")
        A(f"v_lshlrev_b32 v{dst+2}, 16, v{vT+1}"); A(f"v_and_b32 v{dst+3}, 0xffff0000, v{vT+1}")
    def phi_tail():
        round4(vY, vY)
        for r in range(4): A(f"v_mul_f32 v{vY+r}, s{sL2E}, v{vY+r}")
        for r in range(4): A(f"v_exp_f32 v{vY+r}, v{vY+r}")
        A("s_nop 0")
        round4(vY, vY)
        for r in range(4): A(f"v_fmamk_f32 v{vY+r}, v{vY+r}, 0x3e800000, v{vEps}")
        A(f"v_cvt_pk_bf16_f32 v{vPH}, v{vY}, v{vY+1}")
        A(f"v_cvt_pk_bf16_f32 v{vPH+1}, v{vY+2}, v{vY+3}")

    Lb("L_k")
    A("s_barrier")
    Lb("L_k_nb")
    for j in range(8):
        A(f"ds_read_b128 v[{vK+j*4}:{vK+j*4+3}], v{vAd+(j&3)} offset:{(j>>2)*256}")
    A(f"s_add_u32 s{sRing}, s{sRing}, 32768"); A(f"s_and_b32 s{sRing}, s{sRing}, 0xffff")
    for jj in range(4): A(f"v_add_u32 v{vAd+jj}, s{sRing}, v{vKb+jj}")
    for j in range(8):
        kr = f"v[{vK+j*4}:{vK+j*4+3}]"
        A(f"s_waitcnt lgkmcnt({7-j})")
        c = "0" if j == 0 else f"v[{vG}:{vG+3}]"
        A(f"v_mfma_f32_16x16x32_bf16 v[{vG}:{vG+3}], {kr}, {kr}, {c}")
        c = "0" if j == 0 else f"v[{vKP}:{vKP+3}]"
        A(f"v_mfma_f32_16x16x32_bf16 v[{vKP}:{vKP+3}], {kr}, v[{vOM+j*4}:{vOM+j*4+3}], {c}")
    A("s_barrier")
    A("s_nop 7")
    A(f"v_cndmask_b32 v{vX}, 0, v{vG}, s[{sMask}:{sMask+1}]")
    for r in range(1, 4):
        A(f"v_cndmask_b32 v{vX}, v{vX}, v{vG+r}, s[{sMask+2*r}:{sMask+2*r+1}]")
    A(f"v_cvt_pk_bf16_f32 v{vX}, v{vX}, v{vX}")
    A(f"v_and_b32 v{vX}, 0xffff0000, v{vX}")
    round4(vKP, vKP)
    A("s_nop 1")
    A(f"v_mfma_f32_16x16x4_f32 v[{vY}:{vY+3}], v{vX}, v{vM8}, v[{vKP}:{vKP+3}]")
    A("s_nop 9")
    phi_tail()
    A(f"ds_write_b64 v{vPa}, v[{vPH}:{vPH+1}]")
    A(f"v_add_u32 v{vPa}, 2048, v{vPa}")
    A(f"s_sub_u32 s{sCnt}, s{sCnt}, 1")
    A(f"s_cmp_eq_u32 s{sCnt}, s{sEv}")
    A("s_cbranch_scc1 L_ke")
    Lb("L_ke_ret")
    A(f"s_cmp_lg_u32 s{sCnt}, 0")
    A("s_waitcnt lgkmcnt(0)")
    A("s_cbranch_scc1 L_k")

    A(f"v_lshlrev_b32 v{vPa}, 4, v0"); A(f"v_add_u32 v{vPa}, {PHI}, v{vPa}")
    A(f"ds_read_b128 v[{vA}:{vA+3}], v{vPa}")
    A(f"s_mov_b32 s{sRing}, 0")
    A(f"s_mov_b32 s{sCnt}, 64")
    A(f"s_mov_b32 s{sEv}, 60")
    for t in range(4): A(f"v_mov_b32 v{vAd+t}, v{vVb+t}")
    A("s_waitcnt vmcnt(0) lgkmcnt(0)")
    A("s_cmp_lg_u32 s52, 0")
    A("s_cbranch_scc1 L_v_nb")
    Lb("L_v")
    A("s_barrier")
    Lb("L_v_nb")
    for t in range(4):
        A(f"ds_read_b64_tr_b16 v[{vB+t*4}:{vB+t*4+1}], v{vAd+t}")
        A(f"ds_read_b64_tr_b16 v[{vB+t*4+2}:{vB+t*4+3}], v{vAd+t} offset:8192")
    A(f"v_mfma_f32_16x16x32_bf16 v[{vACC+16}:{vACC+19}], v[{vA}:{vA+3}], v[{vOnes}:{vOnes+3}], v[{vACC+16}:{vACC+19}]")
    A(f"s_add_u32 s{sRing}, s{sRing}, 16384"); A(f"s_and_b32 s{sRing}, s{sRing}, 0xffff")
    A(f"v_add_u32 v{vPa}, 1024, v{vPa}")
    A(f"s_sub_u32 s{sCnt}, s{sCnt}, 1")
    for t in range(4):
        A(f"s_waitcnt lgkmcnt({6-2*t})")
        a = vACC + t * 4
        A(f"v_mfma_f32_16x16x32_bf16 v[{a}:{a+3}], v[{vA}:{vA+3}], v[{vB+t*4}:{vB+t*4+3}], v[{a}:{a+3}]")
    A(f"s_cmp_eq_u32 s{sCnt}, 0")
    A("s_cbranch_scc1 L_epi")
    A(f"ds_read_b128 v[{vA}:{vA+3}], v{vPa}")
    for t in range(4): A(f"v_add_u32 v{vAd+t}, s{sRing}, v{vVb+t}")
    A(f"s_cmp_eq_u32 s{sCnt}, s{sEv}")
    A("s_cbranch_scc1 L_ve")
    Lb("L_ve_ret")
    A("s_waitcnt lgkmcnt(0)")
    A("s_branch L_v")

    P = vOM; D = vOM + 8
    def polls():
        for i in range(1, 8):
            A(f"buffer_load_dword v{P+i}, v{vL4}, s[{sWS}:{sWS+3}], s{sSl+i-1} offen {ldf}")
        A(f"buffer_load_dwordx2 v[{D}:{D+1}], v{vDp}, s[{sWS}:{sWS+3}], s69 offen offset:256 {ldf}")
    S = vK
    Lb("L_epi")
    if stamp: A("s_memrealtime s[72:73]")
    for t in (4, 0, 2, 1, 3):
        a = vACC + t * 4
        A(f"v_mul_f32 v{S+t}, v{vPQ}, v{a}")
        for r in range(1, 4): A(f"v_fmac_f32 v{S+t}, v{vPQ+r}, v{a+r}")
        if t == 4: A(f"v_mov_b32 v{S+5}, v{S+4}")
    A(f"v_permlane32_swap_b32 v{S+4}, v{S+5}")
    A(f"v_permlane32_swap_b32 v{S}, v{S+2}")
    A(f"v_permlane32_swap_b32 v{S+1}, v{S+3}")
    A(f"v_add_f32 v{S+4}, v{S+4}, v{S+5}")
    A(f"v_add_f32 v{S}, v{S}, v{S+2}")
    A(f"v_add_f32 v{S+1}, v{S+1}, v{S+3}")
    A(f"v_mov_b32 v{S+5}, v{S+4}")
    A("s_nop 0")
    A(f"v_permlane16_swap_b32 v{S}, v{S+1}")
    A(f"v_permlane16_swap_b32 v{S+4}, v{S+5}")
    A(f"s_cmp_lg_u32 s{sFin}, 0")
    A(f"v_add_f32 v{S+8}, v{S}, v{S+1}")
    A(f"v_add_f32 v{S+6}, v{S+4}, v{S+5}")
    A("s_cbranch_scc1 L_final")
    A(f"v_bfi_b32 v{S+8}, 63, v{vTg}, v{S+8}")
    A(f"buffer_store_dwordx2 v[{S+6}:{S+7}], v{vSd}, s[{sWS}:{sWS+3}], s63 offen offset:256 {fix(pubf)}")
    A("s_nop 0")
    for i in range(1, 4):
        A(f"v_mov_b32_dpp v{S+8+i}, v{S+8} quad_perm:[{i},{i},{i},{i}] row_mask:0xf bank_mask:0xf")
    A(f"buffer_store_dwordx4 v[{S+8}:{S+11}], v{vSn}, s[{sWS}:{sWS+3}], s68 offen {fix(pubf)}")
    if stamp:
        A("s_mov_b32 s76, 0"); A("s_mov_b32 s78, 0"); A("s_mov_b32 s80, 0")
        A("s_branch L_fin")
    else:
        A("s_endpgm")
    Lb("L_poll")
    polls()
    A("s_sub_u32 s53, s53, 1")
    A("s_cbranch_scc1 L_end")
    if stamp: A("s_add_u32 s76, s76, 1"); A("s_branch L_chk")
    Lb("L_final")
    if stamp:
        A("s_memrealtime s[78:79]"); A("s_mov_b32 s76, 1")
    Lb("L_chk")
    A("s_waitcnt vmcnt(0)")
    A(f"v_cndmask_b32 v{D}, v{D}, v{S+6}, s[{sOwn}:{sOwn+1}]")
    A(f"v_cndmask_b32 v{D+1}, v{D+1}, v{S+7}, s[{sOwn}:{sOwn+1}]")
    A(f"v_xor_b32 v{P}, v{P+1}, v{vTg}")
    A(f"v_add_f32_dpp v{D+2}, v{D}, v{D} quad_perm:[1,0,3,2] row_mask:0xf bank_mask:0xf")
    A(f"v_xor_b32 v{D+3}, v{P+2}, v{vTg}")
    A(f"v_bitop3_b32 v{P}, v{P+3}, v{P}, v{vTg} bitop3:0xde")
    A(f"v_add_f32_dpp v{D+2}, v{D+2}, v{D+2} quad_perm:[2,3,0,1] row_mask:0xf bank_mask:0xf")
    A(f"v_bitop3_b32 v{D+3}, v{P+4}, v{D+3}, v{vTg} bitop3:0xde")
    A(f"v_bitop3_b32 v{P}, v{P+5}, v{P}, v{vTg} bitop3:0xde")
    A(f"v_add_f32_dpp v{S+1}, v{D+2}, v{D+2} row_half_mirror row_mask:0xf bank_mask:0xf")
    A(f"v_bitop3_b32 v{D+3}, v{P+6}, v{D+3}, v{vTg} bitop3:0xde")
    A(f"v_bitop3_b32 v{P}, v{P+7}, v{P}, v{vTg} bitop3:0xde")
    A(f"v_xor_b32 v{D+1}, v{D+1}, v{S+7}")
    A(f"v_or_b32 v{P}, v{P}, v{D+3}")
    A(f"v_cvt_pk_bf16_f32 v{S+1}, v{S+1}, v{S+1}")
    A(f"v_and_or_b32 v{P}, v{P}, 63, v{D+1}")
    A(f"v_add_f32 v{S}, v{S+8}, v{P+1}")
    A(f"v_cmp_ne_u32 vcc, 0, v{P}")
    A(f"v_and_b32 v{S+1}, 0xffff0000, v{S+1}")
    A(f"v_add_f32 v{P+2}, v{P+2}, v{P+3}")
    A(f"v_add_f32 v{P+4}, v{P+4}, v{P+5}")
    A(f"v_add_f32 v{S+1}, v{S+1}, v{vEps}")
    A("s_cbranch_vccnz L_poll")
    if stamp: A("s_memrealtime s[80:81]")
    A(f"v_add_f32 v{P+6}, v{P+6}, v{P+7}")
    A(f"v_cvt_pk_bf16_f32 v{S+1}, v{S+1}, v{S+1}")
    A(f"v_add_f32 v{S}, v{S}, v{P+2}")
    A(f"v_and_b32 v{S+1}, 0xffff0000, v{S+1}")
    A(f"v_add_f32 v{P+4}, v{P+4}, v{P+6}")
    A(f"v_rcp_f32 v{S+2}, v{S+1}")
    A(f"v_add_f32 v{S}, v{S}, v{P+4}")
    A(f"v_cvt_pk_bf16_f32 v{S}, v{S}, v{S}")
    A(f"v_and_b32 v{S}, 0xffff0000, v{S}")
    A(f"v_mul_f32 v{S+3}, v{S}, v{S+2}")
    A(f"v_fma_f32 v{S+4}, -v{S+1}, v{S+3}, v{S}")
    A(f"v_fma_f32 v{S+3}, v{S+4}, v{S+2}, v{S+3}")
    A(f"v_div_fixup_f32 v{S+3}, v{S+3}, v{S+1}, v{S}")
    A(f"v_cvt_pk_bf16_f32 v{S+3}, v{S+3}, v{S+3}")
    A(f"buffer_store_short v{S+3}, v1, s[{sOUT}:{sOUT+3}], s19 offen {outf}")
    if stamp:
        A("s_branch L_fin")
    else:
        A("s_endpgm")

    Lb("L_ke")
    A(f"s_cmp_eq_u32 s{sCnt}, 24")
    A("s_cbranch_scc1 L_ke2")
    if vpre:
        A(f"buffer_load_dword v3, v{vSd}, s[{sV}:{sV+3}], s{sOff} offen nt")
    A(f"s_cmp_lg_u32 s{sPart}, 0")
    A("s_cbranch_scc1 L_ke_ret")
    A(f"s_mov_b32 s{sEv}, 24")
    A("v_lshlrev_b32 v2, 4, v0")
    A(f"buffer_load_dword v{vB+10}, v{vZero}, s[{sWS}:{sWS+3}], s69 offen {chkf}")
    A(f"buffer_load_dwordx2 v[{vB+8}:{vB+9}], v{vDp}, s[{sWS}:{sWS+3}], s69 offen offset:256 {chkf}")
    A(f"buffer_load_dwordx4 v[{vB}:{vB+3}], v2, s[{sWS}:{sWS+3}], s67 offen {chkf}")
    A(f"buffer_load_dwordx4 v[{vB+4}:{vB+7}], v2, s[{sWS}:{sWS+3}], s67 offen offset:1024 {chkf}")
    A("s_branch L_ke_ret")
    Lb("L_ke2")
    A("s_waitcnt vmcnt(0)")
    A(f"v_readfirstlane_b32 s{sT}, v{vB+10}")
    A(f"s_add_u32 s{sT}, s{sT}, 1"); A(f"s_and_b32 s{sT}, s{sT}, 0xffffff"); A(f"s_bitset1_b32 s{sT}, 31")
    for h in range(2):
        g = vB + 4 * h
        A(f"v_xor_b32 v3, s{sT}, v{g}")
        for j in range(1, 4):
            A(f"s_lshr_b32 s18, s{sT}, {6*j}")
            A(f"v_bitop3_b32 v3, v{g+j}, v3, s18 bitop3:0xde")
        A("v_and_b32 v3, 63, v3")
        A("v_cmp_eq_u32 vcc, 0, v3")
        A(f"v_xor_b32 v{g}, 1, v{g}")
        A(f"s_cbranch_vccz L_kc{h}")
        A("s_mov_b64 exec, vcc")
        A(f"buffer_store_dword v{g}, v2, s[{sWS}:{sWS+3}], s67 offen offset:{1024*h} {stf}")
        A("s_mov_b64 exec, -1")
        Lb(f"L_kc{h}")
    A(f"v_cmp_eq_u32 vcc, s{sT}, v{vB+9}")
    A(f"s_cbranch_vccz L_ke_ret")
    A("s_mov_b64 exec, vcc")
    A(f"buffer_store_dword v{vZero}, v{vDp}, s[{sWS}:{sWS+3}], s69 offen offset:260 {stf}")
    A("s_mov_b64 exec, -1")
    A("s_branch L_ke_ret")

    T1, T2, T3 = TK, TK - TG, TK - TG - 1
    assert T3 >= 2
    evs0 = [(60, "q"), (F1, "f")]
    for k, c in enumerate(cks): evs0 += [(c, f"a{k}"), (c - CG, f"b{k}")]
    if not fk: evs0 += [(T1, "t1"), (T2, "t2")]
    evs0 += [(T3, "t3"), (1, "t4")]
    assert all(evs0[i][0] > evs0[i+1][0] for i in range(len(evs0) - 1))
    nxt = {nm: evs0[i+1][0] for i, (_, nm) in enumerate(evs0[:-1])}
    first_at = evs0[2][1]
    Lb("L_ve")
    for n, nm in reversed(evs0[1:]):
        A(f"s_cmp_eq_u32 s{sCnt}, {n}")
        A(f"s_cbranch_scc1 L_ve_{nm}")
    A(f"v_add_u32 v2, {QL}, v11")
    for j in range(8):
        A(f"ds_read_b128 v[{vK+j*4}:{vK+j*4+3}], v2 offset:{j*64}")
    A(f"v_mov_b32 v5, s{sT}")
    A(f"s_cmp_eq_u32 s{sC}, 0")
    A(f"s_cselect_b32 s{sEv}, {nxt['q']}, {T3}")
    A("v_lshlrev_b32 v1, 1, v0")
    A(f"s_lshl_b32 s18, s{sC}, 7"); A(f"s_add_u32 s19, s18, s19")
    A("s_waitcnt lgkmcnt(0)")
    for j in range(8):
        qr = f"v[{vK+j*4}:{vK+j*4+3}]"
        c = "0" if j == 0 else f"v[{vKP}:{vKP+3}]"
        A(f"v_mfma_f32_16x16x32_bf16 v[{vKP}:{vKP+3}], v[{vOM+j*4}:{vOM+j*4+3}], {qr}, {c}")
        c = "0" if j == 0 else f"v[{vG}:{vG+3}]"
        A(f"v_mfma_f32_16x16x32_bf16 v[{vG}:{vG+3}], {qr}, {qr}, {c}")
    A("s_nop 7")
    round4(vKP, vKP)
    A(f"v_cvt_pk_bf16_f32 v{vX}, v{vG}, v{vG}")
    A(f"v_and_b32 v{vX}, 0xffff0000, v{vX}")
    for r in range(4): A(f"v_fma_f32 v{vY+r}, v{vX}, v{vM8}, v{vKP+r}")
    phi_tail()
    A(f"v_lshlrev_b32 v{vPQ}, 16, v{vPH}"); A(f"v_and_b32 v{vPQ+1}, 0xffff0000, v{vPH}")
    A(f"v_lshlrev_b32 v{vPQ+2}, 16, v{vPH+1}"); A(f"v_and_b32 v{vPQ+3}, 0xffff0000, v{vPH+1}")
    A(f"s_or_b32 s18, s{sPart}, s{sC}")
    A("s_cbranch_scc1 L_ve_ret")
    A(f"buffer_store_dword v5, v{vSd}, s[{sDBG}:{sDBG+3}], s93 offen {stf}")
    A("s_branch L_ve_ret")

    Lb("L_ve_f")
    A(f"s_mov_b32 s{sEv}, {nxt['f']}")
    A(f"buffer_load_dword v{vFl}, v{vSd}, s[{sDBG}:{sDBG+3}], s93 offen {flf}")
    A("s_branch L_ve_ret")
    def get_epoch():
        A(f"s_mov_b32 s53, {1<<20}")
        Lb("L_ep")
        A("s_waitcnt vmcnt(0)")
        A(f"v_readfirstlane_b32 s{sT}, v{vFl}")
        A(f"s_cmp_lg_u32 s{sT}, 0")
        A("s_cbranch_scc1 L_ep_ok")
        A(f"buffer_load_dword v{vFl}, v{vSd}, s[{sDBG}:{sDBG+3}], s93 offen sc1")
        A("s_sub_u32 s53, s53, 1")
        A("s_cbranch_scc0 L_ep")
        A("s_waitcnt vmcnt(0)")
        Lb("L_ep_ok")
    def draw(nm, inc):
        Lb(f"L_ve_{nm}")
        if nm == first_at: get_epoch()
        A(f"s_mov_b32 s{sEv}, {nxt[nm]}")
        A(f"v_mov_b32 v{vFl}, {inc:#x}")
        A(f"buffer_atomic_add v{vFl}, v{vSd}, s[{sWS}:{sWS+3}], s69 offen sc0 sc1")
        A("s_branch L_ve_ret")
    def rank(nm, sh):
        Lb(f"L_ve_{nm}")
        A(f"s_mov_b32 s{sEv}, {nxt[nm]}")
        A("s_waitcnt vmcnt(0)")
        A(f"v_readfirstlane_b32 s18, v{vFl}")
        A(f"s_sub_u32 s18, s18, s{sT}"); A("s_add_u32 s18, s18, 1")
        A(f"s_bfe_u32 s18, s18, {hex(sh | (4 << 16))}")
    def post_fin():
        if dyn: A("s_cmp_eq_u32 s18, 7")
        else: A(f"s_cmp_eq_u32 s{sPart}, 0")
        A(f"s_cselect_b32 s53, {1<<30:#x}, 0")
        A(f"s_or_b32 s53, s53, s{sT}")
        A("v_mov_b32 v2, s53")
        A(f"ds_write_b32 v{vMB}, v2")
    for k, c in enumerate(cks):
        draw(f"a{k}", 16 << (4 * k))
        rank(f"b{k}", 4 * (k + 1))
        if fk and k == len(cks) - 1: post_fin()
        tb = [min(255, int(x) * SBs[k] // 20) for x in str(tB).split(",")]
        tt = [min(255, int(x) * STs[k] // 20) for x in str(tT).split(",")]
        A("s_and_b32 s18, s18, 7")
        if stamp: A("s_lshl_b32 s58, s18, 16")
        A("s_lshl_b32 s18, s18, 3")
        for t, r in ((tb, 54), (tt, 56)):
            lo = sum(v << (8 * q) for q, v in enumerate(t[:4])); hi = sum(v << (8 * q) for q, v in enumerate(t[4:]))
            A(f"s_mov_b32 s{r}, {lo:#x}"); A(f"s_mov_b32 s{r+1}, {hi:#x}")
            A(f"s_lshr_b64 s[{r}:{r+1}], s[{r}:{r+1}], s18"); A(f"s_and_b32 s{r}, s{r}, 0xff")
        A("s_lshl_b32 s56, s56, 8"); A("s_or_b32 s54, s54, s56")
        if stamp: A("s_or_b32 s54, s54, s58")
        A("v_mov_b32 v2, s54")
        A(f"ds_write_b32 v{vMB}, v2 offset:4")
        A("s_branch L_ve_ret")
    if not fk:
        draw("t1", 1)
        rank("t2", 0)
        post_fin()
        A("s_branch L_ve_ret")
    Lb("L_ve_t3")
    A(f"ds_read_b32 v{vFl}, v{vMB}")
    A(f"s_mov_b32 s{sEv}, 1")
    A("s_branch L_ve_ret")
    Lb("L_ve_t4")
    A(f"v_readfirstlane_b32 s{sT}, v{vFl}")
    A(f"s_mov_b32 s53, {1<<20}")
    A(f"s_bitcmp1_b32 s{sT}, 30")
    A(f"s_cselect_b32 s{sFin}, 1, 0")
    A(f"s_bitset0_b32 s{sT}, 30")
    A(f"v_bfe_u32 v{vTg}, s{sT}, v{vTg}, 6")
    A(f"v_mov_b32 v{S+7}, s{sT}")
    A("s_cbranch_scc0 L_ve_ret")
    polls()
    A("s_branch L_ve_ret")

    if stamp:
        Lb("L_fin")
        A("s_waitcnt vmcnt(0)")
        A("s_memrealtime s[74:75]")
        A("s_getreg_b32 s82, hwreg(HW_REG_XCC_ID)")
        A("s_getreg_b32 s83, hwreg(HW_REG_HW_ID)")
        A("s_waitcnt lgkmcnt(0)")
        A(f"s_mul_i32 s19, s2, 5"); A("s_add_u32 s19, s19, s3"); A("s_lshl_b32 s19, s19, 5"); A("s_add_u32 s19, s19, 0x100000")
        A("v_mov_b32 v2, s19")
        A("v_mov_b32 v4, s70"); A("v_mov_b32 v5, s76"); A("v_mov_b32 v6, s72"); A("v_mov_b32 v7, s82")
        A("v_mov_b32 v8, s83"); A("v_mov_b32 v9, s78"); A("v_mov_b32 v10, s80"); A("v_mov_b32 v11, s74")
        A("s_mov_b64 exec, 1")
        A("global_store_dwordx4 v2, v[4:7], s[16:17]")
        A("global_store_dwordx4 v2, v[8:11], s[16:17] offset:16")
        A("s_waitcnt vmcnt(0)")
    if amp:
        for i in range(len(o)):
            if o[i].strip() == "s_endpgm": o[i] = "  s_branch L_amp"
        Lb("L_amp")
        A("s_waitcnt vmcnt(0)")
        A("s_memrealtime s[74:75]"); A("s_waitcnt lgkmcnt(0)")
        A("s_sub_u32 s74, s74, s70"); A(f"s_mul_i32 s76, s74, {amp}")
        Lb("L_amp2")
        A("s_memrealtime s[72:73]"); A("s_waitcnt lgkmcnt(0)")
        A("s_sub_u32 s72, s72, s70"); A(f"s_cmp_lt_u32 s72, s76"); A("s_cbranch_scc1 L_amp2")
    Lb("L_end")
    A("s_endpgm")
    o.append('.section .rodata,"a"'); o.append(".p2align 6"); o.append(f".amdhsa_kernel {KN}")
    A(f".amdhsa_next_free_vgpr {nv}"); A(".amdhsa_next_free_sgpr 96"); A(f".amdhsa_accum_offset {nv}")
    A(".amdhsa_group_segment_fixed_size 0"); A(".amdhsa_kernarg_size 56"); A(".amdhsa_user_sgpr_count 2")
    A(".amdhsa_user_sgpr_kernarg_segment_ptr 1"); A(".amdhsa_system_sgpr_workgroup_id_x 1")
    A(".amdhsa_float_denorm_mode_32 3")
    o.append(".end_amdhsa_kernel")
    return "\n".join(o) + "\n"

if __name__ == "__main__":
    out = sys.argv[1]
    kw = {}
    for kv in sys.argv[2:]:
        k, v = kv.split("=")
        kw[k] = int(v) if v.lstrip("-").isdigit() else v
    open(out, "w").write(gen(**kw))
```

```python
import sys, struct, math
KN = "standalone__linear_kernel_rfa__decode_kernel"
def f2u(x): return struct.unpack("<I", struct.pack("<f", x))[0]

HEADER = """; Kernarg layout for this problem (56 bytes, ptrs only, base s[0:1]):
"""

def ztab(G, S, z0=0.0, top=1.0):
    from statistics import NormalDist
    z = [NormalDist().inv_cdf((i + 1 - 0.375) / (G + 0.25)) for i in range(G)]
    return z

def gen(W=20, WB=28, WT=16, ck="32", CG=3, SB="30", ST="20", G=8, zB=0, zT=0, cvx=0,
        F1=48, stamp=0, outf="", prio=3, stf="sc1", ldf="sc1", wmf="sc1+nt", chkf="sc1+nt", flf="", vpre=1, amp=0, B0=0, xm=2,
        probe=0, pb=20, sh=0, sp=0, xr=0, WM=4, force=0, omf="", rot=1, nochk=0, nobump=0, BS=0, BE=5, kT=4, kB=6, bias=18, mx=4, bq="sc1", per=1, bT=0, nost=0, nold=0, dl=1, pw=0, late=0, pipe=0, fb=0, tw=0):
    NWG = 256
    fix = lambda x: x.replace("none", "").replace("+", " ")
    outf, stf, ldf, chkf, flf, wmf, omf = fix(outf), fix(stf), fix(ldf), fix(chkf), fix(flf), fix(wmf), fix(omf)
    cks = [int(x) for x in str(ck).split(",") if x not in ("", "none")]
    SBs = [int(x) for x in str(SB).split(",")]; STs = [int(x) for x in str(ST).split(",")]
    while len(SBs) < len(cks): SBs.append(SBs[-1])
    while len(STs) < len(cks): STs.append(STs[-1])
    o = []
    A = lambda s: o.append("  " + s)
    Lb = lambda s: o.append(s + ":")
    PHI = 65536
    OMG = 131072
    QL = OMG + 8192
    MB = QL + 512
    lds = QL + 1024
    o.append(HEADER.rstrip("\n"))
    o.append(f"; @launch grid=({NWG},1,1) block=(320,1,1) lds={lds}")
    o.append('.amdgcn_target "amdgcn-amd-amdhsa--gfx950"')
    o.append(".text"); o.append(f".globl {KN}"); o.append(".p2align 8"); o.append(f".type {KN},@function"); Lb(KN)

    sK, sV, sOM, sQ, sOUT, sWS, sDBG = 20, 24, 28, 32, 36, 40, 44
    sOff, sRing, sCnt = 48, 49, 50
    sMask, sL2E = 54, 62
    sHead, sPart, sC = 64, 65, 66
    sEv, sFin = 84, 85
    sSl = 86
    sT = 51
    sFam, sTF = 82, 83

    A(f"s_load_dwordx8 s[4:11], s[0:1], 0")
    A(f"s_load_dwordx4 s[12:15], s[0:1], 32")
    A(f"s_load_dwordx2 s[16:17], s[0:1], 48")
    if stamp or amp or probe: A("s_memrealtime s[70:71]")
    A("v_lshrrev_b32 v1, 6, v0")
    A(f"s_lshr_b32 s18, s2, 8")
    A("v_readfirstlane_b32 s3, v1")
    A("s_cbranch_scc1 L_end")
    A(f"s_lshr_b32 s{sFam}, s2, 3")
    if xm == 1:
        A("s_and_b32 s18, s2, 7"); A("s_lshl_b32 s18, s18, 3"); A("s_bfe_u32 s19, s2, 0x30003"); A("s_or_b32 s18, s18, s19")
        A("s_and_b32 s2, s2, 0xc0"); A("s_or_b32 s2, s2, s18")
    if xm == 2:
        A("s_and_b32 s18, s2, 7"); A("s_lshl_b32 s18, s18, 5"); A(f"s_or_b32 s2, s{sFam}, s18")
    A("v_and_b32 v0, 63, v0")
    A("v_and_b32 v1, 32, v0")
    A("v_lshlrev_b32 v4, 4, v0")
    A("v_xor_b32 v4, v4, v1")
    A("v_xor_b32 v5, 64, v4")
    A("v_xor_b32 v6, 0x80, v4")
    A("v_xor_b32 v7, 64, v6")
    A(f"s_lshl_b32 s{sOff}, s2, 20")
    A("s_cmp_lg_u32 s3, 0")
    A("s_cbranch_scc1 L_cons")

    sJ, sBE, sTE, sR = 50, 51, 52, 53
    ev = [(256, "v"), (512, "end")]
    for i, c in enumerate(cks):
        ev.append((4 * (131 - (c - CG)), f"b{i}"))
    if BS: ev.append((4 * (131 - BS), "r"))
    steer = bool(cks) or BS
    ev.sort()
    assert len(set(j for j, _ in ev)) == len(ev) and all(j % 4 == 0 and j >= 12 for j, _ in ev) and ev[-1][1] == "end"
    if prio: A(f"s_setprio {prio}")
    A(f"s_mov_b32 s{sK+2}, {1<<28}"); A(f"s_mov_b32 s{sK+3}, 0x20000")
    A(f"s_mov_b32 s{sJ}, 0")
    skew = pb != 20 or sh or sp
    if skew:
        M = 7 << pb; sb = pb - 12
        A("s_lshr_b32 s56, s2, 3"); A("s_and_b32 s57, s2, 7")
        A(f"s_mul_i32 s58, s56, {sh}"); A(f"s_mul_i32 s59, s57, {sp}"); A("s_add_u32 s58, s58, s59"); A("s_and_b32 s58, s58, 0xff")
        A(f"s_lshr_b32 s59, s58, {sb}"); A(f"s_lshl_b32 s59, s59, {sb + 15}")
        A(f"s_and_b32 s58, s58, {(1 << sb) - 1}"); A("s_lshl_b32 s58, s58, 12"); A("s_or_b32 s58, s58, s59")
        A("s_lshl_b32 s56, s56, 23"); A(f"s_lshl_b32 s57, s57, {pb}"); A("s_or_b32 s57, s57, s56")
        if xr: A("s_xor_b32 s57, s57, s58"); A("s_mov_b32 s58, 0")
        A(f"s_xor_b32 s{sOff}, s57, s58"); A(f"s_or_b32 s58, s58, {M:#x}")
    if steer: A(f"s_mov_b32 s{sBE}, {B0}"); A(f"s_mov_b32 s{sTE}, 0")
    A(f"s_movk_i32 s{sEv}, {ev[0][0]}")
    A(f"s_mov_b32 m0, 0")
    if stamp: A("s_mov_b32 s78, 0"); A("s_mov_b32 s80, 0")
    A("s_waitcnt lgkmcnt(0)")
    A(f"s_mov_b32 s{sK}, s6"); A(f"s_mov_b32 s{sK+1}, s7")
    if probe == 1:
        A(f"buffer_load_dwordx4 v4, s[{sK}:{sK+3}], s{sOff} offen nt lds")
        A("s_waitcnt vmcnt(0)"); A("s_memrealtime s[74:75]"); A("s_mov_b32 s76, s70")
    Lb("L_ld")
    if steer:
        A(f"s_cmp_lt_u32 s{sJ}, s{sTE}")
        A("s_cbranch_scc0 L_nt")
        A(f"s_waitcnt vmcnt({WT-4})")
        Lb("L_nt")
        A(f"s_cmp_lt_u32 s{sJ}, s{sBE}")
        A("s_cbranch_scc1 L_w")
    A(f"s_waitcnt vmcnt({W-4})")
    if steer:
        Lb("L_w")
        A(f"s_waitcnt vmcnt({WB-4})")
    for n in range(4):
        A(f"buffer_load_dwordx4 v{4+n}, s[{sK}:{sK+3}], s{sOff} offen offset:{n*1024} nt lds")
    A(f"s_add_u32 s{sJ}, s{sJ}, 1")
    if skew:
        A("s_addk_i32 s58, 0x1000"); A(f"s_or_b32 s58, s58, {M:#x}")
        A(f"s_and_b32 s{sOff}, s58, {0x7fffff & ~M:#x}"); A(f"s_xor_b32 s{sOff}, s{sOff}, s57")
    else:
        A(f"s_addk_i32 s{sOff}, 0x1000")
    A(f"s_lshl_b32 s18, s{sJ}, 12")
    A(f"s_and_b32 m0, s18, 0xffff")
    A(f"s_and_b32 s18, s{sJ}, 3")
    A("s_cbranch_scc1 L_ld")
    A(f"s_cmp_lt_u32 s{sJ}, 12")
    A("s_cbranch_scc1 L_ld")
    A("s_barrier")
    A(f"s_cmp_lg_u32 s{sJ}, s{sEv}")
    A("s_cbranch_scc1 L_ld")
    for i, (j, nm) in enumerate(ev):
        if nm == "end": break
        if nm == "r":
            assert ev[i+1][1] == "end"
            A(f"s_cmpk_eq_u32 s{sJ}, 512")
            A(f"s_cbranch_scc1 L_ev{i+1}")
            A(f"s_add_u32 s{sEv}, s{sJ}, {4 * per}"); A(f"s_min_u32 s{sEv}, s{sEv}, 512")
            A(f"s_cmpk_gt_u32 s{sJ}, {4 * (131 - BE)}")
            A("s_cbranch_scc1 L_ld")
        else:
            A(f"s_cmpk_lg_u32 s{sJ}, {j}")
            A(f"s_cbranch_scc1 L_ev{i+1}")
            A(f"s_movk_i32 s{sEv}, {ev[i+1][0]}")
        if nm == "v":
            A(f"s_mov_b32 s{sK}, s8"); A(f"s_mov_b32 s{sK+1}, s9")
            if not skew: A(f"s_lshl_b32 s{sOff}, s2, 20")
            A(f"v_mov_b32 v9, {MB}")
            if stamp: A("s_memrealtime s[76:77]")
            if probe == 2:
                A("s_waitcnt vmcnt(0)"); A("s_memrealtime s[76:77]"); A("s_waitcnt lgkmcnt(0)")
                A(f"buffer_load_dwordx4 v4, s[{sK}:{sK+3}], s{sOff} offen nt lds")
                A("s_waitcnt vmcnt(0)"); A("s_memrealtime s[74:75]")
        else:
            A(f"ds_read_b32 v8, v9 offset:4")
            A("s_waitcnt lgkmcnt(0)")
            A(f"v_readfirstlane_b32 s{sR}, v8")
            if stamp and nm != "r": A(f"s_lshr_b32 s78, s{sR}, 16")
            if stamp and nm == "r": A(f"s_add_u32 s80, s80, s{sR}")
            A(f"s_and_b32 s{sBE}, s{sR}, 0xff"); A(f"s_add_u32 s{sBE}, s{sBE}, s{sJ}")
            A(f"s_bfe_u32 s{sTE}, s{sR}, 0x80008"); A(f"s_add_u32 s{sTE}, s{sTE}, s{sJ}")
        A("s_branch L_ld")
        Lb(f"L_ev{i+1}")
    A("s_waitcnt vmcnt(16)")
    A("s_barrier")
    A("s_waitcnt vmcnt(0)")
    A("s_barrier")
    if stamp:
        A("s_memrealtime s[72:73]")
        A("s_branch L_fin")
    else:
        if probe:
            A("s_waitcnt lgkmcnt(0)")
            A("s_sub_u32 s74, s74, s76"); A("s_mul_i32 s74, s74, 10"); A("s_add_u32 s74, s74, 10000")
            Lb("L_spin")
            A("s_memrealtime s[72:73]"); A("s_waitcnt lgkmcnt(0)")
            A("s_sub_u32 s72, s72, s70"); A(f"s_cmp_lt_u32 s72, s74"); A("s_cbranch_scc1 L_spin")
        A("s_endpgm")

    vM8, vEps, vOnes = 8, 9, 12
    vKb = 16
    vVb = 20
    vAd = 24
    vPa = 28
    vSn = 29
    vFl = 30
    vDp = 31
    vKP = 32; vG = 36; vX = 40; vT = 42; vY = 44; vPH = 48; vPQ = 52
    vSd = 56
    vL4 = 57
    vZero = 58
    vMB = 59
    vSl = 61
    vEo = 62
    vTg = 60
    vOM = 64; vK = 96; vB = 128; vA = 144; vACC = 148
    nv = 168
    sOwn = 94
    GRP = 2048
    CTR = 128 * GRP
    HS = 8448
    BRD = CTR + 32 * HS
    WSB = BRD + 16 * HS
    DO = 1024
    OOB = 0x7ff00000
    o.append(".p2align 6")
    Lb("L_cons")
    A(f"s_sub_u32 s{sC}, s3, 1")
    A(f"s_lshr_b32 s{sHead}, s2, 3")
    if xm and not rot: A(f"s_and_b32 s{sPart}, s2, 7")
    elif xm:
        A(f"s_lshr_b32 s{sPart}, s2, 5"); A(f"s_sub_u32 s{sPart}, s2, s{sPart}"); A(f"s_and_b32 s{sPart}, s{sPart}, 7")
    else: A(f"s_sub_u32 s{sPart}, s2, s{sHead}"); A(f"s_and_b32 s{sPart}, s{sPart}, 7")
    A(f"s_lshl_b32 s88, s{sFam}, 2")
    if G > 8: A(f"s_and_b32 s{sFam}, s{sFam}, {(~(G // 8 - 1)) & 31}")
    A(f"s_mov_b32 s{sOM+2}, 8192"); A(f"s_mov_b32 s{sOM+3}, 0x20000")
    A(f"s_mov_b32 s{sQ+2}, 16384"); A(f"s_mov_b32 s{sQ+3}, 0x20000")
    A(f"s_mov_b32 s{sWS+2}, {WSB}"); A(f"s_mov_b32 s{sWS+3}, 0x20000")
    A(f"s_mov_b32 s{sOUT+2}, 16384"); A(f"s_mov_b32 s{sOUT+3}, 0x20000")
    A(f"s_mov_b32 s{sDBG+2}, 256"); A(f"s_mov_b32 s{sDBG+3}, 0x20000")
    A(f"s_lshl_b32 s19, s{sHead}, 9")
    A(f"s_mov_b32 m0, {OMG}")
    A(f"s_mov_b32 s18, 4096")
    A(f"s_cmp_lg_u32 s{sC}, 0")
    A("s_waitcnt lgkmcnt(0)")
    A(f"s_mov_b32 s{sOM}, s10"); A(f"s_mov_b32 s{sOM+1}, s11")
    A(f"s_mov_b32 s{sQ}, s4"); A(f"s_mov_b32 s{sQ+1}, s5")
    A("s_cbranch_scc1 L_noom")
    for n in range(4):
        A(f"buffer_load_dwordx4 v{4+n}, s[{sOM}:{sOM+3}], 0 offen offset:{n*1024} {omf} lds")
    A(f"s_mov_b32 m0, {OMG+4096}"); A("s_nop 0")
    for n in range(4):
        A(f"buffer_load_dwordx4 v{4+n}, s[{sOM}:{sOM+3}], s18 offen offset:{n*1024} {omf} lds")
    A(f"s_mov_b32 m0, {QL}"); A("s_nop 0")
    A(f"buffer_load_dwordx4 v4, s[{sQ}:{sQ+3}], s19 offen {omf} lds")
    Lb("L_noom")
    A(f"s_mov_b32 s{sWS}, s16"); A(f"s_mov_b32 s{sWS+1}, s17")
    A(f"s_mov_b32 s{sOUT}, s12"); A(f"s_mov_b32 s{sOUT+1}, s13")
    A(f"s_mov_b32 s{sDBG}, s14"); A(f"s_mov_b32 s{sDBG+1}, s15")
    if vpre:
        A(f"s_mov_b32 s{sV}, s8"); A(f"s_mov_b32 s{sV+1}, s9"); A(f"s_mov_b32 s{sV+2}, {1<<28}"); A(f"s_mov_b32 s{sV+3}, 0x20000")
    A("v_lshrrev_b32 v5, 4, v0")
    A("v_and_b32 v1, 15, v0")
    A(f"s_lshl_b32 s93, s{sHead}, 2")
    A(f"v_lshlrev_b32 v{vL4}, 2, v0"); A(f"v_mov_b32 v{vZero}, 0"); A(f"v_mov_b32 v{vMB}, {MB}")
    A(f"s_add_u32 s67, s93, s{sC}"); A("s_lshl_b32 s67, s67, 11")
    A(f"s_lshl_b32 s68, s{sPart}, 8"); A("s_add_u32 s68, s68, s67")
    A(f"s_mul_i32 s69, s{sHead}, {HS}"); A(f"s_add_u32 s69, s69, {CTR}")
    A(f"s_lshl_b32 s63, s{sPart}, 7"); A("s_add_u32 s63, s63, s69")
    A(f"s_mul_i32 s86, s{sFam}, {HS}"); A(f"s_add_u32 s86, s86, {CTR}")
    A(f"s_lshl_b32 s{sFam}, s{sFam}, 2")
    A("v_and_b32 v6, 3, v0"); A(f"v_mov_b32 v7, {OOB:#x}")
    A("v_cmp_eq_u32 vcc, 0, v6")
    A(f"v_or_b32 v2, s{sC}, v0")
    A("v_and_b32 v3, 7, v0")
    A(f"v_cndmask_b32 v{vSn}, v7, v{vL4}, vcc")
    A("v_cmp_eq_u32 vcc, 0, v2")
    A(f"v_cmp_eq_u32 s[{sOwn}:{sOwn+1}], 0, v3")
    A(f"v_lshlrev_b32 v{vDp}, 7, v3")
    A(f"v_mul_u32_u24 v{vTg}, 6, v6")
    A("v_and_b32 v6, 7, v1"); A("v_lshlrev_b32 v6, 1, v6")
    A(f"v_cndmask_b32 v{vSd}, v7, v{vZero}, vcc")
    A(f"s_lshl_b32 s18, s{sC}, 6"); A("v_or_b32 v2, s18, v0"); A("v_cmp_gt_u32 vcc, 8, v2")
    A("v_lshlrev_b32 v2, 4, v0"); A(f"v_mov_b32 v{vEo}, v7")
    A(f"v_cndmask_b32 v{vSl}, v7, v2, vcc")
    A(f"v_cndmask_b32 v{vDp}, v{vDp}, v7, s[{sOwn}:{sOwn+1}]")
    A(f"v_writelane_b32 v{vEo}, s93, 0"); A(f"v_writelane_b32 v{vEo}, s{sFam}, 1"); A(f"v_writelane_b32 v{vEo}, 0, 2")
    A("v_xor_b32 v6, v6, v5")
    A("v_lshlrev_b32 v6, 4, v6"); A(f"v_lshl_add_u32 v{vKb}, v1, 9, v6")
    for jj in range(1, 4): A(f"v_xor_b32 v{vKb+jj}, {jj*64}, v{vKb}")
    A(f"v_lshlrev_b32 v11, 4, v5")
    A("v_lshrrev_b32 v6, 2, v0")
    A("v_and_b32 v7, 7, v6")
    A(f"s_lshl_b32 s18, s{sC}, 2")
    A("v_xor_b32 v7, s18, v7")
    A("v_lshlrev_b32 v7, 5, v7"); A("v_lshl_add_u32 v7, v6, 9, v7")
    A("v_and_b32 v6, 3, v0"); A(f"v_lshl_add_u32 v{vVb}, v6, 3, v7")
    for t in range(1, 4): A(f"v_xor_b32 v{vVb+t}, {t*32}, v{vVb}")
    for r in range(4):
        m = (1 << r) | (1 << (20 + r)) | (1 << (40 + r)) | (1 << (60 + r))
        A(f"s_mov_b32 s{sMask+2*r}, {m & 0xffffffff:#x}"); A(f"s_mov_b32 s{sMask+2*r+1}, {m >> 32:#x}")
    A(f"s_mov_b32 s{sL2E}, {f2u(math.log2(math.e)/4):#x}")
    for r in range(4): A(f"v_mov_b32 v{vOnes+r}, 0x3f803f80")
    A(f"v_mov_b32 v{vM8}, {f2u(-0.125):#x}"); A(f"v_mov_b32 v{vEps}, {f2u(1e-6):#x}")
    for r in range(20): A(f"v_mov_b32 v{vACC+r}, 0")
    A(f"s_and_b32 s18, s{sC}, 1"); A(f"s_lshr_b32 s52, s{sC}, 1")
    A(f"s_lshl_b32 s{sRing}, s52, 14"); A("s_lshl_b32 s53, s18, 13"); A(f"s_add_u32 s{sRing}, s{sRing}, s53")
    A("s_lshl_b32 s53, s52, 10"); A("s_lshl_b32 s18, s18, 3"); A("s_add_u32 s53, s53, s18"); A(f"s_add_u32 s53, s53, {PHI}")
    A(f"v_lshl_add_u32 v{vPa}, v0, 4, s53")
    for jj in range(4): A(f"v_add_u32 v{vAd+jj}, {OMG}, v{vKb+jj}")
    A(f"s_mov_b32 s{sCnt}, 32")
    A(f"s_mov_b32 s{sEv}, 28")
    A(f"s_mov_b32 s{sT}, 0")
    A("s_waitcnt vmcnt(0)")
    A("s_barrier")
    for j in range(8):
        A(f"ds_read_b128 v[{vOM+j*4}:{vOM+j*4+3}], v{vAd+(j&3)} offset:{(j>>2)*256}")
    for jj in range(4): A(f"v_add_u32 v{vAd+jj}, s{sRing}, v{vKb+jj}")
    A("s_cmp_eq_u32 s52, 0")
    A("s_cbranch_scc1 L_k_nb")

    def round4(src, dst):
        A(f"v_cvt_pk_bf16_f32 v{vT}, v{src}, v{src+1}")
        A(f"v_cvt_pk_bf16_f32 v{vT+1}, v{src+2}, v{src+3}")
        A(f"v_lshlrev_b32 v{dst}, 16, v{vT}"); A(f"v_and_b32 v{dst+1}, 0xffff0000, v{vT}")
        A(f"v_lshlrev_b32 v{dst+2}, 16, v{vT+1}"); A(f"v_and_b32 v{dst+3}, 0xffff0000, v{vT+1}")
    def phi_tail():
        round4(vY, vY)
        for r in range(4): A(f"v_mul_f32 v{vY+r}, s{sL2E}, v{vY+r}")
        for r in range(4): A(f"v_exp_f32 v{vY+r}, v{vY+r}")
        A("s_nop 0")
        round4(vY, vY)
        for r in range(4): A(f"v_fmamk_f32 v{vY+r}, v{vY+r}, 0x3e800000, v{vEps}")
        A(f"v_cvt_pk_bf16_f32 v{vPH}, v{vY}, v{vY+1}")
        A(f"v_cvt_pk_bf16_f32 v{vPH+1}, v{vY+2}, v{vY+3}")

    Lb("L_k")
    A("s_barrier")
    Lb("L_k_nb")
    for j in range(8):
        A(f"ds_read_b128 v[{vK+j*4}:{vK+j*4+3}], v{vAd+(j&3)} offset:{(j>>2)*256}")
    A(f"s_add_u32 s{sRing}, s{sRing}, 32768"); A(f"s_and_b32 s{sRing}, s{sRing}, 0xffff")
    for jj in range(4): A(f"v_add_u32 v{vAd+jj}, s{sRing}, v{vKb+jj}")
    for j in range(8):
        kr = f"v[{vK+j*4}:{vK+j*4+3}]"
        A(f"s_waitcnt lgkmcnt({7-j})")
        c = "0" if j == 0 else f"v[{vG}:{vG+3}]"
        A(f"v_mfma_f32_16x16x32_bf16 v[{vG}:{vG+3}], {kr}, {kr}, {c}")
        c = "0" if j == 0 else f"v[{vKP}:{vKP+3}]"
        A(f"v_mfma_f32_16x16x32_bf16 v[{vKP}:{vKP+3}], {kr}, v[{vOM+j*4}:{vOM+j*4+3}], {c}")
    A("s_barrier")
    A("s_nop 7")
    A(f"v_cndmask_b32 v{vX}, 0, v{vG}, s[{sMask}:{sMask+1}]")
    for r in range(1, 4):
        A(f"v_cndmask_b32 v{vX}, v{vX}, v{vG+r}, s[{sMask+2*r}:{sMask+2*r+1}]")
    A(f"v_cvt_pk_bf16_f32 v{vX}, v{vX}, v{vX}")
    A(f"v_and_b32 v{vX}, 0xffff0000, v{vX}")
    round4(vKP, vKP)
    A("s_nop 1")
    A(f"v_mfma_f32_16x16x4_f32 v[{vY}:{vY+3}], v{vX}, v{vM8}, v[{vKP}:{vKP+3}]")
    A("s_nop 9")
    phi_tail()
    A(f"ds_write_b64 v{vPa}, v[{vPH}:{vPH+1}]")
    A(f"v_add_u32 v{vPa}, 2048, v{vPa}")
    A(f"s_sub_u32 s{sCnt}, s{sCnt}, 1")
    A(f"s_cmp_eq_u32 s{sCnt}, s{sEv}")
    A("s_cbranch_scc1 L_ke")
    Lb("L_ke_ret")
    A(f"s_cmp_lg_u32 s{sCnt}, 0")
    A("s_waitcnt lgkmcnt(0)")
    A("s_cbranch_scc1 L_k")

    A(f"v_lshlrev_b32 v{vPa}, 4, v0"); A(f"v_add_u32 v{vPa}, {PHI}, v{vPa}")
    A(f"ds_read_b128 v[{vA}:{vA+3}], v{vPa}")
    A(f"s_mov_b32 s{sRing}, 0")
    A(f"s_mov_b32 s{sCnt}, 64")
    A(f"s_mov_b32 s{sEv}, 60")
    for t in range(4): A(f"v_mov_b32 v{vAd+t}, v{vVb+t}")
    A("s_waitcnt vmcnt(0) lgkmcnt(0)")
    A("s_cmp_lg_u32 s52, 0")
    A("s_cbranch_scc1 L_v_nb")
    Lb("L_v")
    A("s_barrier")
    Lb("L_v_nb")
    for t in range(4):
        A(f"ds_read_b64_tr_b16 v[{vB+t*4}:{vB+t*4+1}], v{vAd+t}")
        A(f"ds_read_b64_tr_b16 v[{vB+t*4+2}:{vB+t*4+3}], v{vAd+t} offset:8192")
    Lb("L_v_mm")
    A(f"v_mfma_f32_16x16x32_bf16 v[{vACC+16}:{vACC+19}], v[{vA}:{vA+3}], v[{vOnes}:{vOnes+3}], v[{vACC+16}:{vACC+19}]")
    A(f"s_add_u32 s{sRing}, s{sRing}, 16384"); A(f"s_and_b32 s{sRing}, s{sRing}, 0xffff")
    A(f"v_add_u32 v{vPa}, 1024, v{vPa}")
    A(f"s_sub_u32 s{sCnt}, s{sCnt}, 1")
    for t in range(4):
        A(f"s_waitcnt lgkmcnt({6-2*t})")
        a = vACC + t * 4
        A(f"v_mfma_f32_16x16x32_bf16 v[{a}:{a+3}], v[{vA}:{vA+3}], v[{vB+t*4}:{vB+t*4+3}], v[{a}:{a+3}]")
    A(f"s_cmp_eq_u32 s{sCnt}, 0")
    A("s_cbranch_scc1 L_epi")
    A(f"ds_read_b128 v[{vA}:{vA+3}], v{vPa}")
    for t in range(4): A(f"v_add_u32 v{vAd+t}, s{sRing}, v{vVb+t}")
    A(f"s_cmp_eq_u32 s{sCnt}, s{sEv}")
    A("s_cbranch_scc1 L_ve")
    Lb("L_ve_ret")
    A("s_waitcnt lgkmcnt(0)")
    A("s_branch L_v")

    P = vOM; D = vOM + 8
    def polls(fl=ldf, P=P):
        D = P + 8
        for i in range(1, 8):
            A(f"buffer_load_dword v{P+i}, v{vL4}, s[{sWS}:{sWS+3}], s67 offen offset:{i*256} {fl}")
        A(f"buffer_load_dwordx2 v[{D}:{D+1}], v{vDp}, s[{sWS}:{sWS+3}], s69 offen offset:{DO} {fl}")
    S = vK
    Lb("L_epi")
    if stamp: A("s_memrealtime s[72:73]")
    for t in (4, 0, 2, 1, 3):
        a = vACC + t * 4
        A(f"v_mul_f32 v{S+t}, v{vPQ}, v{a}")
        for r in range(1, 4): A(f"v_fmac_f32 v{S+t}, v{vPQ+r}, v{a+r}")
        if t == 4: A(f"v_mov_b32 v{S+5}, v{S+4}")
    A(f"v_permlane32_swap_b32 v{S+4}, v{S+5}")
    A(f"v_permlane32_swap_b32 v{S}, v{S+2}")
    A(f"v_permlane32_swap_b32 v{S+1}, v{S+3}")
    A(f"v_add_f32 v{S+4}, v{S+4}, v{S+5}")
    A(f"v_add_f32 v{S}, v{S}, v{S+2}")
    A(f"v_add_f32 v{S+1}, v{S+1}, v{S+3}")
    A(f"v_mov_b32 v{S+5}, v{S+4}")
    A("s_nop 0")
    A(f"v_permlane16_swap_b32 v{S}, v{S+1}")
    A(f"v_permlane16_swap_b32 v{S+4}, v{S+5}")
    A(f"s_cmp_eq_u32 s{sPart}, 0")
    A(f"v_add_f32 v{S+8}, v{S}, v{S+1}")
    A(f"v_add_f32 v{S+12}, v{S+4}, v{S+5}")
    A("s_cbranch_scc1 L_final")
    A(f"v_bfi_b32 v{S+8}, 63, v{vTg}, v{S+8}")
    A(f"s_cmp_lg_u32 s{sFin}, 0")
    A("s_cbranch_scc1 L_far")
    for fl in ("", stf):
        if fl: Lb("L_far")
        for i in range(1, 4):
            A(f"v_mov_b32_dpp v{S+8+i}, v{S+8} quad_perm:[{i},{i},{i},{i}] row_mask:0xf bank_mask:0xf")
        A(f"buffer_store_dwordx4 v[{S+8}:{S+11}], v{vSn}, s[{sWS}:{sWS+3}], s68 offen {fl}")
        A(f"buffer_store_dwordx4 v[{S+12}:{S+15}], v{vSl}, s[{sWS}:{sWS+3}], s63 offen offset:{DO} {fl}")
        if stamp:
            A("s_mov_b32 s76, 0"); A("s_mov_b32 s78, 0"); A("s_mov_b32 s80, 0")
            A("s_branch L_fin")
        else:
            A("s_endpgm")
    def chk(P):
        D = P + 8
        A(f"v_cndmask_b32 v{D}, v{D}, v{S+12}, s[{sOwn}:{sOwn+1}]")
        A(f"v_cndmask_b32 v{D+1}, v{D+1}, v{S+13}, s[{sOwn}:{sOwn+1}]")
        A(f"v_xor_b32 v{P}, v{P+1}, v{vTg}")
        A(f"v_add_f32_dpp v{D+2}, v{D}, v{D} quad_perm:[1,0,3,2] row_mask:0xf bank_mask:0xf")
        A(f"v_xor_b32 v{D+3}, v{P+2}, v{vTg}")
        A(f"v_bitop3_b32 v{P}, v{P+3}, v{P}, v{vTg} bitop3:0xde")
        A(f"v_add_f32_dpp v{D+2}, v{D+2}, v{D+2} quad_perm:[2,3,0,1] row_mask:0xf bank_mask:0xf")
        A(f"v_bitop3_b32 v{D+3}, v{P+4}, v{D+3}, v{vTg} bitop3:0xde")
        A(f"v_bitop3_b32 v{P}, v{P+5}, v{P}, v{vTg} bitop3:0xde")
        A(f"v_add_f32_dpp v{S+1}, v{D+2}, v{D+2} row_half_mirror row_mask:0xf bank_mask:0xf")
        A(f"v_bitop3_b32 v{D+3}, v{P+6}, v{D+3}, v{vTg} bitop3:0xde")
        A(f"v_bitop3_b32 v{P}, v{P+7}, v{P}, v{vTg} bitop3:0xde")
        A(f"v_xor_b32 v{D+1}, v{D+1}, v{S+13}")
        A(f"v_or_b32 v{P}, v{P}, v{D+3}")
        A(f"v_cvt_pk_bf16_f32 v{S+1}, v{S+1}, v{S+1}")
        A(f"v_and_or_b32 v{P}, v{P}, 63, v{D+1}")
        A(f"v_add_f32 v{S}, v{S+8}, v{P+1}")
        A(f"v_cmp_ne_u32 vcc, 0, v{P}")
        A(f"v_and_b32 v{S+1}, 0xffff0000, v{S+1}")
        A(f"v_add_f32 v{P+2}, v{P+2}, v{P+3}")
        A(f"v_add_f32 v{P+4}, v{P+4}, v{P+5}")
        A(f"v_add_f32 v{S+1}, v{S+1}, v{vEps}")
    def fin(P):
        if stamp: A("s_memrealtime s[80:81]")
        A(f"v_add_f32 v{P+6}, v{P+6}, v{P+7}")
        A(f"v_cvt_pk_bf16_f32 v{S+1}, v{S+1}, v{S+1}")
        A(f"v_add_f32 v{S}, v{S}, v{P+2}")
        A(f"v_and_b32 v{S+1}, 0xffff0000, v{S+1}")
        A(f"v_add_f32 v{P+4}, v{P+4}, v{P+6}")
        A(f"v_rcp_f32 v{S+2}, v{S+1}")
        A(f"v_add_f32 v{S}, v{S}, v{P+4}")
        A(f"v_cvt_pk_bf16_f32 v{S}, v{S}, v{S}")
        A(f"v_and_b32 v{S}, 0xffff0000, v{S}")
        A(f"v_mul_f32 v{S+3}, v{S}, v{S+2}")
        A(f"v_fma_f32 v{S+4}, -v{S+1}, v{S+3}, v{S}")
        A(f"v_fma_f32 v{S+3}, v{S+4}, v{S+2}, v{S+3}")
        A(f"v_div_fixup_f32 v{S+3}, v{S+3}, v{S+1}, v{S}")
        A(f"v_cvt_pk_bf16_f32 v{S+3}, v{S+3}, v{S+3}")
        A(f"buffer_store_short v{S+3}, v1, s[{sOUT}:{sOUT+3}], s19 offen {outf}")
        if stamp:
            A("s_branch L_fin")
        else:
            A("s_endpgm")

    if not pipe:
        Lb("L_poll")
        polls()
        A("s_sub_u32 s53, s53, 1")
        A("s_cbranch_scc1 L_end")
        if stamp: A("s_add_u32 s76, s76, 1"); A("s_branch L_chk")
        Lb("L_final")
        if stamp:
            A("s_memrealtime s[78:79]"); A("s_mov_b32 s76, 1")
        Lb("L_chk")
        A("s_waitcnt vmcnt(0)")
        chk(P)
        A("s_cbranch_vccnz L_poll")
        fin(P)
    else:
        P2 = P + 16
        Lb("L_final")
        if stamp:
            A("s_memrealtime s[78:79]"); A("s_mov_b32 s76, 1")
        Lb("L_poll")
        polls(P=P2)
        A("s_waitcnt vmcnt(8)")
        chk(P)
        A("s_cbranch_vccnz L_poll2")
        fin(P)
        Lb("L_poll2")
        polls()
        A("s_sub_u32 s53, s53, 1")
        A("s_cbranch_scc1 L_end")
        if stamp: A("s_add_u32 s76, s76, 2")
        A("s_waitcnt vmcnt(8)")
        chk(P2)
        A("s_cbranch_vccnz L_poll")
        fin(P2)

    Lb("L_ke")
    A(f"s_cmp_eq_u32 s{sCnt}, 24")
    A("s_cbranch_scc1 L_ke2")
    if vpre:
        A(f"buffer_load_dword v3, v{vSd}, s[{sV}:{sV+3}], s{sOff} offen nt")
    A(f"s_cmp_lg_u32 s{sPart}, 0")
    A("s_cbranch_scc1 L_ke_ret")
    A(f"s_mov_b32 s{sEv}, 24")
    A("v_lshlrev_b32 v2, 4, v0")
    A(f"buffer_load_dword v{vB+10}, v{vZero}, s[{sWS}:{sWS+3}], s69 offen {chkf}")
    A(f"buffer_load_dwordx2 v[{vB+8}:{vB+9}], v{vDp}, s[{sWS}:{sWS+3}], s69 offen offset:{DO} {chkf}")
    if not nochk:
        A(f"buffer_load_dwordx4 v[{vB}:{vB+3}], v2, s[{sWS}:{sWS+3}], s67 offen {chkf}")
        A(f"buffer_load_dwordx4 v[{vB+4}:{vB+7}], v2, s[{sWS}:{sWS+3}], s67 offen offset:1024 {chkf}")
    A("s_branch L_ke_ret")
    Lb("L_ke2")
    A("s_waitcnt vmcnt(0)")
    A(f"v_readfirstlane_b32 s{sT}, v{vB+10}")
    A("s_getreg_b32 s18, hwreg(HW_REG_XCC_ID, 0, 4)")
    A(f"s_add_u32 s{sT}, s{sT}, 1"); A(f"s_and_b32 s{sT}, s{sT}, 0xffffff"); A(f"s_bitset1_b32 s{sT}, 31")
    A("s_lshl_b32 s18, s18, 24"); A(f"s_or_b32 s{sT}, s{sT}, s18")
    for h in range(2):
        g = vB + 4 * h
        A(f"v_xor_b32 v3, s{sT}, v{g}")
        for j in range(1, 4):
            A(f"s_lshr_b32 s18, s{sT}, {6*j}")
            A(f"v_bitop3_b32 v3, v{g+j}, v3, s18 bitop3:0xde")
        A("v_and_b32 v3, 63, v3")
        A("v_cmp_eq_u32 vcc, 0, v3")
        A(f"v_xor_b32 v{g}, 1, v{g}")
        A(f"s_cbranch_vccz L_kc{h}")
        A("s_mov_b64 exec, vcc")
        A(f"buffer_store_dword v{g}, v2, s[{sWS}:{sWS+3}], s67 offen offset:{1024*h} {stf}")
        A("s_mov_b64 exec, -1")
        Lb(f"L_kc{h}")
    A(f"v_cmp_eq_u32 vcc, s{sT}, v{vB+9}")
    A(f"s_cbranch_vccz L_ke_ret")
    A("s_mov_b64 exec, vcc")
    A(f"buffer_store_dword v{vZero}, v{vDp}, s[{sWS}:{sWS+3}], s69 offen offset:{DO+4} {stf}")
    A("s_mov_b64 exec, -1")
    A("s_branch L_ke_ret")

    T3 = WM + 1
    evs0 = [(60, "q"), (F1, "f")]
    for k, c in enumerate(cks): evs0 += [(c, f"a{k}"), (c - CG, f"b{k}")]
    if not cks: evs0 += [(F1 - 4, "e")]
    evs0 += [(T3, "t3"), (WM, "t4")]
    if WM > 1: evs0 += [(1, "t5")]
    assert all(evs0[i][0] > evs0[i+1][0] for i in range(len(evs0) - 1))
    nxt = {nm: evs0[i+1][0] for i, (_, nm) in enumerate(evs0[:-1])}
    first_at = evs0[2][1]
    Lb("L_ve")
    if BS:
        assert BE >= T3 and BS + 4 < evs0[2][0]
        A(f"s_cmp_lg_u32 s{sC}, 1")
        A("s_cbranch_scc1 L_ve0")
        A(f"s_cmp_lt_u32 s{sCnt}, {BE}")
        A("s_cbranch_scc1 L_ve0")
        A(f"s_cmp_le_u32 s{sCnt}, {BS + 4}")
        A("s_cbranch_scc1 L_bd")
        Lb("L_ve0")
    for n, nm in reversed(evs0[1:]):
        A(f"s_cmp_eq_u32 s{sCnt}, {n}")
        A(f"s_cbranch_scc1 L_ve_{nm}")
    A(f"v_add_u32 v2, {QL}, v11")
    for j in range(8):
        A(f"ds_read_b128 v[{vK+j*4}:{vK+j*4+3}], v2 offset:{j*64}")
    A(f"v_mov_b32 v5, s{sT}")
    A(f"s_cmp_eq_u32 s{sC}, 0")
    A(f"s_cselect_b32 s{sEv}, {nxt['q']}, {T3}")
    if BS:
        A(f"s_cmp_eq_u32 s{sC}, 1")
        A(f"s_cselect_b32 s{sEv}, {BS + 4}, s{sEv}")
    A("v_lshlrev_b32 v1, 1, v0")
    A(f"s_lshl_b32 s18, s{sC}, 7"); A(f"s_add_u32 s19, s18, s19")
    A("s_waitcnt lgkmcnt(0)")
    for j in range(8):
        qr = f"v[{vK+j*4}:{vK+j*4+3}]"
        c = "0" if j == 0 else f"v[{vKP}:{vKP+3}]"
        A(f"v_mfma_f32_16x16x32_bf16 v[{vKP}:{vKP+3}], v[{vOM+j*4}:{vOM+j*4+3}], {qr}, {c}")
        c = "0" if j == 0 else f"v[{vG}:{vG+3}]"
        A(f"v_mfma_f32_16x16x32_bf16 v[{vG}:{vG+3}], {qr}, {qr}, {c}")
    A("s_nop 7")
    round4(vKP, vKP)
    A(f"v_cvt_pk_bf16_f32 v{vX}, v{vG}, v{vG}")
    A(f"v_and_b32 v{vX}, 0xffff0000, v{vX}")
    for r in range(4): A(f"v_fma_f32 v{vY+r}, v{vX}, v{vM8}, v{vKP+r}")
    phi_tail()
    A(f"v_lshlrev_b32 v{vPQ}, 16, v{vPH}"); A(f"v_and_b32 v{vPQ+1}, 0xffff0000, v{vPH}")
    A(f"v_lshlrev_b32 v{vPQ+2}, 16, v{vPH+1}"); A(f"v_and_b32 v{vPQ+3}, 0xffff0000, v{vPH+1}")
    A(f"s_or_b32 s18, s{sPart}, s{sC}")
    A("s_cbranch_scc1 L_ve_ret")
    A("v_mov_b32 v6, 1")
    A(f"buffer_store_dword v5, v{vSd}, s[{sDBG}:{sDBG+3}], s93 offen {stf}")
    if not nobump: A(f"buffer_atomic_add v6, v{vSd}, s[{sWS}:{sWS+3}], s69 offen sc1")
    A("s_branch L_ve_ret")

    Lb("L_ve_f")
    A(f"s_mov_b32 s{sEv}, {nxt['f']}")
    A(f"buffer_load_dword v{vFl}, v{vEo}, s[{sDBG}:{sDBG+3}], 0 offen {flf}")
    A("s_branch L_ve_ret")
    def get_epoch():
        A(f"s_mov_b32 s53, {1<<20}")
        Lb("L_ep")
        A("s_waitcnt vmcnt(0)")
        A(f"v_readlane_b32 s{sT}, v{vFl}, 0")
        A(f"v_readlane_b32 s{sTF}, v{vFl}, 1")
        A(f"v_readlane_b32 s87, v{vFl}, 2")
        A(f"s_and_b32 s18, s{sT}, s{sTF}")
        A(f"s_and_b32 s18, s18, s87")
        A("s_cbranch_scc1 L_ep_ok")
        A(f"buffer_load_dword v{vFl}, v{vEo}, s[{sDBG}:{sDBG+3}], 0 offen sc1")
        A("s_sub_u32 s53, s53, 1")
        A("s_cbranch_scc0 L_ep")
        A("s_waitcnt vmcnt(0)")
        Lb("L_ep_ok")
        A(f"v_mov_b32 v2, s{sT}")
        A(f"ds_write_b32 v{vMB}, v2")
        A(f"v_mov_b32 v3, s87")
        A(f"ds_write_b32 v{vMB}, v3 offset:8")
    FB = G.bit_length()
    z = ztab(G, 1)
    for k, c in enumerate(cks):
        sh = 2 + FB * k
        assert sh + FB <= 24
        Lb(f"L_ve_a{k}")
        if k == 0: get_epoch()
        A(f"s_mov_b32 s{sEv}, {nxt['a%d' % k]}")
        A(f"v_mov_b32 v{vFl}, {1 << sh:#x}")
        A(f"buffer_atomic_add v{vFl}, v{vSd}, s[{sWS}:{sWS+3}], s86 offen sc0 sc1")
        A("s_branch L_ve_ret")
        Lb(f"L_ve_b{k}")
        A(f"s_mov_b32 s{sEv}, {nxt['b%d' % k]}")
        fB = lambda x: max(0.0, x + zB / 100) * (1 + cvx / 100 * max(0.0, x))
        ent = [min(255, int(round(SBs[k] * fB(x)))) | (min(255, int(round(STs[k] * max(0.0, -x + zT / 100)))) << 8) for x in z]
        o.append("; steering table: " + " ".join("%d/%d" % (e & 255, e >> 8) for e in ent))
        TB = 20
        for q in range(G // 2): A(f"s_mov_b32 s{TB+q}, {ent[2*q] | (ent[2*q+1] << 16):#x}")
        A("s_waitcnt vmcnt(0)")
        A(f"v_readfirstlane_b32 s18, v{vFl}")
        A(f"s_sub_u32 s18, s18, s{sTF}"); A("s_add_u32 s18, s18, 1")
        A(f"s_bfe_u32 s18, s18, {hex(sh | ((FB - 1) << 16))}")
        A("s_lshr_b32 m0, s18, 1")
        A("s_lshl_b32 s53, s18, 4")
        A(f"s_movrels_b32 s54, s{TB}")
        A("s_lshr_b32 s54, s54, s53")
        if stamp:
            A("s_and_b32 s54, s54, 0xffff"); A(f"s_lshl_b32 s18, s18, {16 + 9 - FB}"); A("s_or_b32 s54, s54, s18")
        A("v_mov_b32 v2, s54")
        A(f"ds_write_b32 v{vMB}, v2 offset:4")
        A("s_branch L_ve_ret")
    if not cks:
        Lb("L_ve_e")
        get_epoch()
        A(f"s_mov_b32 s{sEv}, {nxt['e']}")
        A("s_branch L_ve_ret")
    if BS:
        vBv, vBo, vS1 = 2, 3, 5
        Lb("L_bd")
        A(f"s_sub_u32 s{sEv}, s{sCnt}, 1")
        A(f"s_cmp_lg_u32 s{sCnt}, {BS + 4}")
        A("s_cbranch_scc1 L_bd1")
        A(f"ds_read_b32 v{vBv}, v{vMB} offset:8")
        A("s_getreg_b32 s89, hwreg(HW_REG_XCC_ID, 0, 4)")
        A(f"s_mul_i32 s89, s89, {HS}"); A(f"s_add_u32 s89, s89, {BRD}"); A("s_add_u32 s88, s88, s89")
        A(f"v_and_b32 v{vBo}, 0x7c, v{vL4}")
        A(f"v_mov_b32 v{vS1}, {OOB:#x}"); A(f"v_writelane_b32 v{vS1}, 0, 0")
        A("s_waitcnt lgkmcnt(0)")
        A(f"v_readfirstlane_b32 s87, v{vBv}")
        A("s_lshl_b32 s87, s87, 8")
        A(f"s_movk_i32 s91, {256 + bias}")
        if fb:
            A(f"s_cmp_eq_u32 s{sPart}, 0"); A(f"s_cselect_b32 s18, {fb}, 0"); A("s_sub_u32 s91, s91, s18")
        Lb("L_bd1")
        A(f"s_add_u32 s90, s87, s{sCnt}")
        A(f"s_cmp_gt_u32 s{sCnt}, {BS}")
        A("s_cbranch_scc1 L_bd2")
        if per > 1:
            A(f"s_sub_u32 s18, {BS}, s{sCnt}"); A(f"s_and_b32 s18, s18, {per - 1}"); A("s_cbranch_scc1 L_bd2")
        assert dl <= per
        A(f"s_sub_u32 s18, s90, {8 - dl}")
        A(f"s_waitcnt vmcnt({dl - 1})")
        A(f"v_subrev_u32 v{vBv}, s18, v{vBv}")
        A(f"v_cmp_gt_u32 vcc, 16, v{vBv}")
        A("s_nop 1")
        A(f"v_cndmask_b32 v{vBv}, 8, v{vBv}, vcc")
        for sft in (1, 2, 4, 8):
            A("s_nop 1")
            A(f"v_add_u32_dpp v{vBv}, v{vBv}, v{vBv} row_ror:{sft} row_mask:0xf bank_mask:0xf")
        A("s_nop 0")
        A(f"v_readlane_b32 s18, v{vBv}, 0"); A(f"v_readlane_b32 s53, v{vBv}, 16")
        A("s_add_u32 s18, s18, s53")
        A(f"s_sub_i32 s18, s18, s91")
        A(f"s_mul_i32 s53, s18, {kT}"); A(f"s_add_i32 s53, s53, {16 - bT * kT}"); A("s_ashr_i32 s53, s53, 5")
        A("s_max_i32 s53, s53, 0"); A(f"s_min_i32 s53, s53, {mx}"); A("s_lshl_b32 s53, s53, 8")
        if stamp: A("s_add_i32 s54, s18, 64"); A("s_lshl_b32 s54, s54, 16"); A("s_or_b32 s53, s53, s54")
        A(f"s_mul_i32 s18, s18, {-kB}"); A("s_add_i32 s18, s18, 16"); A("s_ashr_i32 s18, s18, 5")
        A("s_max_i32 s18, s18, 0"); A(f"s_min_i32 s18, s18, {mx}"); A("s_or_b32 s18, s18, s53")
        A("v_mov_b32 v6, s18")
        A(f"ds_write_b32 v{vMB}, v6 offset:4")
        Lb("L_bd2")
        A("v_mov_b32 v7, s90")
        if not nost: A(f"buffer_store_dword v7, v{vS1}, s[{sWS}:{sWS+3}], s88 offen")
        A(f"s_cmp_eq_u32 s{sCnt}, {BE}")
        A(f"s_cbranch_scc1 L_bd3")
        if per > 1:
            A(f"s_sub_u32 s18, {BS + dl + 8 * per}, s{sCnt}"); A(f"s_and_b32 s18, s18, {per - 1}"); A("s_cbranch_scc1 L_ve_ret")
        if not nold: A(f"buffer_load_dword v{vBv}, v{vBo}, s[{sWS}:{sWS+3}], s89 offen {fix(bq)}")
        A("s_branch L_ve_ret")
        Lb("L_bd3")
        if BE > T3:
            A(f"s_mov_b32 s{sEv}, {T3}"); A("s_branch L_ve_ret")
    Lb("L_ve_t3")
    A(f"ds_read_b32 v{vFl}, v{vMB}")
    A(f"s_mov_b32 s{sEv}, {WM}")
    A("s_branch L_ve_ret")
    Lb("L_ve_t4")
    A(f"v_readfirstlane_b32 s{sT}, v{vFl}")
    A("s_getreg_b32 s18, hwreg(HW_REG_XCC_ID, 0, 4)")
    A(f"s_mov_b32 s53, {1<<20}")
    A(f"s_bfe_u32 s{sFin}, s{sT}, 0x40018")
    A(f"s_xor_b32 s{sFin}, s{sFin}, s18")
    if force: A(f"s_mov_b32 s{sFin}, 1")
    A(f"v_bfe_u32 v{vTg}, s{sT}, v{vTg}, 6")
    A(f"v_mov_b32 v{S+13}, s{sT}"); A(f"v_mov_b32 v{S+14}, 0"); A(f"v_mov_b32 v{S+15}, 0")
    A(f"s_cmp_lg_u32 s{sPart}, 0")
    A("s_cbranch_scc1 L_ve_pw" if pw else "s_cbranch_scc1 L_ve_ret")
    if WM > 1:
        A(f"s_mov_b32 s{sEv}, 1")
        if not pw: polls(wmf)
        if tw:
            A(f"buffer_load_dword v{P}, v{vZero}, s[{sWS}:{sWS+3}], s67 offen {wmf}")
            A(f"buffer_load_dword v{P}, v{vZero}, s[{sWS}:{sWS+3}], s69 offen offset:{DO} {wmf}")
        A("s_branch L_ve_ret")
        Lb("L_ve_t5")
    if late:
        A("s_waitcnt lgkmcnt(0)")
        A("s_barrier")
        for t in range(4):
            A(f"ds_read_b64_tr_b16 v[{vB+t*4}:{vB+t*4+1}], v{vAd+t}")
            A(f"ds_read_b64_tr_b16 v[{vB+t*4+2}:{vB+t*4+3}], v{vAd+t} offset:8192")
        polls()
        A("s_branch L_v_mm")
    else:
        polls()
        A("s_branch L_ve_ret")
    if pw:
        Lb("L_ve_pw")
        A(f"s_cmp_lg_u32 s{sFin}, 0")
        A("s_cbranch_scc1 L_ve_ret")
        if pw == 1:
            A(f"s_not_b32 s18, s{sT}")
            for i in range(4): A(f"v_mov_b32 v{S+16+i}, s18")
            A(f"buffer_store_dwordx4 v[{S+16}:{S+19}], v{vSn}, s[{sWS}:{sWS+3}], s68 offen")
            A(f"buffer_store_dwordx4 v[{S+16}:{S+19}], v{vSl}, s[{sWS}:{sWS+3}], s63 offen offset:{DO}")
        else:
            A(f"buffer_load_dwordx4 v[{S+16}:{S+19}], v{vSn}, s[{sWS}:{sWS+3}], s68 offen {wmf}")
            A(f"buffer_load_dwordx4 v[{S+20}:{S+23}], v{vSl}, s[{sWS}:{sWS+3}], s63 offen offset:{DO} {wmf}")
        A("s_branch L_ve_ret")

    if stamp:
        Lb("L_fin")
        A("s_waitcnt vmcnt(0)")
        A("s_memrealtime s[74:75]")
        A("s_getreg_b32 s82, hwreg(HW_REG_XCC_ID)")
        A("s_getreg_b32 s83, hwreg(HW_REG_HW_ID)")
        A("s_waitcnt lgkmcnt(0)")
        A(f"s_mul_i32 s19, s2, 5"); A("s_add_u32 s19, s19, s3"); A("s_lshl_b32 s19, s19, 5"); A("s_add_u32 s19, s19, 0x100000")
        A("v_mov_b32 v2, s19")
        A("v_mov_b32 v4, s70"); A("v_mov_b32 v5, s76"); A("v_mov_b32 v6, s72"); A("v_mov_b32 v7, s82")
        A("v_mov_b32 v8, s83"); A("v_mov_b32 v9, s78"); A("v_mov_b32 v10, s80"); A("v_mov_b32 v11, s74")
        A("s_mov_b64 exec, 1")
        A("global_store_dwordx4 v2, v[4:7], s[16:17]")
        A("global_store_dwordx4 v2, v[8:11], s[16:17] offset:16")
        A("s_waitcnt vmcnt(0)")
    if amp:
        for i in range(len(o)):
            if o[i].strip() == "s_endpgm": o[i] = "  s_branch L_amp"
        Lb("L_amp")
        A("s_waitcnt vmcnt(0)")
        A("s_memrealtime s[74:75]"); A("s_waitcnt lgkmcnt(0)")
        A("s_sub_u32 s74, s74, s70"); A(f"s_mul_i32 s76, s74, {amp}")
        Lb("L_amp2")
        A("s_memrealtime s[72:73]"); A("s_waitcnt lgkmcnt(0)")
        A("s_sub_u32 s72, s72, s70"); A(f"s_cmp_lt_u32 s72, s76"); A("s_cbranch_scc1 L_amp2")
    Lb("L_end")
    A("s_endpgm")
    o.append('.section .rodata,"a"'); o.append(".p2align 6"); o.append(f".amdhsa_kernel {KN}")
    A(f".amdhsa_next_free_vgpr {nv}"); A(".amdhsa_next_free_sgpr 96"); A(f".amdhsa_accum_offset {nv}")
    A(".amdhsa_group_segment_fixed_size 0"); A(".amdhsa_kernarg_size 56"); A(".amdhsa_user_sgpr_count 2")
    A(".amdhsa_user_sgpr_kernarg_segment_ptr 1"); A(".amdhsa_system_sgpr_workgroup_id_x 1")
    A(".amdhsa_float_denorm_mode_32 3")
    o.append(".end_amdhsa_kernel")
    return "\n".join(o) + "\n"

if __name__ == "__main__":
    out = sys.argv[1]
    kw = {}
    for kv in sys.argv[2:]:
        k, v = kv.split("=")
        kw[k] = int(v) if v.lstrip("-").isdigit() else v
    open(out, "w").write(gen(**kw))
```

```python
import sys, struct, math
from statistics import NormalDist
KN = "standalone__linear_kernel_rfa__decode_kernel"
def f2u(x): return struct.unpack("<I", struct.pack("<f", x))[0]

HEADER = """; Kernarg layout for this problem (56 bytes, ptrs only, base s[0:1]):
"""

def gen(W=20, WB=28, WT=16, ck=55, CG=2, SB=34, ST=22, G=8,
        BS=32, BE=4, kT=4, kB=10, bias=16, bT=8, per=2, dl=2, fb=0, mxo=0,
        SP=508, WS=32, apf=1, ND=44, T4=2, ldsz=0, nA=0, stp=4, nf=16, L=8, sd0=32, n1=99, wu=0, wuf="sc1", p1f="sc1", p2f="sc1", p3f="sc1", dnf="sc1+nt", a1=0, a2=0, a3=0, a4=0, a5=0, rest="", jo="x30142675", peel=1, skf="nt", asp=-1, ast=256, atf="sc0+sc1", epf="none", bdf="sc1",
        stamp=0, amp=0, prio=3, force=0, xm=1734):
    NWG = 256
    stf = ldf = "sc1"; chkf = "sc1 nt"
    mx = mxo or 4 * per
    fx = lambda f: f.replace('+', ' ').replace('none', '')
    p1f, p2f, p3f, dnf, epf, bdf = map(fx, (p1f, p2f, p3f, dnf, epf, bdf))
    o = []
    A = lambda s: o.append("  " + s)
    Lb = lambda s: o.append(s + ":")
    C = lambda s: o.append("; " + s)
    WA = 65536
    OMG = WA + 16384
    QL = OMG + 8192
    MB = QL + 512
    lds = max(QL + 1024, ldsz)
    o.append(HEADER.rstrip("\n"))
    o.append(f"; @launch grid=({NWG},1,1) block=(320,1,1) lds={lds}")
    o.append('.amdgcn_target "amdgcn-amd-amdhsa--gfx950"')
    o.append(".text"); o.append(f".globl {KN}"); o.append(".p2align 8"); o.append(f".type {KN},@function"); Lb(KN)

    sK, sV, sOM, sQ, sOUT, sWS, sDBG = 20, 24, 28, 32, 36, 40, 44
    sOff, sRing, sCnt = 48, 49, 50
    sT = 51
    sMask, sL2E = 54, 62
    sHead, sPart, sC = 64, 65, 66
    sFam, sTF = 82, 83
    sEv, sFar = 84, 85
    sRaw = 82

    sJ, sBE, sTE, sR, sX, sTab = 50, 51, 52, 53, 54, 56
    A(f"s_load_dwordx2 s[{sK}:{sK+1}], s[0:1], 8")
    if stamp or amp: A("s_memrealtime s[70:71]")
    A("v_readfirstlane_b32 s3, v0")
    A(f"s_lshr_b32 s18, s2, 8")
    A("s_cbranch_scc1 L_end")
    A(f"s_mov_b32 s{sRaw}, s2")
    if xm == 1734 and not rest:
        A("s_and_b32 s18, s2, 31"); A("s_mul_i32 s18, s18, 33"); A("s_bfe_u32 s18, s18, 0x50001")
        A("s_lshr_b32 s2, s2, 5"); A("s_lshl3_add_u32 s2, s18, s2")
    elif xm == 2:
        A("s_and_b32 s18, s2, 7"); A("s_lshl_b32 s18, s18, 5"); A("s_lshr_b32 s2, s2, 3"); A(f"s_or_b32 s2, s2, s18")
    elif xm > 2:
        xb = [int(ch) for ch in str(xm)[-3:]]
        dst = xb + ([int(ch) for ch in str(rest)[-5:]] if rest else [b for b in range(8) if b not in xb])
        assert sorted(dst) == list(range(8))
        A("s_mov_b32 s19, 0")
        for r, d in enumerate(dst):
            A(f"s_bfe_u32 s18, s2, {hex(r | 0x10000)}"); A(f"s_lshl_b32 s18, s18, {d}"); A("s_or_b32 s19, s19, s18")
        A("s_mov_b32 s2, s19")
    A(f"s_lshl_b32 s{sOff}, s2, 20")
    A("s_cmp_lg_u32 s3, 0")
    A("s_cbranch_scc1 L_cons")
    def dma_offsets():
        A("v_and_b32 v1, 32, v0")
        A("v_lshlrev_b32 v4, 4, v0")
        A("v_xor_b32 v4, v4, v1")
        A("v_xor_b32 v5, 64, v4")
        A("v_xor_b32 v6, 0x80, v4")
        A("v_xor_b32 v7, 64, v6")

    C("---- loader wave: 4 KiB groups, a barrier after every fourth")
    ev = [256]
    if ck: ev.append(4 * (131 - (ck - CG)))
    if BS: ev.append(4 * (131 - BS))
    assert ev == sorted(ev) and SP % 4 == 0 and ev[-1] <= SP <= 512 and WS <= 32
    ev.append(SP)
    cols = [sum(1 << int(ch, 16) for ch in tok) for tok in (jo.split(".")[1:] if "." in jo else jo[1:])]
    assert len(cols) == 8
    T = []; acc = 0
    for c in cols: acc ^= c; T.append(acc)
    T.append(acc)
    movk = lambda r, v: A(f"s_mov_b32 s{r}, {v}" if v <= 64 else f"s_movk_i32 s{r}, {v}")
    dma_offsets()
    A(f"s_brev_b32 s{sK+2}, 8"); A(f"s_mov_b32 s{sK+3}, 0x20000")
    A(f"s_mov_b32 m0, 0")
    def loads():
        for n in range(4):
            A(f"buffer_load_dwordx4 v{4+n}, s[{sK}:{sK+3}], s{sOff} offen offset:{n*1024} {fx(skf)} lds")
    def step():
        A(f"s_add_u32 s{sJ}, s{sJ}, 1")
        A(f"s_ff1_i32_b32 m0, s{sJ}")
        A(f"s_lshl_b32 s18, s{sJ}, 12")
        A(f"s_movrels_b32 s19, s{sTab}")
        A(f"s_and_b32 m0, s18, 0xffff")
        A(f"s_xor_b32 s{sX}, s{sX}, s19")
        A(f"s_lshl_b32 s{sOff}, s{sX}, 12")
        A(f"s_and_b32 s18, s{sJ}, 3")
    def group():
        loads(); step()
    def init1():
        A(f"s_mov_b64 s[{sJ}:{sJ+1}], 0"); A(f"s_mov_b32 s{sTE}, 0")
        A(f"s_lshl_b32 s{sX}, s2, 8")
        for k in range(3): movk(sTab + k, T[k])
        A(f"s_load_dwordx2 s[8:9], s[0:1], 16")
        if stamp: A(f"s_load_dwordx2 s[16:17], s[0:1], 48")
    if peel:
        A("s_waitcnt lgkmcnt(0)")
        loads()
        init1()
        A("s_branch L_st")
    else:
        init1()
        A("s_waitcnt lgkmcnt(0)")
        A("s_branch L_w")
    Lb("L_ld")
    A(f"s_cmp_lt_u32 s{sJ}, s{sTE}")
    A("s_cbranch_scc0 L_nt")
    A(f"s_waitcnt vmcnt({WT-4})")
    Lb("L_nt")
    A(f"s_cmp_lt_u32 s{sJ}, s{sBE}")
    A("s_cbranch_scc1 L_w")
    A(f"s_waitcnt vmcnt({W-4})")
    Lb("L_w")
    A(f"s_waitcnt vmcnt({WB-4})")
    loads()
    Lb("L_st")
    step()
    A("s_cbranch_scc1 L_ld")
    A(f"s_cmp_lt_u32 s{sJ}, 12")
    A("s_cbranch_scc1 L_in2")
    A("s_barrier")
    A(f"s_cmp_lg_u32 s{sJ}, s{sEv}")
    A("s_cbranch_scc1 L_ld")
    A(f"s_cmpk_lg_u32 s{sJ}, 256")
    A("s_cbranch_scc1 L_ev1")
    A(f"s_movk_i32 s{sEv}, {ev[1]}")
    A("s_waitcnt lgkmcnt(0)")
    A(f"s_mov_b32 s{sK}, s8"); A(f"s_mov_b32 s{sK+1}, s9")
    A(f"v_mov_b32 v9, {MB}")
    if stamp: A("s_memrealtime s[76:77]")
    A("s_branch L_ld")
    Lb("L_in2")
    for k in range(3, 9): movk(sTab + k, T[k])
    A(f"s_movk_i32 s{sEv}, 256")
    if prio: A(f"s_setprio {prio}")
    if stamp:
        A("s_mov_b32 s78, 0"); A("s_mov_b32 s80, 0")
    A("s_branch L_ld")
    Lb("L_ev1")
    if len(ev) > 2:
        A(f"s_cmpk_eq_u32 s{sJ}, {SP}")
        A("s_cbranch_scc1 L_ev2")
        A(f"ds_read_b32 v8, v9 offset:12")
        if BS:
            A(f"s_add_u32 s{sEv}, s{sJ}, {4 * per}")
            if ck: A(f"s_max_u32 s{sEv}, s{sEv}, {ev[2]}")
            A(f"s_cmpk_gt_u32 s{sEv}, {min(4 * (131 - BE), SP)}")
            A(f"s_cselect_b32 s{sEv}, {SP}, s{sEv}")
        else:
            A(f"s_movk_i32 s{sEv}, {SP}")
        A("s_waitcnt lgkmcnt(0)")
        A(f"v_readfirstlane_b32 s{sR}, v8")
        if stamp: A(f"s_add_u32 s80, s80, s{sR}")
        A(f"s_and_b32 s{sBE}, s{sR}, 0xff"); A(f"s_add_u32 s{sBE}, s{sBE}, s{sJ}")
        A(f"s_bfe_u32 s{sTE}, s{sR}, 0x80008"); A(f"s_add_u32 s{sTE}, s{sTE}, s{sJ}")
        A("s_branch L_ld")
        Lb("L_ev2")
    if stamp: A("s_memrealtime s[78:79]")
    if SP < 512:
        Lb("L_sp")
        A(f"s_waitcnt vmcnt({WS-4})")
        group()
        A("s_cbranch_scc1 L_sp")
        A("s_barrier")
        A(f"s_cmpk_lg_u32 s{sJ}, 512")
        A("s_cbranch_scc1 L_sp")
    A("s_waitcnt vmcnt(16)")
    A("s_barrier")
    A("s_waitcnt vmcnt(0)")
    A("s_barrier")
    if stamp:
        A("s_memrealtime s[72:73]")
        A("s_branch L_fin")
    else:
        A("s_endpgm")

    vM8, vEps = 8, 9
    vM1, vM2, vDen, vQa = 12, 13, 14, 15
    vKb = 16
    vVb = 20
    vAd = 24
    vPa = 28
    vSn = 29
    vFl = 30
    vKP = 32; vG = 36; vX = 40; vT = 42; vY = 44; vPH = 48; vPQ = 52
    vDp = 54
    vPo = 55
    vS0 = 56
    vL4 = 57
    vZero = 58
    vMB = 59
    vL16 = 60
    vSl = 61
    vEo = 62
    vOM = 64; vK = 96; vB = 128; vA = 144; vACC = 148; vE = 164
    nv = 168
    sOwn = 94
    GRP = 2048
    CTR = 128 * GRP
    HS = 8448
    BRD = CTR + 32 * HS
    WSB = BRD + 16 * HS
    if asp >= 0: WSB = 0x200000 + 256 * ast
    DO = 1024
    OOB = 0x7ff00000
    o.append(".p2align 6")
    C("---- consumer waves")
    Lb("L_cons")
    A(f"s_load_dwordx8 s[4:11], s[0:1], 0")
    A(f"s_load_dwordx4 s[12:15], s[0:1], 32")
    A(f"s_load_dwordx2 s[16:17], s[0:1], 48")
    A("v_and_b32 v0, 63, v0")
    dma_offsets()
    A("s_lshr_b32 s3, s3, 6")
    A(f"s_lshr_b32 s{sFam}, s{sRaw}, 3")
    A(f"s_sub_u32 s{sC}, s3, 1")
    A(f"s_lshr_b32 s{sHead}, s2, 3")
    A(f"s_mov_b32 s{sOM+2}, 8192"); A(f"s_mov_b32 s{sOM+3}, 0x20000")
    A(f"s_mov_b32 s{sQ+2}, 16384"); A(f"s_mov_b32 s{sQ+3}, 0x20000")
    A(f"s_lshl_b32 s19, s{sHead}, 9")
    A(f"s_mov_b32 m0, {OMG}")
    A(f"s_mov_b32 s18, 4096")
    A(f"s_cmp_lg_u32 s{sC}, 0")
    A("s_waitcnt lgkmcnt(0)")
    A(f"s_mov_b32 s{sOM}, s10"); A(f"s_mov_b32 s{sOM+1}, s11")
    A(f"s_mov_b32 s{sQ}, s4"); A(f"s_mov_b32 s{sQ+1}, s5")
    A("s_cbranch_scc1 L_noom")
    for n in range(4):
        A(f"buffer_load_dwordx4 v{4+n}, s[{sOM}:{sOM+3}], 0 offen offset:{n*1024} lds")
    A(f"s_mov_b32 m0, {OMG+4096}"); A("s_nop 0")
    for n in range(4):
        A(f"buffer_load_dwordx4 v{4+n}, s[{sOM}:{sOM+3}], s18 offen offset:{n*1024} lds")
    A(f"s_mov_b32 m0, {QL}"); A("s_nop 0")
    if a5: A("s_bfm_b64 exec, 32, 0")
    A(f"buffer_load_dwordx4 v4, s[{sQ}:{sQ+3}], s19 offen {'nt' if a5 == 2 else ''} lds")
    if a5: A("s_mov_b64 exec, -1")
    Lb("L_noom")
    A(f"s_lshr_b32 s{sPart}, s2, {5 if xm else 3}"); A(f"s_sub_u32 s{sPart}, s2, s{sPart}"); A(f"s_and_b32 s{sPart}, s{sPart}, 7")
    A(f"s_lshl_b32 s88, s{sFam}, 2")
    GS = G.bit_length() - 4
    sLA, sCk, sNd = 92, 96, 97
    A(f"s_lshr_b32 s18, s{sFam}, {GS}")
    if nA:
        A(f"s_mul_i32 s{sLA}, s18, {stp}"); A(f"s_lshr_b32 s{sLA}, s{sLA}, 2"); A(f"s_sub_u32 s{sLA}, {nA}, s{sLA}")
        A(f"s_cmp_ge_u32 s18, {nf}"); A(f"s_cselect_b32 s{sLA}, 0x400, s{sLA}")
    A(f"s_movk_i32 s{sCk}, {ck}")
    if n1 < 256 // G:
        A(f"s_cmp_lt_u32 s18, {256 // G - n1}"); A(f"s_cselect_b32 s{sCk}, 0x400, s{sCk}")
    if G > 8: A(f"s_and_b32 s{sFam}, s{sFam}, {(~(G // 8 - 1)) & 31}")
    A(f"s_mov_b32 s{sWS}, s16"); A(f"s_mov_b32 s{sWS+1}, s17"); A(f"s_mov_b32 s{sWS+2}, {WSB}"); A(f"s_mov_b32 s{sWS+3}, 0x20000")
    A(f"s_mov_b32 s{sOUT}, s12"); A(f"s_mov_b32 s{sOUT+1}, s13"); A(f"s_mov_b32 s{sOUT+2}, 16384"); A(f"s_mov_b32 s{sOUT+3}, 0x20000")
    A(f"s_mov_b32 s{sDBG}, s14"); A(f"s_mov_b32 s{sDBG+1}, s15"); A(f"s_mov_b32 s{sDBG+2}, 256"); A(f"s_mov_b32 s{sDBG+3}, 0x20000")
    A(f"s_mov_b32 s{sV}, s8"); A(f"s_mov_b32 s{sV+1}, s9"); A(f"s_mov_b32 s{sV+2}, {1<<28}"); A(f"s_mov_b32 s{sV+3}, 0x20000")
    A("v_lshrrev_b32 v5, 4, v0")
    A("v_and_b32 v1, 15, v0")
    A(f"s_lshl_b32 s93, s{sHead}, 2")
    A(f"v_lshlrev_b32 v{vL4}, 2, v0"); A(f"v_mov_b32 v{vZero}, 0"); A(f"v_mov_b32 v{vMB}, {MB}")
    A(f"s_add_u32 s67, s93, s{sC}"); A("s_lshl_b32 s67, s67, 11")
    A(f"s_lshl_b32 s68, s{sPart}, 8"); A("s_add_u32 s68, s68, s67")
    A(f"s_mul_i32 s69, s{sHead}, {HS}"); A(f"s_add_u32 s69, s69, {CTR}")
    A(f"s_lshl_b32 s63, s{sPart}, 7"); A("s_add_u32 s63, s63, s69")
    A(f"s_mul_i32 s86, s{sFam}, {HS}"); A(f"s_add_u32 s86, s86, {CTR}")
    if asp >= 0:
        A("s_lshr_b32 s18, s2, 5"); A("s_and_b32 s86, s2, 31"); A("s_lshl_b32 s86, s86, 3"); A("s_or_b32 s86, s86, s18")
        A(f"s_lshr_b32 s86, s86, {asp}"); A(f"s_mul_i32 s86, s86, {ast}"); A("s_add_u32 s86, s86, 0x200000")
    A(f"s_lshl_b32 s{sFam}, s{sFam}, 2")
    A(f"s_lshl_b32 s18, s{sC}, 7"); A(f"s_add_u32 s19, s18, s19")
    A(f"v_mov_b32 v7, {OOB:#x}"); A(f"v_lshlrev_b32 v{vL16}, 4, v0")
    A("v_and_b32 v3, 7, v0")
    A(f"v_lshlrev_b32 v{vDp}, 7, v3")
    A(f"v_mov_b32 v{vSn}, v7"); A(f"v_mov_b32 v{vPo}, v{vL16}"); A(f"v_mov_b32 v{vSl}, v7")
    A(f"v_mov_b32 v{vEo}, v7"); A(f"v_mov_b32 v{vS0}, v7")
    A(f"v_mov_b32 v{vM1}, -1"); A(f"v_mov_b32 v{vM2}, 0xffff0000")
    A(f"s_mov_b32 s{sOwn}, 0x01010101"); A(f"s_mov_b32 s{sOwn+1}, 0x01010101")
    A(f"v_cndmask_b32 v{vDp}, v{vDp}, v7, s[{sOwn}:{sOwn+1}]")
    A("s_bfm_b64 exec, 48, 0"); A(f"v_mov_b32 v{vM1}, v{vM2}")
    A("s_bfm_b64 exec, 32, 0"); A(f"v_mov_b32 v{vM2}, 0")
    A("s_bfm_b64 exec, 16, 0"); A(f"v_mov_b32 v{vM1}, 0"); A(f"v_mov_b32 v{vSn}, v{vL16}"); A(f"v_mov_b32 v{vPo}, v7")
    A("s_bfm_b64 exec, 8, 0"); A(f"v_mov_b32 v{vSl}, v{vL16}")
    A("s_mov_b64 exec, -1")
    A(f"v_writelane_b32 v{vEo}, s93, 0"); A(f"v_writelane_b32 v{vEo}, s{sFam}, 1"); A(f"v_writelane_b32 v{vEo}, 0, 2")
    A(f"v_writelane_b32 v{vS0}, 0, 0")
    A("v_and_b32 v6, 7, v1"); A("v_lshlrev_b32 v6, 1, v6")
    A("v_xor_b32 v6, v6, v5")
    A("v_lshlrev_b32 v6, 4, v6"); A(f"v_lshl_add_u32 v{vKb}, v1, 9, v6")
    for jj in range(1, 4): A(f"v_xor_b32 v{vKb+jj}, {jj*64}, v{vKb}")
    A(f"v_lshlrev_b32 v11, 4, v5")
    A(f"v_lshl_add_u32 v{vQa}, v5, 3, v{vMB}")
    A("v_lshrrev_b32 v6, 2, v0")
    A("v_and_b32 v7, 7, v6")
    A(f"s_lshl_b32 s18, s{sC}, 2")
    A("v_xor_b32 v7, s18, v7")
    A("v_lshlrev_b32 v7, 5, v7"); A("v_lshl_add_u32 v7, v6, 9, v7")
    A("v_and_b32 v10, 3, v0"); A(f"v_lshl_add_u32 v{vVb}, v10, 3, v7")
    for t in range(1, 4): A(f"v_xor_b32 v{vVb+t}, {t*32}, v{vVb}")
    for r in range(4):
        m = (1 << r) | (1 << (20 + r)) | (1 << (40 + r)) | (1 << (60 + r))
        A(f"s_mov_b32 s{sMask+2*r}, {m & 0xffffffff:#x}"); A(f"s_mov_b32 s{sMask+2*r+1}, {m >> 32:#x}")
    A(f"s_mov_b32 s{sL2E}, {f2u(math.log2(math.e)/4):#x}")
    A(f"v_mov_b32 v{vM8}, {f2u(-0.125):#x}"); A(f"v_mov_b32 v{vEps}, {f2u(1e-6):#x}")
    for r in range(16): A(f"v_mov_b32 v{vACC+r}, 0")
    A(f"v_mov_b32 v{vDen}, 0")
    A(f"s_and_b32 s18, s{sC}, 1"); A(f"s_lshr_b32 s52, s{sC}, 1")
    A(f"s_lshl_b32 s{sRing}, s52, 14"); A("s_lshl_b32 s53, s18, 13"); A(f"s_add_u32 s{sRing}, s{sRing}, s53")
    A("s_lshl_b32 s53, s52, 8"); A("s_lshl_b32 s18, s18, 3"); A("s_add_u32 s53, s53, s18"); A(f"s_add_u32 s53, s53, {WA}")
    A(f"v_lshl_add_u32 v{vPa}, v6, 4, s53"); A(f"v_lshl_add_u32 v{vPa}, v10, 1, v{vPa}")
    for jj in range(4): A(f"v_add_u32 v{vAd+jj}, {OMG}, v{vKb+jj}")
    A(f"v_add_u32 v2, {QL}, v11")
    A(f"s_mov_b32 s{sCnt}, 32")
    K1, K2, K3, K4, K5 = 28, 25, 23, 21, 6
    A(f"s_cmp_eq_u32 s{sPart}, 0")
    A(f"s_cselect_b32 s{sEv}, {K1}, {K5}")
    A("s_waitcnt vmcnt(0)")
    A("s_barrier")
    for j in range(8):
        A(f"ds_read_b128 v[{vOM+j*4}:{vOM+j*4+3}], v{vAd+(j&3)} offset:{(j>>2)*256}")
    for jj in range(4): A(f"v_add_u32 v{vAd+jj}, s{sRing}, v{vKb+jj}")
    A("s_cmp_eq_u32 s52, 0")
    A("s_cbranch_scc1 L_k_nb")
    A(f"s_cmp_lg_u32 s{sC}, 2")
    A("s_cbranch_scc1 L_k")

    def round4(src, dst):
        A(f"v_cvt_pk_bf16_f32 v{vT}, v{src}, v{src+1}")
        A(f"v_cvt_pk_bf16_f32 v{vT+1}, v{src+2}, v{src+3}")
        A(f"v_lshlrev_b32 v{dst}, 16, v{vT}"); A(f"v_and_b32 v{dst+1}, 0xffff0000, v{vT}")
        A(f"v_lshlrev_b32 v{dst+2}, 16, v{vT+1}"); A(f"v_and_b32 v{dst+3}, 0xffff0000, v{vT+1}")
    def phi_tail():
        round4(vY, vY)
        for r in range(4): A(f"v_mul_f32 v{vY+r}, s{sL2E}, v{vY+r}")
        for r in range(4): A(f"v_exp_f32 v{vY+r}, v{vY+r}")
        A("s_nop 0")
        round4(vY, vY)
        for r in range(4): A(f"v_fmamk_f32 v{vY+r}, v{vY+r}, 0x3e800000, v{vEps}")
        A(f"v_cvt_pk_bf16_f32 v{vPH}, v{vY}, v{vY+1}")
        A(f"v_cvt_pk_bf16_f32 v{vPH+1}, v{vY+2}, v{vY+3}")

    C("phi(q), by the wave that has nothing to do in the first round")
    for j in range(8):
        A(f"ds_read_b128 v[{vK+j*4}:{vK+j*4+3}], v2 offset:{j*64}")
    A("s_waitcnt lgkmcnt(0)")
    for j in range(8):
        qr = f"v[{vK+j*4}:{vK+j*4+3}]"
        c = "0" if j == 0 else f"v[{vKP}:{vKP+3}]"
        A(f"v_mfma_f32_16x16x32_bf16 v[{vKP}:{vKP+3}], v[{vOM+j*4}:{vOM+j*4+3}], {qr}, {c}")
        c = "0" if j == 0 else f"v[{vG}:{vG+3}]"
        A(f"v_mfma_f32_16x16x32_bf16 v[{vG}:{vG+3}], {qr}, {qr}, {c}")
    A("s_nop 7")
    round4(vKP, vKP)
    A(f"v_cvt_pk_bf16_f32 v{vX}, v{vG}, v{vG}")
    A(f"v_and_b32 v{vX}, 0xffff0000, v{vX}")
    for r in range(4): A(f"v_fma_f32 v{vY+r}, v{vX}, v{vM8}, v{vKP+r}")
    phi_tail()
    A(f"ds_write_b64 v{vQa}, v[{vPH}:{vPH+1}] offset:32")
    A("s_waitcnt lgkmcnt(0)")

    C("---- K phase: weights of 16 keys per wave and pair of rounds")
    Lb("L_k")
    A("s_barrier")
    Lb("L_k_nb")
    for j in range(8):
        A(f"ds_read_b128 v[{vK+j*4}:{vK+j*4+3}], v{vAd+(j&3)} offset:{(j>>2)*256}")
    A(f"s_add_u32 s{sRing}, s{sRing}, 32768"); A(f"s_and_b32 s{sRing}, s{sRing}, 0xffff")
    for jj in range(4): A(f"v_add_u32 v{vAd+jj}, s{sRing}, v{vKb+jj}")
    for j in range(8):
        kr = f"v[{vK+j*4}:{vK+j*4+3}]"
        A(f"s_waitcnt lgkmcnt({7-j})")
        c = "0" if j == 0 else f"v[{vG}:{vG+3}]"
        A(f"v_mfma_f32_16x16x32_bf16 v[{vG}:{vG+3}], {kr}, {kr}, {c}")
        c = "0" if j == 0 else f"v[{vKP}:{vKP+3}]"
        A(f"v_mfma_f32_16x16x32_bf16 v[{vKP}:{vKP+3}], v[{vOM+j*4}:{vOM+j*4+3}], {kr}, {c}")
    A("s_barrier")
    A(f"ds_read_b64 v[{vPQ}:{vPQ+1}], v{vQa} offset:32")
    A("s_nop 7")
    A(f"v_cndmask_b32 v{vX}, 0, v{vG}, s[{sMask}:{sMask+1}]")
    for r in range(1, 4):
        A(f"v_cndmask_b32 v{vX}, v{vX}, v{vG+r}, s[{sMask+2*r}:{sMask+2*r+1}]")
    A(f"v_cvt_pk_bf16_f32 v{vX}, v{vX}, v{vX}")
    A(f"v_and_b32 v{vX}, 0xffff0000, v{vX}")
    round4(vKP, vKP)
    A("s_nop 1")
    A(f"v_mfma_f32_16x16x4_f32 v[{vY}:{vY+3}], v{vM8}, v{vX}, v[{vKP}:{vKP+3}]")
    A("s_nop 9")
    phi_tail()
    A("s_waitcnt lgkmcnt(0)")
    A(f"s_sub_u32 s{sCnt}, s{sCnt}, 1")
    A(f"v_mfma_f32_16x16x16_bf16 v[{vG}:{vG+3}], v[{vPQ}:{vPQ+1}], v[{vPH}:{vPH+1}], 0")
    A("s_nop 7")
    A(f"v_and_b32 v{vT}, v{vM1}, v{vG}")
    A(f"v_add_f32 v{vDen}, v{vDen}, v{vG}")
    A(f"v_sub_f32 v{vX}, v{vG}, v{vT}")
    A(f"v_and_b32 v{vT}, v{vM2}, v{vX}")
    A(f"v_sub_f32 v{vX}, v{vX}, v{vT}")
    A(f"ds_write_b16_d16_hi v{vPa}, v{vX}")
    A(f"v_add_u32 v{vPa}, 512, v{vPa}")
    A(f"s_cmp_eq_u32 s{sCnt}, s{sEv}")
    A("s_cbranch_scc1 L_ke")
    Lb("L_ke_ret")
    A(f"s_cmp_lg_u32 s{sCnt}, 0")
    A("s_waitcnt lgkmcnt(0)")
    A("s_cbranch_scc1 L_k")

    C("---- V phase: w^T v for 64 columns per wave")
    NQ = 62
    T3 = T4 + 1
    A(f"v_lshl_add_u32 v{vPa}, v10, 6, v11"); A(f"v_add_u32 v{vPa}, {WA}, v{vPa}")
    A(f"s_lshl_b32 s18, s{sC}, 6"); A(f"v_lshl_add_u32 v2, v1, 2, s18"); A(f"v_add_u32 v2, v2, v{vMB}")
    A(f"ds_read_b128 v[{vA}:{vA+3}], v{vPa}")
    A(f"ds_write_b32 v2, v{vDen} offset:256")
    A(f"s_mov_b32 s{sRing}, 0")
    A(f"s_mov_b32 s{sCnt}, 64")
    A(f"s_cmp_eq_u32 s{sC}, 0"); A(f"s_cselect_b32 s{sEv}, {NQ}, {T3}")
    if BS: A(f"s_cmp_eq_u32 s{sC}, 1"); A(f"s_cselect_b32 s{sEv}, {BS + 4}, s{sEv}")
    A("v_lshlrev_b32 v1, 1, v0")
    for t in range(4): A(f"v_mov_b32 v{vAd+t}, v{vVb+t}")
    A("s_cmp_lg_u32 s52, 0")
    A("s_waitcnt lgkmcnt(0)")
    A("s_cbranch_scc1 L_v_nb")
    Lb("L_v")
    A("s_barrier")
    Lb("L_v_nb")
    for t in range(4):
        A(f"ds_read_b64_tr_b16 v[{vB+t*4}:{vB+t*4+1}], v{vAd+t}")
        A(f"ds_read_b64_tr_b16 v[{vB+t*4+2}:{vB+t*4+3}], v{vAd+t} offset:8192")
    A(f"s_add_u32 s{sRing}, s{sRing}, 16384"); A(f"s_and_b32 s{sRing}, s{sRing}, 0xffff")
    A(f"v_add_u32 v{vPa}, 256, v{vPa}")
    A(f"s_sub_u32 s{sCnt}, s{sCnt}, 1")
    for t in range(4):
        A(f"s_waitcnt lgkmcnt({6-2*t})")
        a = vACC + t * 4
        A(f"v_mfma_f32_16x16x32_bf16 v[{a}:{a+3}], v[{vA}:{vA+3}], v[{vB+t*4}:{vB+t*4+3}], v[{a}:{a+3}]")
    A(f"s_cmp_eq_u32 s{sCnt}, 0")
    A("s_cbranch_scc1 L_epi")
    A(f"ds_read_b128 v[{vA}:{vA+3}], v{vPa}")
    for t in range(4): A(f"v_add_u32 v{vAd+t}, s{sRing}, v{vVb+t}")
    A(f"s_cmp_le_u32 s{sCnt}, s{sEv}")
    if apf:
        A("s_cbranch_scc0 L_v")
        A("s_branch L_ve")
    else:
        A("s_cbranch_scc1 L_ve")
    Lb("L_ve_ret")
    A("s_waitcnt lgkmcnt(0)")
    A("s_branch L_v")

    C("---- epilogue: add the parts, hand over / collect")
    P = vOM
    sTg = 20
    def polls(fl):
        A(f"buffer_load_dwordx4 v[{P}:{P+3}], v{vPo}, s[{sWS}:{sWS+3}], s67 offen {fl}")
        A(f"buffer_load_dwordx4 v[{P+4}:{P+7}], v{vL16}, s[{sWS}:{sWS+3}], s67 offen offset:1024 {fl}")
    S = vK
    Lb("L_epi")
    if stamp: A("s_memrealtime s[72:73]")
    for t in range(4):
        a = vACC + t * 4
        A(f"v_add_f32 v{S+t}, v{a+1}, v{a+2}")
        A(f"v_add_f32 v{S+t}, v{S+t}, v{a}")
        if t == 2: A(f"s_cmp_eq_u32 s{sPart}, 0")
    A("s_cbranch_scc1 L_final")
    A(f"s_cmp_lg_u32 s{sFar}, 0")
    for t in range(4): A(f"v_bfi_b32 v{S+t}, 63, s{sTg+t}, v{S+t}")
    A("s_cbranch_scc1 L_far")
    for fl in ("", stf):
        if fl: Lb("L_far")
        A(f"buffer_store_dwordx4 v[{S}:{S+3}], v{vSn}, s[{sWS}:{sWS+3}], s68 offen {fl}")
        if stamp:
            A("s_mov_b32 s76, 0"); A("s_mov_b32 s78, 0"); A("s_mov_b32 s80, 0")
            A("s_branch L_fin")
        else:
            A("s_endpgm")
    Lb("L_final")
    if stamp:
        A("s_memrealtime s[78:79]"); A("s_mov_b32 s76, 0")
    A(f"v_cndmask_b32 v{S}, v{S}, v{S+1}, s[24:25]")
    A(f"v_cndmask_b32 v{S+2}, v{S+2}, v{S+3}, s[24:25]")
    A(f"v_cndmask_b32 v{S}, v{S}, v{S+2}, s[26:27]")
    A("s_branch L_chk")
    Lb("L_poll")
    polls(p3f)
    A("s_sub_u32 s53, s53, 1")
    A("s_cbranch_scc1 L_end")
    Lb("L_chk")
    if stamp: A("s_add_u32 s76, s76, 1")
    A("s_waitcnt vmcnt(0)")
    X0, X1 = S + 4, S + 5
    A(f"v_add_f32 v{S+8}, v{P}, v{P+4}")
    A(f"v_add_f32 v{S+10}, v{P+2}, v{P+6}")
    A(f"v_add_f32 v{S+9}, v{P+1}, v{P+5}")
    A(f"v_add_f32 v{S+11}, v{P+3}, v{P+7}")
    A(f"v_xor_b32 v{X0}, v{P}, v{vE}")
    A(f"v_permlane32_swap_b32 v{S+8}, v{S+10}")
    A(f"v_xor_b32 v{X1}, s{sTg}, v{P+4}")
    A(f"v_permlane32_swap_b32 v{S+9}, v{S+11}")
    A(f"v_bitop3_b32 v{X0}, v{P+1}, v{X0}, v{vE+1} bitop3:0xde")
    A(f"v_add_f32 v{S+8}, v{S+8}, v{S+10}")
    A(f"v_add_f32 v{S+9}, v{S+9}, v{S+11}")
    A(f"v_bitop3_b32 v{X1}, v{P+5}, v{X1}, s{sTg+1} bitop3:0xde")
    A(f"v_bitop3_b32 v{X0}, v{P+2}, v{X0}, v{vE+2} bitop3:0xde")
    A(f"v_permlane16_swap_b32 v{S+8}, v{S+9}")
    A(f"v_bitop3_b32 v{X1}, v{P+6}, v{X1}, s{sTg+2} bitop3:0xde")
    A(f"v_bitop3_b32 v{X0}, v{P+3}, v{X0}, v{vE+3} bitop3:0xde")
    A(f"v_add_f32 v{S+8}, v{S+8}, v{S+9}")
    A(f"v_bitop3_b32 v{X1}, v{P+7}, v{X1}, s{sTg+3} bitop3:0xde")
    A(f"v_add_f32 v{S+8}, v{S+8}, v{S}")
    A(f"v_bitop3_b32 v{X0}, v{X0}, v{X1}, 63 bitop3:0xa8")
    A(f"v_cvt_pk_bf16_f32 v{S+8}, v{S+8}, v{S+8}")
    A(f"v_cmp_ne_u32 vcc, 0, v{X0}")
    A(f"v_and_b32 v{S+8}, 0xffff0000, v{S+8}")
    A(f"v_mul_f32 v{S+8}, v{S+8}, v{vFl+1}")
    A(f"v_cvt_pk_bf16_f32 v{S+8}, v{S+8}, v{S+8}")
    A("s_cbranch_vccnz L_poll")
    if stamp: A("s_memrealtime s[80:81]")
    A(f"buffer_store_short v{S+8}, v1, s[{sOUT}:{sOUT+3}], s19 offen")
    if stamp:
        A("s_branch L_fin")
    else:
        A("s_endpgm")

    C("---- K phase events: the finishing workgroup picks an epoch no old granule carries and announces it")
    Lb("L_ke")
    for n, nm in ((K2, "2"), (K3, "3"), (K4, "4"), (K5, "5")):
        A(f"s_cmp_eq_u32 s{sCnt}, {n}"); A(f"s_cbranch_scc1 L_ke{nm}")
    A(f"s_mov_b32 s{sEv}, {K2}")
    A(f"buffer_load_dword v{vB+10}, v{vZero}, s[{sWS}:{sWS+3}], s69 offen {chkf}")
    if a2:
        for r in range(10): A(f"v_mov_b32 v{vB+r}, {r}")
    else:
        A(f"buffer_load_dwordx2 v[{vB+8}:{vB+9}], v{vDp}, s[{sWS}:{sWS+3}], s69 offen offset:{DO} {chkf}")
        A(f"buffer_load_dwordx4 v[{vB}:{vB+3}], v{vL16}, s[{sWS}:{sWS+3}], s67 offen {chkf}")
        A(f"buffer_load_dwordx4 v[{vB+4}:{vB+7}], v{vL16}, s[{sWS}:{sWS+3}], s67 offen offset:1024 {chkf}")
    A("s_branch L_ke_ret")
    Lb("L_ke2")
    A(f"s_mov_b32 s{sEv}, {K3}")
    A("s_waitcnt vmcnt(0)")
    A(f"v_readfirstlane_b32 s{sT}, v{vB+10}")
    A("s_getreg_b32 s18, hwreg(HW_REG_XCC_ID, 0, 4)")
    A(f"s_add_u32 s{sT}, s{sT}, 1"); A(f"s_and_b32 s{sT}, s{sT}, 0xffffff"); A(f"s_bitset1_b32 s{sT}, 31")
    A("s_lshl_b32 s18, s18, 24"); A(f"s_or_b32 s{sT}, s{sT}, s18")
    for h in range(2):
        g = vB + 4 * h
        A(f"v_xor_b32 v3, s{sT}, v{g}")
        for j in range(1, 4):
            A(f"s_lshr_b32 s18, s{sT}, {6*j}")
            A(f"v_bitop3_b32 v3, v{g+j}, v3, s18 bitop3:0xde")
        A("v_and_b32 v3, 63, v3")
        A("v_cmp_eq_u32 vcc, 0, v3")
        A(f"v_xor_b32 v{g}, 1, v{g}")
        A(f"s_cbranch_vccz L_kc{h}")
        A("s_mov_b64 exec, vcc")
        A(f"buffer_store_dword v{g}, v{vL16}, s[{sWS}:{sWS+3}], s67 offen offset:{1024*h} {stf}")
        A("s_mov_b64 exec, -1")
        Lb(f"L_kc{h}")
    A(f"v_cmp_eq_u32 vcc, s{sT}, v{vB+9}")
    A(f"s_cbranch_vccz L_ke_ret")
    A("s_mov_b64 exec, vcc")
    A(f"buffer_store_dword v{vZero}, v{vDp}, s[{sWS}:{sWS+3}], s69 offen offset:{DO+4} {stf}")
    A("s_mov_b64 exec, -1")
    A("s_branch L_ke_ret")
    Lb("L_ke3")
    A(f"s_mov_b32 s{sEv}, {K4}")
    A("s_waitcnt vmcnt(0)")
    A("s_branch L_ke_ret")
    Lb("L_ke4")
    A(f"s_mov_b32 s{sEv}, {K5}")
    A(f"s_cmp_lg_u32 s{sC}, 0")
    A("s_cbranch_scc1 L_ke_ret")
    A(f"v_mov_b32 v5, s{sT}"); A("v_mov_b32 v6, 1")
    A(f"buffer_store_dword v5, v{vS0}, s[{sDBG}:{sDBG+3}], s93 offen {stf}")
    if not a3: A(f"buffer_atomic_add v6, v{vS0}, s[{sWS}:{sWS+3}], s69 offen sc1")
    A("s_branch L_ke_ret")
    Lb("L_ke5")
    A(f"s_cmp_lg_u32 s{sC}, 0")
    A("s_cbranch_scc1 L_ke_ret")
    if not a4: A(f"buffer_load_dword v3, v{vS0}, s[{sV}:{sV+3}], s{sOff} offen nt")
    A(f"buffer_load_dword v{vFl}, v{vEo}, s[{sDBG}:{sDBG+3}], 0 offen {epf}")
    A("s_branch L_ke_ret")

    C("---- V phase events")
    Lb("L_ve")
    A(f"s_cmp_eq_u32 s{sCnt}, {T4}"); A("s_cbranch_scc1 L_ve_t4")
    A(f"s_cmp_eq_u32 s{sCnt}, {T3}"); A("s_cbranch_scc1 L_ve_t3")
    if T4 > 1:
        A(f"s_cmp_lt_u32 s{sCnt}, {T4}"); A("s_cbranch_scc1 L_ve_t5")
    if BS:
        A(f"s_cmp_eq_u32 s{sC}, 1"); A("s_cbranch_scc1 L_bd")
    FB = G.bit_length()
    z = [NormalDist().inv_cdf((i + 1 - 0.375) / (G + 0.25)) for i in range(G)]
    TB = 20
    A(f"s_cmp_eq_u32 s{sCnt}, {NQ}"); A("s_cbranch_scc1 L_ve_q")
    if ck:
        A(f"s_sub_u32 s18, s{sCk}, s{sCnt}")
        A(f"s_cmp_eq_u32 s18, 0"); A("s_cbranch_scc1 L_ve_a")
        A(f"s_cmp_eq_u32 s18, {CG}"); A("s_cbranch_scc1 L_ve_b")
    if nA:
        A(f"s_sub_u32 s18, s{sLA}, s{sCnt}")
        A(f"s_cmp_eq_u32 s18, 0"); A("s_cbranch_scc1 L_ve_la")
        A(f"s_cmp_eq_u32 s18, {CG}"); A("s_cbranch_scc1 L_ve_lb")
        A(f"s_cmp_eq_u32 s18, {CG + L}"); A("s_cbranch_scc1 L_ve_lc")
    A(f"s_sub_u32 s18, s{sNd}, s{sCnt}")
    A(f"s_cmp_eq_u32 s18, 3"); A("s_cbranch_scc1 L_ve_d")
    A(f"s_cmp_lg_u32 s18, 0"); A("s_cbranch_scc1 L_ve_ret")
    assert (ND < ck - CG or ND - 3 > ck or not ck) and (ND - 3 > nA) and (nA < ck - CG or not ck)
    D = 4
    if a1 == 0: A(f"buffer_load_dwordx2 v[{D}:{D+1}], v{vDp}, s[{sWS}:{sWS+3}], s69 offen offset:{DO} {dnf}")
    if a1 == 2: A(f"buffer_load_dwordx2 v[{D}:{D+1}], v{vSl}, s[{sWS}:{sWS+3}], s69 offen offset:{DO} {dnf}")
    if wu:
        A(f"v_lshlrev_b32 v2, 3, v{vL16}")
        A(f"buffer_load_dword v3, v2, s[{sWS}:{sWS+3}], s67 offen {wuf.replace('+', ' ').replace('none', '')}")
    A("s_branch L_ve_ret")
    C("finishing workgroup: the dens of the others")
    Lb("L_ve_d")
    A(f"s_mov_b32 s53, {1<<20}")
    Lb("L_dn")
    A("s_waitcnt vmcnt(0)")
    A(f"v_cmp_ne_u32 vcc, s{sT}, v{D+1}")
    A(f"v_cndmask_b32 v6, v{D}, v{vDen}, s[{sOwn}:{sOwn+1}]")
    A(f"s_andn2_b64 vcc, vcc, s[{sOwn}:{sOwn+1}]")
    A("s_cbranch_scc0 L_dn_ok")
    if a1: A("s_branch L_dn_ok")
    A(f"buffer_load_dwordx2 v[{D}:{D+1}], v{vDp}, s[{sWS}:{sWS+3}], s69 offen offset:{DO} {ldf}")
    A("s_sub_u32 s53, s53, 1")
    A("s_cbranch_scc0 L_dn")
    A("s_waitcnt vmcnt(0)")
    A(f"v_mov_b32 v6, -1")
    A("s_nop 1")
    Lb("L_dn_ok")
    A(f"v_add_f32_dpp v6, v6, v6 quad_perm:[1,0,3,2] row_mask:0xf bank_mask:0xf"); A("s_nop 1")
    A(f"v_add_f32_dpp v6, v6, v6 quad_perm:[2,3,0,1] row_mask:0xf bank_mask:0xf"); A("s_nop 1")
    A(f"v_add_f32_dpp v6, v6, v6 row_half_mirror row_mask:0xf bank_mask:0xf")
    A(f"v_cvt_pk_bf16_f32 v6, v6, v6"); A(f"v_and_b32 v6, 0xffff0000, v6")
    A(f"v_add_f32 v6, v6, v{vEps}")
    A(f"v_cvt_pk_bf16_f32 v6, v6, v6"); A(f"v_and_b32 v6, 0xffff0000, v6")
    A(f"v_rcp_f32 v7, v6")
    A("s_nop 0")
    A(f"ds_write_b32 v{vMB}, v7 offset:4")
    A("s_branch L_ve_ret")
    def draw(sh):
        A(f"v_mov_b32 v{vFl}, {1 << sh:#x}")
        A(f"buffer_atomic_add v{vFl}, v{vS0}, s[{sWS}:{sWS+3}], s86 offen {fx(atf)}")
        A("s_branch L_ve_ret")
    def look(sh, ent):
        for q in range(G // 2): A(f"s_mov_b32 s{TB+q}, {(ent[2*q] & 0xffff) | ((ent[2*q+1] & 0xffff) << 16):#x}")
        A("s_waitcnt vmcnt(0)")
        A(f"v_readfirstlane_b32 s18, v{vFl}")
        A(f"s_sub_u32 s18, s18, s{sTF}"); A("s_add_u32 s18, s18, 1")
        A(f"s_bfe_u32 s18, s18, {hex(sh | ((FB - 1) << 16))}")
        A("s_lshr_b32 m0, s18, 1")
        A("s_lshl_b32 s53, s18, 4")
        A(f"s_movrels_b32 s54, s{TB}")
        A("s_lshr_b32 s54, s54, s53")
    if ck:
        Lb("L_ve_a"); draw(2)
        Lb("L_ve_b")
        ent = [min(255, int(round(SB * max(0.0, x)))) | (min(255, int(round(ST * max(0.0, -x)))) << 8) for x in z]
        C("groups with the wide / narrow window by arrival rank: " + " ".join("%d/%d" % (e & 255, e >> 8) for e in ent))
        look(2, ent)
        if stamp: A("s_and_b32 s54, s54, 0xffff")
        A("v_mov_b32 v2, s54")
        A(f"ds_write_b32 v{vMB}, v2 offset:12")
        A("s_branch L_ve_ret")
    if nA:
        Lb("L_ve_la"); draw(2 + FB)
        Lb("L_ve_lb")
        ent = [int(round(sd0 * x / 16)) for x in z]
        C("shift of the posted round by arrival rank: " + " ".join(str(e) for e in ent))
        look(2 + FB, ent)
        A("s_sext_i32_i16 s54, s54")
        A("v_mov_b32 v2, s54")
        A(f"ds_write_b32 v{vMB}, v2 offset:16")
        A("s_branch L_ve_ret")
        Lb("L_ve_lc")
        A(f"ds_write_b32 v{vMB}, v{vZero} offset:16")
        A("s_branch L_ve_ret")

    C("wave c=0 takes over the epoch words and hands the den of this workgroup over")
    Lb("L_ve_q")
    A(f"v_add_u32 v2, v{vL4}, v{vMB}")
    A(f"ds_read_b32 v{vDen}, v2 offset:256")
    A(f"s_mov_b32 s53, {1<<20}")
    Lb("L_ep")
    A("s_waitcnt vmcnt(0)")
    A(f"v_readlane_b32 s{sT}, v{vFl}, 0")
    A(f"v_readlane_b32 s{sTF}, v{vFl}, 1")
    A(f"v_readlane_b32 s87, v{vFl}, 2")
    A(f"s_cmp_lg_u32 s{sT}, 0")
    A("s_cbranch_scc1 L_ep_ok")
    A(f"buffer_load_dword v{vFl}, v{vEo}, s[{sDBG}:{sDBG+3}], 0 offen sc1")
    A("s_sub_u32 s53, s53, 1")
    A("s_cbranch_scc0 L_ep")
    A("s_waitcnt vmcnt(0)")
    Lb("L_ep_ok")
    A(f"v_mov_b32 v4, s{sT}"); A("v_mov_b32 v5, 0"); A("v_mov_b32 v6, s87"); A("v_mov_b32 v7, 0")
    A(f"ds_write_b128 v{vMB}, v[4:7]")
    if nA: A(f"ds_write_b32 v{vMB}, v{vZero} offset:16")
    A(f"s_movk_i32 s18, 0x400")
    A(f"s_cmp_eq_u32 s{sPart}, 0"); A(f"s_cselect_b32 s{sNd}, {ND}, s18")
    A(f"s_cmp_lg_u32 s{sTF}, 0")
    A(f"s_cselect_b32 s{sCk}, s{sCk}, s18")
    if nA: A(f"s_cselect_b32 s{sLA}, s{sLA}, s18")
    A(f"s_mov_b32 s{sEv}, {max(ck, ND)}")
    A("s_getreg_b32 s18, hwreg(HW_REG_XCC_ID, 0, 4)")
    A(f"s_bfe_u32 s{sFar}, s{sT}, 0x40018")
    A("s_waitcnt lgkmcnt(0)")
    for sft in (1, 2, 4, 8):
        A(f"v_add_f32_dpp v{vDen}, v{vDen}, v{vDen} row_ror:{sft} row_mask:0xf bank_mask:0xf")
        A("s_nop 1")
    for sw in (32, 16):
        A(f"v_mov_b32 v2, v{vDen}"); A("s_nop 1")
        A(f"v_permlane{sw}_swap_b32 v2, v{vDen}")
        A(f"v_add_f32 v{vDen}, v{vDen}, v2")
    A(f"s_cmp_eq_u32 s{sPart}, 0")
    A("s_cbranch_scc1 L_ve_ret")
    A(f"v_mov_b32 v4, v{vDen}"); A(f"v_mov_b32 v5, s{sT}"); A("v_mov_b32 v6, 0")
    A(f"s_cmp_lg_u32 s{sFar}, s18")
    if force: A("s_cmp_eq_u32 0, 0")
    A("s_cbranch_scc1 L_dfar")
    if a1 == 0: A(f"buffer_store_dwordx4 v[4:7], v{vSl}, s[{sWS}:{sWS+3}], s63 offen offset:{DO}")
    if a1 == 2:
        A(f"s_lshl_b32 s18, s{sPart}, 4"); A("s_add_u32 s18, s18, s69")
        A(f"buffer_store_dwordx4 v[4:7], v{vS0}, s[{sWS}:{sWS+3}], s18 offen offset:{DO}")
    A("s_branch L_ve_ret")
    Lb("L_dfar")
    A(f"buffer_store_dwordx4 v[4:7], v{vSl}, s[{sWS}:{sWS+3}], s63 offen offset:{DO} {stf}")
    A("s_branch L_ve_ret")

    if BS:
        assert BS + 4 < NQ and BE > T3 and dl <= per
        C("progress board (wave c=1): post the own round, compare with the neighbours behind the same L2")
        vBv, vBo = 2, 3
        Lb("L_bd")
        A(f"ds_read_b32 v4, v{vMB} offset:8")
        if nA: A(f"ds_read_b32 v5, v{vMB} offset:16")
        A(f"s_cmp_lg_u32 s{sCnt}, {BS + 4}")
        A("s_cbranch_scc1 L_bd1")
        A("s_getreg_b32 s89, hwreg(HW_REG_XCC_ID, 0, 4)")
        A(f"s_mul_i32 s89, s89, {HS}"); A(f"s_add_u32 s89, s89, {BRD}"); A("s_add_u32 s88, s88, s89")
        A(f"v_and_b32 v{vBo}, 0x7c, v{vL4}")
        A(f"s_movk_i32 s91, {1024 + bias}")
        if fb:
            A(f"s_cmp_eq_u32 s{sPart}, 0"); A(f"s_cselect_b32 s18, {fb}, 0"); A("s_sub_u32 s91, s91, s18")
        Lb("L_bd1")
        A(f"s_sub_u32 s90, {BS + 8 * per}, s{sCnt}"); A(f"s_and_b32 s90, s90, {per - 1}")
        A("s_waitcnt lgkmcnt(0)")
        A(f"v_lshl_add_u32 v4, v4, 8, s{sCnt}")
        A("s_cbranch_scc1 L_bd2")
        A(f"s_cmp_gt_u32 s{sCnt}, {BS}")
        A("s_cbranch_scc1 L_bd2")
        A(f"s_waitcnt vmcnt({dl - 1})")
        A(f"v_sub_u32 v{vBv}, v{vBv}, v4")
        A(f"v_add_u32 v{vBv}, {32 - dl}, v{vBv}")
        A(f"v_cmp_gt_u32 vcc, 64, v{vBv}")
        A("s_nop 1")
        A(f"v_cndmask_b32 v{vBv}, 32, v{vBv}, vcc")
        for sft in (1, 2, 4, 8):
            A("s_nop 1")
            A(f"v_add_u32_dpp v{vBv}, v{vBv}, v{vBv} row_ror:{sft} row_mask:0xf bank_mask:0xf")
        A("s_nop 0")
        A(f"v_readlane_b32 s18, v{vBv}, 0"); A(f"v_readlane_b32 s53, v{vBv}, 16")
        A("s_add_u32 s18, s18, s53")
        A(f"s_sub_i32 s18, s18, s91")
        A(f"s_mul_i32 s53, s18, {kT}"); A(f"s_add_i32 s53, s53, {16 - bT * kT}"); A("s_ashr_i32 s53, s53, 5")
        A("s_max_i32 s53, s53, 0"); A(f"s_min_i32 s53, s53, {mx}"); A("s_lshl_b32 s53, s53, 8")
        A(f"s_mul_i32 s18, s18, {-kB}"); A("s_add_i32 s18, s18, 16"); A("s_ashr_i32 s18, s18, 5")
        A("s_max_i32 s18, s18, 0"); A(f"s_min_i32 s18, s18, {mx}"); A("s_or_b32 s18, s18, s53")
        A("v_mov_b32 v6, s18")
        A(f"ds_write_b32 v{vMB}, v6 offset:12")
        Lb("L_bd2")
        A(f"s_cmp_eq_u32 s{sCnt}, {BE}")
        A(f"s_cselect_b32 s{sEv}, {T3}, s{sEv}")
        if nA: A("v_sub_u32 v4, v4, v5")
        A(f"buffer_store_dword v4, v{vS0}, s[{sWS}:{sWS+3}], s88 offen")
        A(f"s_cmp_lg_u32 s90, {(per - dl) % per}")
        A("s_cbranch_scc1 L_ve_ret")
        A(f"buffer_load_dword v{vBv}, v{vBo}, s[{sWS}:{sWS+3}], s89 offen {bdf}")
        A("s_branch L_ve_ret")
    Lb("L_ve_t3")
    A(f"ds_read_b64 v[{vFl}:{vFl+1}], v{vMB}")
    A("s_branch L_ve_ret")
    Lb("L_ve_t4")
    A(f"v_readfirstlane_b32 s{sTg}, v{vFl}")
    A("s_getreg_b32 s18, hwreg(HW_REG_XCC_ID, 0, 4)")
    A(f"s_mov_b32 s53, {1<<20}")
    A(f"s_bfe_u32 s{sFar}, s{sTg}, 0x40018")
    A(f"s_xor_b32 s{sFar}, s{sFar}, s18")
    if force: A(f"s_mov_b32 s{sFar}, 1")
    for t in range(1, 4): A(f"s_lshr_b32 s{sTg+t}, s{sTg}, {6*t}")
    if T4 > 1: A(f"s_mov_b32 s{sEv}, 0")
    A(f"s_cmp_lg_u32 s{sPart}, 0")
    A("s_cbranch_scc1 L_ve_ret")
    if T4 > 1: A(f"s_mov_b32 s{sEv}, 1")
    polls(p1f)
    A("s_mov_b32 s24, 0xffff0000"); A("s_mov_b32 s25, 0xffff0000"); A("s_mov_b32 s26, 0"); A("s_mov_b32 s27, -1")
    for t in range(4): A(f"v_mov_b32 v{vE+t}, s{sTg+t}")
    A("s_bfm_b64 exec, 16, 0")
    for t in range(4): A(f"v_mov_b32 v{vE+t}, 0")
    A("s_mov_b64 exec, -1")
    A("s_branch L_ve_ret")
    if T4 > 1:
        Lb("L_ve_t5")
        polls(p2f)
        A("s_branch L_ve_ret")

    if stamp:
        Lb("L_fin")
        A("s_waitcnt vmcnt(0)")
        A("s_memrealtime s[74:75]")
        A("s_getreg_b32 s82, hwreg(HW_REG_XCC_ID)")
        A("s_getreg_b32 s83, hwreg(HW_REG_HW_ID)")
        A("s_waitcnt lgkmcnt(0)")
        A(f"s_mul_i32 s19, s2, 5"); A("s_add_u32 s19, s19, s3"); A("s_lshl_b32 s19, s19, 5"); A("s_add_u32 s19, s19, 0x100000")
        A("v_mov_b32 v2, s19")
        A("v_mov_b32 v4, s70"); A("v_mov_b32 v5, s76"); A("v_mov_b32 v6, s72"); A("v_mov_b32 v7, s82")
        A("v_mov_b32 v8, s83"); A("v_mov_b32 v9, s78"); A("v_mov_b32 v10, s80"); A("v_mov_b32 v11, s74")
        A("s_mov_b64 exec, 1")
        A("global_store_dwordx4 v2, v[4:7], s[16:17]")
        A("global_store_dwordx4 v2, v[8:11], s[16:17] offset:16")
        A("s_waitcnt vmcnt(0)")
    if amp:
        for i in range(len(o)):
            if o[i].strip() == "s_endpgm": o[i] = "  s_branch L_amp"
        Lb("L_amp")
        A("s_waitcnt vmcnt(0)")
        A("s_memrealtime s[74:75]"); A("s_waitcnt lgkmcnt(0)")
        A("s_sub_u32 s74, s74, s70"); A(f"s_mul_i32 s76, s74, {amp}")
        Lb("L_amp2")
        A("s_memrealtime s[72:73]"); A("s_waitcnt lgkmcnt(0)")
        A("s_sub_u32 s72, s72, s70"); A(f"s_cmp_lt_u32 s72, s76"); A("s_cbranch_scc1 L_amp2")
    Lb("L_end")
    A("s_endpgm")
    o.append('.section .rodata,"a"'); o.append(".p2align 6"); o.append(f".amdhsa_kernel {KN}")
    A(f".amdhsa_next_free_vgpr {nv}"); A(".amdhsa_next_free_sgpr 98"); A(f".amdhsa_accum_offset {nv}")
    A(".amdhsa_group_segment_fixed_size 0"); A(".amdhsa_kernarg_size 56"); A(".amdhsa_user_sgpr_count 2")
    A(".amdhsa_user_sgpr_kernarg_segment_ptr 1"); A(".amdhsa_system_sgpr_workgroup_id_x 1")
    A(".amdhsa_float_denorm_mode_32 3")
    o.append(".end_amdhsa_kernel")
    return "\n".join(o) + "\n"

if __name__ == "__main__":
    out = sys.argv[1]
    kw = {}
    for kv in sys.argv[2:]:
        k, v = kv.split("=")
        kw[k] = int(v) if v.lstrip("-").isdigit() else v
    open(out, "w").write(gen(**kw))
```

```python
import sys, struct, math
from statistics import NormalDist
KN = "standalone__linear_kernel_rfa__decode_kernel"
def f2u(x): return struct.unpack("<I", struct.pack("<f", x))[0]

HEADER = """; Kernarg layout for this problem (56 bytes, ptrs only, base s[0:1]):
"""

def gen(W=21, WB=28, WT=16, ck=55, CG=2, SB=34, ST=30, G=8,
        BS=32, BE=4, kT=3, kB=8, bias=12, bT=8, per=2, dl=2, fb=0, mxo=0,
        SP=508, WS=32, apf=1, ND=44, T4=2, ldsz=0, nA=0, stp=4, nf=16, L=8, sd0=32, n1=99, wu=0, wuf="sc1", p1f="sc1", p2f="sc1", p3f="sc1", dnf="sc1+nt", a1=0, a2=0, a3=0, a4=0, a5=2, rest="", jo="x30142675", peel=1, st0=0, ec=0, WO=0, duty="", sat=0, stg=0, WK=0, KE=0, sts=0, ck2f="sc1+nt", K1=28, K2=25, K3=23, K4=21, K5=6, nobar=0, skf="nt", asp=-1, ast=256, atf="sc0+sc1", epf="none", bdf="sc1",
        stamp=0, amp=0, prio=3, force=0, xm=1734):
    NWG = 256
    stf = ldf = "sc1"; chkf = "sc1 nt"
    mx = mxo or 4 * per
    fx = lambda f: f.replace('+', ' ').replace('none', '')
    p1f, p2f, p3f, dnf, epf, bdf = map(fx, (p1f, p2f, p3f, dnf, epf, bdf))
    o = []
    A = lambda s: o.append("  " + s)
    Lb = lambda s: o.append(s + ":")
    C = lambda s: o.append("; " + s)
    WA = 65536
    OMG = WA + 16384
    QL = OMG + 8192
    MB = QL + 512
    lds = max(QL + 1024, ldsz)
    o.append(HEADER.rstrip("\n"))
    o.append(f"; @launch grid=({NWG},1,1) block=(320,1,1) lds={lds}")
    o.append('.amdgcn_target "amdgcn-amd-amdhsa--gfx950"')
    o.append(".text"); o.append(f".globl {KN}"); o.append(".p2align 8"); o.append(f".type {KN},@function"); Lb(KN)

    sK, sV, sOM, sQ, sOUT, sWS, sDBG = 20, 24, 28, 32, 36, 40, 44
    sOff, sRing, sCnt = 48, 49, 50
    sT = 51
    sMask, sL2E = 54, 62
    sHead, sPart, sC = 64, 65, 66
    sFam, sTF = 82, 83
    sEv, sFar = 84, 85
    sRaw = 82

    sJ, sBE, sTE, sR, sX, sTab = 50, 51, 52, 53, 54, 56
    A(f"s_load_dwordx2 s[{sK}:{sK+1}], s[0:1], 8")
    if stamp or amp: A("s_memrealtime s[70:71]")
    A("v_readfirstlane_b32 s3, v0")
    A(f"s_lshr_b32 s18, s2, 8")
    A("s_cbranch_scc1 L_end")
    A(f"s_mov_b32 s{sRaw}, s2")
    if xm == 1734 and not rest:
        A("s_and_b32 s18, s2, 31"); A("s_mul_i32 s18, s18, 33"); A("s_bfe_u32 s18, s18, 0x50001")
        A("s_lshr_b32 s2, s2, 5"); A("s_lshl3_add_u32 s2, s18, s2")
    elif xm == 2:
        A("s_and_b32 s18, s2, 7"); A("s_lshl_b32 s18, s18, 5"); A("s_lshr_b32 s2, s2, 3"); A(f"s_or_b32 s2, s2, s18")
    elif xm > 2:
        xb = [int(ch) for ch in str(xm)[-3:]]
        dst = xb + ([int(ch) for ch in str(rest)[-5:]] if rest else [b for b in range(8) if b not in xb])
        assert sorted(dst) == list(range(8))
        A("s_mov_b32 s19, 0")
        for r, d in enumerate(dst):
            A(f"s_bfe_u32 s18, s2, {hex(r | 0x10000)}"); A(f"s_lshl_b32 s18, s18, {d}"); A("s_or_b32 s19, s19, s18")
        A("s_mov_b32 s2, s19")
    A(f"s_lshl_b32 s{sOff}, s2, 20")
    A("s_cmp_lg_u32 s3, 0")
    A("s_cbranch_scc1 L_cons")
    def dma_offsets():
        A("v_and_b32 v1, 32, v0")
        A("v_lshlrev_b32 v4, 4, v0")
        A("v_xor_b32 v4, v4, v1")
        A("v_xor_b32 v5, 64, v4")
        A("v_xor_b32 v6, 0x80, v4")
        A("v_xor_b32 v7, 64, v6")

    C("---- loader wave: 4 KiB groups, a barrier after every fourth")
    ev = [256]
    if ck: ev.append(4 * (131 - (ck - CG)))
    if BS: ev.append(4 * (131 - BS))
    assert ev == sorted(ev) and SP % 4 == 0 and ev[-1] <= SP <= 512 and WS <= 32
    ev.append(SP)
    cols = [sum(1 << int(ch, 16) for ch in tok) for tok in (jo.split(".")[1:] if "." in jo else jo[1:])]
    assert len(cols) == 8
    T = []; acc = 0
    for c in cols: acc ^= c; T.append(acc)
    T.append(acc)
    movk = lambda r, v: A(f"s_mov_b32 s{r}, {v}" if v <= 64 else f"s_movk_i32 s{r}, {v}")
    dma_offsets()
    A(f"s_brev_b32 s{sK+2}, 8"); A(f"s_mov_b32 s{sK+3}, 0x20000")
    A(f"s_mov_b32 m0, 0")
    def loads():
        for n in range(4):
            A(f"buffer_load_dwordx4 v{4+n}, s[{sK}:{sK+3}], s{sOff} offen offset:{n*1024} {fx(skf)} lds")
    def step():
        A(f"s_add_u32 s{sJ}, s{sJ}, 1")
        A(f"s_ff1_i32_b32 m0, s{sJ}")
        A(f"s_lshl_b32 s18, s{sJ}, 12")
        A(f"s_movrels_b32 s19, s{sTab}")
        A(f"s_and_b32 m0, s18, 0xffff")
        A(f"s_xor_b32 s{sX}, s{sX}, s19")
        A(f"s_lshl_b32 s{sOff}, s{sX}, 12")
        A(f"s_and_b32 s18, s{sJ}, 3")
    def group():
        loads(); step()
    def init1():
        A(f"s_mov_b64 s[{sJ}:{sJ+1}], 0"); A(f"s_mov_b32 s{sTE}, 0")
        A(f"s_lshl_b32 s{sX}, s2, 8")
        if WO: A("s_getreg_b32 s55, hwreg(HW_REG_XCC_ID, 0, 1)")
        for k in range(3): movk(sTab + k, T[k])
        A(f"s_load_dwordx2 s[8:9], s[0:1], 16")
        if stamp: A(f"s_load_dwordx2 s[16:17], s[0:1], 48")
    if peel:
        A("s_waitcnt lgkmcnt(0)")
        if st0: A("s_memrealtime s[70:71]")
        loads()
        init1()
        A("s_branch L_st")
    else:
        init1()
        A("s_waitcnt lgkmcnt(0)")
        A("s_branch L_w")
    Lb("L_ld")
    A(f"s_cmp_lt_u32 s{sJ}, s{sTE}")
    A("s_cbranch_scc0 L_nt")
    A(f"s_waitcnt vmcnt({WT-4})")
    Lb("L_nt")
    A(f"s_cmp_lt_u32 s{sJ}, s{sBE}")
    A("s_cbranch_scc1 L_w")
    if WO:
        if duty:
            A(f"s_and_b32 s18, s{sJ}, 15"); A("s_cmp_lt_u32 s18, s55")
        else:
            A(f"s_cmp_eq_u32 s55, 0")
        A("s_cbranch_scc1 L_wo")
        A(f"s_waitcnt vmcnt({WO-4})")
        Lb("L_wo")
    if WK:
        A(f"s_waitcnt vmcnt({WK-4})")
        A(f"s_cmpk_lt_u32 s{sJ}, {KE or ev[1] - 12}")
        A("s_cbranch_scc1 L_w")
    A(f"s_waitcnt vmcnt({W-4})")
    Lb("L_w")
    A(f"s_waitcnt vmcnt({WB-4})")
    loads()
    Lb("L_st")
    step()
    A("s_cbranch_scc1 L_ld")
    A(f"s_cmp_lt_u32 s{sJ}, 12")
    A("s_cbranch_scc1 L_in2")
    if sts:
        A(f"s_cmp_lg_u32 s{sJ}, {sts}"); A("s_cbranch_scc1 L_s1")
        A("s_memrealtime s[86:87]"); A("s_barrier"); A("s_memrealtime s[88:89]"); A("s_branch L_ld")
        Lb("L_s1")
    A("s_barrier")
    A(f"s_cmp_lg_u32 s{sJ}, s{sEv}")
    A("s_cbranch_scc1 L_ld")
    A(f"s_cmpk_lg_u32 s{sJ}, 256")
    A("s_cbranch_scc1 L_ev1")
    A(f"s_movk_i32 s{sEv}, {ev[1]}")
    A("s_waitcnt lgkmcnt(0)")
    A(f"s_mov_b32 s{sK}, s8"); A(f"s_mov_b32 s{sK+1}, s9")
    A(f"v_mov_b32 v9, {MB}")
    if stamp: A("s_memrealtime s[76:77]")
    A("s_branch L_ld")
    Lb("L_in2")
    for k in range(3, 9): movk(sTab + k, T[k])
    if duty:
        dv = sum(int(ch, 16) << (4 * i) for i, ch in enumerate(duty[1:]))
        A("s_getreg_b32 s55, hwreg(HW_REG_XCC_ID, 0, 3)"); A("s_lshl_b32 s55, s55, 2"); A(f"s_lshr_b32 s55, {dv:#x}, s55"); A("s_and_b32 s55, s55, 15")
    A(f"s_movk_i32 s{sEv}, 256")
    if prio: A(f"s_setprio {prio}")
    if stamp:
        A("s_mov_b32 s78, 0"); A("s_mov_b32 s80, 0")
    A("s_branch L_ld")
    Lb("L_ev1")
    if len(ev) > 2:
        A(f"s_cmpk_eq_u32 s{sJ}, {SP}")
        A("s_cbranch_scc1 L_ev2")
        A(f"ds_read_b32 v8, v9 offset:12")
        if BS:
            A(f"s_add_u32 s{sEv}, s{sJ}, {4 * per}")
            if ck: A(f"s_max_u32 s{sEv}, s{sEv}, {ev[2]}")
            A(f"s_cmpk_gt_u32 s{sEv}, {min(4 * (131 - BE), SP)}")
            A(f"s_cselect_b32 s{sEv}, {SP}, s{sEv}")
        else:
            A(f"s_movk_i32 s{sEv}, {SP}")
        A("s_waitcnt lgkmcnt(0)")
        A(f"v_readfirstlane_b32 s{sR}, v8")
        if sat == 2:
            A(f"s_cmpk_lg_u32 s{sJ}, {ev[1]}"); A("s_cbranch_scc1 L_nsa")
            A(f"s_lshr_b32 s98, s{sRaw}, 3"); A(f"s_mul_i32 s98, s98, 8448"); A(f"s_add_u32 s98, s98, {128 * 2048}"); A("s_mov_b32 s99, 4")
            A("s_atomic_add s99, s[16:17], s98 glc")
            Lb("L_nsa")
        if stamp: A(f"s_add_u32 s80, s80, s{sR}")
        A(f"s_and_b32 s{sBE}, s{sR}, 0xff"); A(f"s_add_u32 s{sBE}, s{sBE}, s{sJ}")
        A(f"s_bfe_u32 s{sTE}, s{sR}, 0x80008"); A(f"s_add_u32 s{sTE}, s{sTE}, s{sJ}")
        A("s_branch L_ld")
        Lb("L_ev2")
    if stamp: A("s_memrealtime s[78:79]")
    if SP < 512:
        Lb("L_sp")
        A(f"s_waitcnt vmcnt({WS-4})")
        group()
        A("s_cbranch_scc1 L_sp")
        A("s_barrier")
        A(f"s_cmpk_lg_u32 s{sJ}, 512")
        A("s_cbranch_scc1 L_sp")
    A("s_waitcnt vmcnt(16)")
    A("s_barrier")
    A("s_waitcnt vmcnt(0)")
    A("s_barrier")
    if stamp:
        A("s_memrealtime s[72:73]")
        if sts: A("s_waitcnt lgkmcnt(0)"); A("s_mov_b32 s78, s86"); A("s_mov_b32 s80, s88")
        A("s_branch L_fin")
    else:
        A("s_endpgm")

    vM8, vEps = 8, 9
    vM1, vM2, vDen, vQa = 12, 13, 14, 15
    vKb = 16
    vVb = 20
    vAd = 24
    vPa = 28
    vSn = 29
    vFl = 30
    vKP = 32; vG = 36; vX = 40; vT = 42; vY = 44; vPH = 48; vPQ = 52
    vDp = 54
    vPo = 55
    vS0 = 56
    vL4 = 57
    vZero = 58
    vMB = 59
    vL16 = 60
    vSl = 61
    vEo = 62
    vOM = 64; vK = 96; vB = 128; vA = 144; vACC = 148; vE = 164
    nv = 168
    sOwn = 94
    GRP = 2048
    CTR = 128 * GRP
    HS = 8448
    BRD = CTR + 32 * HS
    WSB = BRD + 16 * HS
    if asp >= 0: WSB = 0x200000 + 256 * ast
    DO = 1024
    OOB = 0x7ff00000
    o.append(".p2align 6")
    C("---- consumer waves")
    Lb("L_cons")
    A(f"s_load_dwordx8 s[4:11], s[0:1], 0")
    A(f"s_load_dwordx4 s[12:15], s[0:1], 32")
    A(f"s_load_dwordx2 s[16:17], s[0:1], 48")
    A("v_and_b32 v0, 63, v0")
    dma_offsets()
    A("s_lshr_b32 s3, s3, 6")
    A(f"s_lshr_b32 s{sFam}, s{sRaw}, 3")
    if nobar == 1:
        A("s_waitcnt lgkmcnt(0)"); A("s_mov_b32 s76, 0"); A("s_branch L_fin")
    A(f"s_sub_u32 s{sC}, s3, 1")
    A(f"s_lshr_b32 s{sHead}, s2, 3")
    A(f"s_mov_b32 s{sOM+2}, 8192"); A(f"s_mov_b32 s{sOM+3}, 0x20000")
    A(f"s_mov_b32 s{sQ+2}, 16384"); A(f"s_mov_b32 s{sQ+3}, 0x20000")
    A(f"s_lshl_b32 s19, s{sHead}, 9")
    A(f"s_mov_b32 m0, {OMG}")
    A(f"s_mov_b32 s18, 4096")
    A(f"s_cmp_lg_u32 s{sC}, 0")
    A("s_waitcnt lgkmcnt(0)")
    A(f"s_mov_b32 s{sOM}, s10"); A(f"s_mov_b32 s{sOM+1}, s11")
    A(f"s_mov_b32 s{sQ}, s4"); A(f"s_mov_b32 s{sQ+1}, s5")
    A("s_cbranch_scc1 L_noom")
    for n in range(4):
        A(f"buffer_load_dwordx4 v{4+n}, s[{sOM}:{sOM+3}], 0 offen offset:{n*1024} lds")
    A(f"s_mov_b32 m0, {OMG+4096}"); A("s_nop 0")
    for n in range(4):
        A(f"buffer_load_dwordx4 v{4+n}, s[{sOM}:{sOM+3}], s18 offen offset:{n*1024} lds")
    A(f"s_mov_b32 m0, {QL}"); A("s_nop 0")
    if a5: A("s_bfm_b64 exec, 32, 0")
    A(f"buffer_load_dwordx4 v4, s[{sQ}:{sQ+3}], s19 offen {'nt' if a5 == 2 else ''} lds")
    if a5: A("s_mov_b64 exec, -1")
    Lb("L_noom")
    A(f"s_lshr_b32 s{sPart}, s2, {5 if xm else 3}"); A(f"s_sub_u32 s{sPart}, s2, s{sPart}"); A(f"s_and_b32 s{sPart}, s{sPart}, 7")
    A(f"s_lshl_b32 s88, s{sFam}, 2")
    GS = G.bit_length() - 4
    sLA, sCk, sNd = 92, 96, 97
    A(f"s_lshr_b32 s18, s{sFam}, {GS}")
    if nA:
        A(f"s_mul_i32 s{sLA}, s18, {stp}"); A(f"s_lshr_b32 s{sLA}, s{sLA}, 2"); A(f"s_sub_u32 s{sLA}, {nA}, s{sLA}")
        A(f"s_cmp_ge_u32 s18, {nf}"); A(f"s_cselect_b32 s{sLA}, 0x400, s{sLA}")
    A(f"s_movk_i32 s{sCk}, {ck}")
    if sat >= 2: A(f"s_movk_i32 s{sCk}, 0x400")
    if stg: A(f"s_and_b32 s53, s18, {stg - 1}"); A(f"s_add_u32 s{sCk}, s{sCk}, s53")
    if n1 < 256 // G:
        A(f"s_cmp_lt_u32 s18, {256 // G - n1}"); A(f"s_cselect_b32 s{sCk}, 0x400, s{sCk}")
    if G > 8: A(f"s_and_b32 s{sFam}, s{sFam}, {(~(G // 8 - 1)) & 31}")
    A(f"s_mov_b32 s{sWS}, s16"); A(f"s_mov_b32 s{sWS+1}, s17"); A(f"s_mov_b32 s{sWS+2}, {WSB}"); A(f"s_mov_b32 s{sWS+3}, 0x20000")
    A(f"s_mov_b32 s{sOUT}, s12"); A(f"s_mov_b32 s{sOUT+1}, s13"); A(f"s_mov_b32 s{sOUT+2}, 16384"); A(f"s_mov_b32 s{sOUT+3}, 0x20000")
    A(f"s_mov_b32 s{sDBG}, s14"); A(f"s_mov_b32 s{sDBG+1}, s15"); A(f"s_mov_b32 s{sDBG+2}, 256"); A(f"s_mov_b32 s{sDBG+3}, 0x20000")
    A(f"s_mov_b32 s{sV}, s8"); A(f"s_mov_b32 s{sV+1}, s9"); A(f"s_mov_b32 s{sV+2}, {1<<28}"); A(f"s_mov_b32 s{sV+3}, 0x20000")
    A("v_lshrrev_b32 v5, 4, v0")
    A("v_and_b32 v1, 15, v0")
    A(f"s_lshl_b32 s93, s{sHead}, 2")
    A(f"v_lshlrev_b32 v{vL4}, 2, v0"); A(f"v_mov_b32 v{vZero}, 0"); A(f"v_mov_b32 v{vMB}, {MB}")
    A(f"s_add_u32 s67, s93, s{sC}"); A("s_lshl_b32 s67, s67, 11")
    A(f"s_lshl_b32 s68, s{sPart}, 8"); A("s_add_u32 s68, s68, s67")
    A(f"s_mul_i32 s69, s{sHead}, {HS}"); A(f"s_add_u32 s69, s69, {CTR}")
    A(f"s_lshl_b32 s63, s{sPart}, 7"); A("s_add_u32 s63, s63, s69")
    A(f"s_mul_i32 s86, s{sFam}, {HS}"); A(f"s_add_u32 s86, s86, {CTR}")
    if asp >= 0:
        A("s_lshr_b32 s18, s2, 5"); A("s_and_b32 s86, s2, 31"); A("s_lshl_b32 s86, s86, 3"); A("s_or_b32 s86, s86, s18")
        A(f"s_lshr_b32 s86, s86, {asp}"); A(f"s_mul_i32 s86, s86, {ast}"); A("s_add_u32 s86, s86, 0x200000")
    A(f"s_lshl_b32 s{sFam}, s{sFam}, 2")
    A(f"s_lshl_b32 s18, s{sC}, 7"); A(f"s_add_u32 s19, s18, s19")
    A(f"v_mov_b32 v7, {OOB:#x}"); A(f"v_lshlrev_b32 v{vL16}, 4, v0")
    A("v_and_b32 v3, 7, v0")
    A(f"v_lshlrev_b32 v{vDp}, 7, v3")
    A(f"v_mov_b32 v{vSn}, v7"); A(f"v_mov_b32 v{vPo}, v{vL16}"); A(f"v_mov_b32 v{vSl}, v7")
    A(f"v_mov_b32 v{vEo}, v7"); A(f"v_mov_b32 v{vS0}, v7")
    A(f"v_mov_b32 v{vM1}, -1"); A(f"v_mov_b32 v{vM2}, 0xffff0000")
    A(f"s_mov_b32 s{sOwn}, 0x01010101"); A(f"s_mov_b32 s{sOwn+1}, 0x01010101")
    A(f"v_cndmask_b32 v{vDp}, v{vDp}, v7, s[{sOwn}:{sOwn+1}]")
    if ec:
        A(f"s_cmp_lg_u32 s{sPart}, 0"); A("s_cbranch_scc1 L_noec")
        A(f"buffer_load_dword v{vB+10}, v{vZero}, s[{sWS}:{sWS+3}], s69 offen {chkf}")
        A(f"buffer_load_dwordx4 v[{vB}:{vB+3}], v{vL16}, s[{sWS}:{sWS+3}], s67 offen {chkf}")
        A(f"buffer_load_dwordx4 v[{vB+4}:{vB+7}], v{vL16}, s[{sWS}:{sWS+3}], s67 offen offset:1024 {chkf}")
        A(f"buffer_load_dwordx2 v[{vB+8}:{vB+9}], v{vDp}, s[{sWS}:{sWS+3}], s69 offen offset:{DO} {chkf}")
        Lb("L_noec")
    A("s_bfm_b64 exec, 48, 0"); A(f"v_mov_b32 v{vM1}, v{vM2}")
    A("s_bfm_b64 exec, 32, 0"); A(f"v_mov_b32 v{vM2}, 0")
    A("s_bfm_b64 exec, 16, 0"); A(f"v_mov_b32 v{vM1}, 0"); A(f"v_mov_b32 v{vSn}, v{vL16}"); A(f"v_mov_b32 v{vPo}, v7")
    A("s_bfm_b64 exec, 8, 0"); A(f"v_mov_b32 v{vSl}, v{vL16}")
    A("s_mov_b64 exec, -1")
    A(f"v_writelane_b32 v{vEo}, s93, 0"); A(f"v_writelane_b32 v{vEo}, s{sFam}, 1"); A(f"v_writelane_b32 v{vEo}, 0, 2")
    A(f"v_writelane_b32 v{vS0}, 0, 0")
    A("v_and_b32 v6, 7, v1"); A("v_lshlrev_b32 v6, 1, v6")
    A("v_xor_b32 v6, v6, v5")
    A("v_lshlrev_b32 v6, 4, v6"); A(f"v_lshl_add_u32 v{vKb}, v1, 9, v6")
    for jj in range(1, 4): A(f"v_xor_b32 v{vKb+jj}, {jj*64}, v{vKb}")
    A(f"v_lshlrev_b32 v11, 4, v5")
    A(f"v_lshl_add_u32 v{vQa}, v5, 3, v{vMB}")
    A("v_lshrrev_b32 v6, 2, v0")
    A("v_and_b32 v7, 7, v6")
    A(f"s_lshl_b32 s18, s{sC}, 2")
    A("v_xor_b32 v7, s18, v7")
    A("v_lshlrev_b32 v7, 5, v7"); A("v_lshl_add_u32 v7, v6, 9, v7")
    A("v_and_b32 v10, 3, v0"); A(f"v_lshl_add_u32 v{vVb}, v10, 3, v7")
    for t in range(1, 4): A(f"v_xor_b32 v{vVb+t}, {t*32}, v{vVb}")
    for r in range(4):
        m = (1 << r) | (1 << (20 + r)) | (1 << (40 + r)) | (1 << (60 + r))
        A(f"s_mov_b32 s{sMask+2*r}, {m & 0xffffffff:#x}"); A(f"s_mov_b32 s{sMask+2*r+1}, {m >> 32:#x}")
    A(f"s_mov_b32 s{sL2E}, {f2u(math.log2(math.e)/4):#x}")
    A(f"v_mov_b32 v{vM8}, {f2u(-0.125):#x}"); A(f"v_mov_b32 v{vEps}, {f2u(1e-6):#x}")
    for r in range(16): A(f"v_mov_b32 v{vACC+r}, 0")
    A(f"v_mov_b32 v{vDen}, 0")
    A(f"s_and_b32 s18, s{sC}, 1"); A(f"s_lshr_b32 s52, s{sC}, 1")
    A(f"s_lshl_b32 s{sRing}, s52, 14"); A("s_lshl_b32 s53, s18, 13"); A(f"s_add_u32 s{sRing}, s{sRing}, s53")
    A("s_lshl_b32 s53, s52, 8"); A("s_lshl_b32 s18, s18, 3"); A("s_add_u32 s53, s53, s18"); A(f"s_add_u32 s53, s53, {WA}")
    A(f"v_lshl_add_u32 v{vPa}, v6, 4, s53"); A(f"v_lshl_add_u32 v{vPa}, v10, 1, v{vPa}")
    for jj in range(4): A(f"v_add_u32 v{vAd+jj}, {OMG}, v{vKb+jj}")
    A(f"v_add_u32 v2, {QL}, v11")
    A(f"s_mov_b32 s{sCnt}, 32")
    A(f"s_cmp_eq_u32 s{sPart}, 0")
    A(f"s_cselect_b32 s{sEv}, {K2 if ec else K1}, {K5}")
    if ec:
        A("s_cbranch_scc1 L_ecw")
        A("s_waitcnt vmcnt(0)")
        Lb("L_ecw")
        A("s_waitcnt vmcnt(4)")
    else:
        A("s_waitcnt vmcnt(0)")
    if sts: A("s_memrealtime s[70:71]")
    A("s_barrier")
    if nobar == 2:
        A("s_mov_b32 s76, 0"); A("s_branch L_fin")
    for j in range(8):
        A(f"ds_read_b128 v[{vOM+j*4}:{vOM+j*4+3}], v{vAd+(j&3)} offset:{(j>>2)*256}")
    for jj in range(4): A(f"v_add_u32 v{vAd+jj}, s{sRing}, v{vKb+jj}")
    A("s_cmp_eq_u32 s52, 0")
    A("s_cbranch_scc1 L_k_nb")
    A(f"s_cmp_lg_u32 s{sC}, 2")
    A("s_cbranch_scc1 L_k")

    def round4(src, dst):
        A(f"v_cvt_pk_bf16_f32 v{vT}, v{src}, v{src+1}")
        A(f"v_cvt_pk_bf16_f32 v{vT+1}, v{src+2}, v{src+3}")
        A(f"v_lshlrev_b32 v{dst}, 16, v{vT}"); A(f"v_and_b32 v{dst+1}, 0xffff0000, v{vT}")
        A(f"v_lshlrev_b32 v{dst+2}, 16, v{vT+1}"); A(f"v_and_b32 v{dst+3}, 0xffff0000, v{vT+1}")
    def phi_tail():
        round4(vY, vY)
        for r in range(4): A(f"v_mul_f32 v{vY+r}, s{sL2E}, v{vY+r}")
        for r in range(4): A(f"v_exp_f32 v{vY+r}, v{vY+r}")
        A("s_nop 0")
        round4(vY, vY)
        for r in range(4): A(f"v_fmamk_f32 v{vY+r}, v{vY+r}, 0x3e800000, v{vEps}")
        A(f"v_cvt_pk_bf16_f32 v{vPH}, v{vY}, v{vY+1}")
        A(f"v_cvt_pk_bf16_f32 v{vPH+1}, v{vY+2}, v{vY+3}")

    C("phi(q), by the wave that has nothing to do in the first round")
    for j in range(8):
        A(f"ds_read_b128 v[{vK+j*4}:{vK+j*4+3}], v2 offset:{j*64}")
    A("s_waitcnt lgkmcnt(0)")
    for j in range(8):
        qr = f"v[{vK+j*4}:{vK+j*4+3}]"
        c = "0" if j == 0 else f"v[{vKP}:{vKP+3}]"
        A(f"v_mfma_f32_16x16x32_bf16 v[{vKP}:{vKP+3}], v[{vOM+j*4}:{vOM+j*4+3}], {qr}, {c}")
        c = "0" if j == 0 else f"v[{vG}:{vG+3}]"
        A(f"v_mfma_f32_16x16x32_bf16 v[{vG}:{vG+3}], {qr}, {qr}, {c}")
    A("s_nop 7")
    round4(vKP, vKP)
    A(f"v_cvt_pk_bf16_f32 v{vX}, v{vG}, v{vG}")
    A(f"v_and_b32 v{vX}, 0xffff0000, v{vX}")
    for r in range(4): A(f"v_fma_f32 v{vY+r}, v{vX}, v{vM8}, v{vKP+r}")
    phi_tail()
    A(f"ds_write_b64 v{vQa}, v[{vPH}:{vPH+1}] offset:32")
    A("s_waitcnt lgkmcnt(0)")

    C("---- K phase: weights of 16 keys per wave and pair of rounds")
    Lb("L_k")
    A("s_barrier")
    Lb("L_k_nb")
    for j in range(8):
        A(f"ds_read_b128 v[{vK+j*4}:{vK+j*4+3}], v{vAd+(j&3)} offset:{(j>>2)*256}")
    A(f"s_add_u32 s{sRing}, s{sRing}, 32768"); A(f"s_and_b32 s{sRing}, s{sRing}, 0xffff")
    for jj in range(4): A(f"v_add_u32 v{vAd+jj}, s{sRing}, v{vKb+jj}")
    for j in range(8):
        kr = f"v[{vK+j*4}:{vK+j*4+3}]"
        A(f"s_waitcnt lgkmcnt({7-j})")
        c = "0" if j == 0 else f"v[{vG}:{vG+3}]"
        A(f"v_mfma_f32_16x16x32_bf16 v[{vG}:{vG+3}], {kr}, {kr}, {c}")
        c = "0" if j == 0 else f"v[{vKP}:{vKP+3}]"
        A(f"v_mfma_f32_16x16x32_bf16 v[{vKP}:{vKP+3}], v[{vOM+j*4}:{vOM+j*4+3}], {kr}, {c}")
    A("s_barrier")
    A(f"ds_read_b64 v[{vPQ}:{vPQ+1}], v{vQa} offset:32")
    A("s_nop 7")
    A(f"v_cndmask_b32 v{vX}, 0, v{vG}, s[{sMask}:{sMask+1}]")
    for r in range(1, 4):
        A(f"v_cndmask_b32 v{vX}, v{vX}, v{vG+r}, s[{sMask+2*r}:{sMask+2*r+1}]")
    A(f"v_cvt_pk_bf16_f32 v{vX}, v{vX}, v{vX}")
    A(f"v_and_b32 v{vX}, 0xffff0000, v{vX}")
    round4(vKP, vKP)
    A("s_nop 1")
    A(f"v_mfma_f32_16x16x4_f32 v[{vY}:{vY+3}], v{vM8}, v{vX}, v[{vKP}:{vKP+3}]")
    A("s_nop 9")
    phi_tail()
    A("s_waitcnt lgkmcnt(0)")
    A(f"s_sub_u32 s{sCnt}, s{sCnt}, 1")
    A(f"v_mfma_f32_16x16x16_bf16 v[{vG}:{vG+3}], v[{vPQ}:{vPQ+1}], v[{vPH}:{vPH+1}], 0")
    A("s_nop 7")
    A(f"v_and_b32 v{vT}, v{vM1}, v{vG}")
    A(f"v_add_f32 v{vDen}, v{vDen}, v{vG}")
    A(f"v_sub_f32 v{vX}, v{vG}, v{vT}")
    A(f"v_and_b32 v{vT}, v{vM2}, v{vX}")
    A(f"v_sub_f32 v{vX}, v{vX}, v{vT}")
    A(f"ds_write_b16_d16_hi v{vPa}, v{vX}")
    A(f"v_add_u32 v{vPa}, 512, v{vPa}")
    A(f"s_cmp_eq_u32 s{sCnt}, s{sEv}")
    A("s_cbranch_scc1 L_ke")
    Lb("L_ke_ret")
    A(f"s_cmp_lg_u32 s{sCnt}, 0")
    A("s_waitcnt lgkmcnt(0)")
    A("s_cbranch_scc1 L_k")

    C("---- V phase: w^T v for 64 columns per wave")
    NQ = 62
    T3 = T4 + 1
    A(f"v_lshl_add_u32 v{vPa}, v10, 6, v11"); A(f"v_add_u32 v{vPa}, {WA}, v{vPa}")
    A(f"s_lshl_b32 s18, s{sC}, 6"); A(f"v_lshl_add_u32 v2, v1, 2, s18"); A(f"v_add_u32 v2, v2, v{vMB}")
    A(f"ds_read_b128 v[{vA}:{vA+3}], v{vPa}")
    A(f"ds_write_b32 v2, v{vDen} offset:256")
    A(f"s_mov_b32 s{sRing}, 0")
    A(f"s_mov_b32 s{sCnt}, 64")
    A(f"s_cmp_eq_u32 s{sC}, 0"); A(f"s_cselect_b32 s{sEv}, {NQ}, {T3}")
    if BS: A(f"s_cmp_eq_u32 s{sC}, 1"); A(f"s_cselect_b32 s{sEv}, {BS + 4}, s{sEv}")
    A("v_lshlrev_b32 v1, 1, v0")
    for t in range(4): A(f"v_mov_b32 v{vAd+t}, v{vVb+t}")
    A("s_cmp_lg_u32 s52, 0")
    A("s_waitcnt lgkmcnt(0)")
    A("s_cbranch_scc1 L_v_nb")
    Lb("L_v")
    A("s_barrier")
    Lb("L_v_nb")
    for t in range(4):
        A(f"ds_read_b64_tr_b16 v[{vB+t*4}:{vB+t*4+1}], v{vAd+t}")
        A(f"ds_read_b64_tr_b16 v[{vB+t*4+2}:{vB+t*4+3}], v{vAd+t} offset:8192")
    A(f"s_add_u32 s{sRing}, s{sRing}, 16384"); A(f"s_and_b32 s{sRing}, s{sRing}, 0xffff")
    A(f"v_add_u32 v{vPa}, 256, v{vPa}")
    A(f"s_sub_u32 s{sCnt}, s{sCnt}, 1")
    for t in range(4):
        A(f"s_waitcnt lgkmcnt({6-2*t})")
        a = vACC + t * 4
        A(f"v_mfma_f32_16x16x32_bf16 v[{a}:{a+3}], v[{vA}:{vA+3}], v[{vB+t*4}:{vB+t*4+3}], v[{a}:{a+3}]")
    A(f"s_cmp_eq_u32 s{sCnt}, 0")
    A("s_cbranch_scc1 L_epi")
    A(f"ds_read_b128 v[{vA}:{vA+3}], v{vPa}")
    for t in range(4): A(f"v_add_u32 v{vAd+t}, s{sRing}, v{vVb+t}")
    A(f"s_cmp_le_u32 s{sCnt}, s{sEv}")
    if apf:
        A("s_cbranch_scc0 L_v")
        A("s_branch L_ve")
    else:
        A("s_cbranch_scc1 L_ve")
    Lb("L_ve_ret")
    A("s_waitcnt lgkmcnt(0)")
    A("s_branch L_v")

    C("---- epilogue: add the parts, hand over / collect")
    P = vOM
    sTg = 20
    def polls(fl):
        A(f"buffer_load_dwordx4 v[{P}:{P+3}], v{vPo}, s[{sWS}:{sWS+3}], s67 offen {fl}")
        A(f"buffer_load_dwordx4 v[{P+4}:{P+7}], v{vL16}, s[{sWS}:{sWS+3}], s67 offen offset:1024 {fl}")
    S = vK
    Lb("L_epi")
    if stamp: A("s_memrealtime s[72:73]")
    for t in range(4):
        a = vACC + t * 4
        A(f"v_add_f32 v{S+t}, v{a+1}, v{a+2}")
        A(f"v_add_f32 v{S+t}, v{S+t}, v{a}")
        if t == 2: A(f"s_cmp_eq_u32 s{sPart}, 0")
    A("s_cbranch_scc1 L_final")
    A(f"s_cmp_lg_u32 s{sFar}, 0")
    for t in range(4): A(f"v_bfi_b32 v{S+t}, 63, s{sTg+t}, v{S+t}")
    A("s_cbranch_scc1 L_far")
    for fl in ("", stf):
        if fl: Lb("L_far")
        A(f"buffer_store_dwordx4 v[{S}:{S+3}], v{vSn}, s[{sWS}:{sWS+3}], s68 offen {fl}")
        if stamp:
            A("s_mov_b32 s76, 0"); A("s_mov_b32 s78, 0"); A("s_mov_b32 s80, 0")
            A("s_branch L_fin")
        else:
            A("s_endpgm")
    Lb("L_final")
    if stamp:
        A("s_memrealtime s[78:79]"); A("s_mov_b32 s76, 0")
    A(f"v_cndmask_b32 v{S}, v{S}, v{S+1}, s[24:25]")
    A(f"v_cndmask_b32 v{S+2}, v{S+2}, v{S+3}, s[24:25]")
    A(f"v_cndmask_b32 v{S}, v{S}, v{S+2}, s[26:27]")
    A("s_branch L_chk")
    Lb("L_poll")
    polls(p3f)
    A("s_sub_u32 s53, s53, 1")
    A("s_cbranch_scc1 L_end")
    Lb("L_chk")
    if stamp: A("s_add_u32 s76, s76, 1")
    A("s_waitcnt vmcnt(0)")
    X0, X1 = S + 4, S + 5
    A(f"v_add_f32 v{S+8}, v{P}, v{P+4}")
    A(f"v_add_f32 v{S+10}, v{P+2}, v{P+6}")
    A(f"v_add_f32 v{S+9}, v{P+1}, v{P+5}")
    A(f"v_add_f32 v{S+11}, v{P+3}, v{P+7}")
    A(f"v_xor_b32 v{X0}, v{P}, v{vE}")
    A(f"v_permlane32_swap_b32 v{S+8}, v{S+10}")
    A(f"v_xor_b32 v{X1}, s{sTg}, v{P+4}")
    A(f"v_permlane32_swap_b32 v{S+9}, v{S+11}")
    A(f"v_bitop3_b32 v{X0}, v{P+1}, v{X0}, v{vE+1} bitop3:0xde")
    A(f"v_add_f32 v{S+8}, v{S+8}, v{S+10}")
    A(f"v_add_f32 v{S+9}, v{S+9}, v{S+11}")
    A(f"v_bitop3_b32 v{X1}, v{P+5}, v{X1}, s{sTg+1} bitop3:0xde")
    A(f"v_bitop3_b32 v{X0}, v{P+2}, v{X0}, v{vE+2} bitop3:0xde")
    A(f"v_permlane16_swap_b32 v{S+8}, v{S+9}")
    A(f"v_bitop3_b32 v{X1}, v{P+6}, v{X1}, s{sTg+2} bitop3:0xde")
    A(f"v_bitop3_b32 v{X0}, v{P+3}, v{X0}, v{vE+3} bitop3:0xde")
    A(f"v_add_f32 v{S+8}, v{S+8}, v{S+9}")
    A(f"v_bitop3_b32 v{X1}, v{P+7}, v{X1}, s{sTg+3} bitop3:0xde")
    A(f"v_add_f32 v{S+8}, v{S+8}, v{S}")
    A(f"v_bitop3_b32 v{X0}, v{X0}, v{X1}, 63 bitop3:0xa8")
    A(f"v_cvt_pk_bf16_f32 v{S+8}, v{S+8}, v{S+8}")
    A(f"v_cmp_ne_u32 vcc, 0, v{X0}")
    A(f"v_and_b32 v{S+8}, 0xffff0000, v{S+8}")
    A(f"v_mul_f32 v{S+8}, v{S+8}, v{vFl+1}")
    A(f"v_cvt_pk_bf16_f32 v{S+8}, v{S+8}, v{S+8}")
    A("s_cbranch_vccnz L_poll")
    if stamp: A("s_memrealtime s[80:81]")
    A(f"buffer_store_short v{S+8}, v1, s[{sOUT}:{sOUT+3}], s19 offen")
    if stamp:
        A("s_branch L_fin")
    else:
        A("s_endpgm")

    C("---- K phase events: the finishing workgroup picks an epoch no old granule carries and announces it")
    Lb("L_ke")
    for n, nm in ((K2, "2"), (K3, "3"), (K4, "4"), (K5, "5")):
        A(f"s_cmp_eq_u32 s{sCnt}, {n}"); A(f"s_cbranch_scc1 L_ke{nm}")
    A(f"s_mov_b32 s{sEv}, {K2}")
    A(f"buffer_load_dword v{vB+10}, v{vZero}, s[{sWS}:{sWS+3}], s69 offen {chkf}")
    c2 = fx(ck2f)
    if a2 in (1, 2): A(f"v_mov_b32 v{vB+8}, 0"); A(f"v_mov_b32 v{vB+9}, 0")
    if a2 in (1, 3):
        for r in range(8): A(f"v_mov_b32 v{vB+r}, {r}")
    if a2 in (0, 2, 4):
        A(f"buffer_load_dwordx4 v[{vB}:{vB+3}], v{vL16}, s[{sWS}:{sWS+3}], s67 offen {c2}")
        A(f"buffer_load_dwordx4 v[{vB+4}:{vB+7}], v{vL16}, s[{sWS}:{sWS+3}], s67 offen offset:1024 {c2}")
    if a2 == 4:
        A(f"v_mov_b32 v{vB+9}, 0")
        A(f"s_cmp_lg_u32 s{sC}, 0"); A("s_cbranch_scc1 L_ke_ret")
    if a2 in (0, 3, 4):
        A(f"buffer_load_dwordx2 v[{vB+8}:{vB+9}], v{vDp}, s[{sWS}:{sWS+3}], s69 offen offset:{DO} {c2}")
    A("s_branch L_ke_ret")
    Lb("L_ke2")
    A(f"s_mov_b32 s{sEv}, {K3}")
    A("s_waitcnt vmcnt(0)")
    A(f"v_readfirstlane_b32 s{sT}, v{vB+10}")
    A("s_getreg_b32 s18, hwreg(HW_REG_XCC_ID, 0, 4)")
    A(f"s_add_u32 s{sT}, s{sT}, 1"); A(f"s_and_b32 s{sT}, s{sT}, 0xffffff"); A(f"s_bitset1_b32 s{sT}, 31")
    A("s_lshl_b32 s18, s18, 24"); A(f"s_or_b32 s{sT}, s{sT}, s18")
    for h in range(2):
        g = vB + 4 * h
        A(f"v_xor_b32 v3, s{sT}, v{g}")
        for j in range(1, 4):
            A(f"s_lshr_b32 s18, s{sT}, {6*j}")
            A(f"v_bitop3_b32 v3, v{g+j}, v3, s18 bitop3:0xde")
        A("v_and_b32 v3, 63, v3")
        A("v_cmp_eq_u32 vcc, 0, v3")
        A(f"v_xor_b32 v{g}, 1, v{g}")
        A(f"s_cbranch_vccz L_kc{h}")
        A("s_mov_b64 exec, vcc")
        A(f"buffer_store_dword v{g}, v{vL16}, s[{sWS}:{sWS+3}], s67 offen offset:{1024*h} {stf}")
        A("s_mov_b64 exec, -1")
        Lb(f"L_kc{h}")
    A(f"v_cmp_eq_u32 vcc, s{sT}, v{vB+9}")
    A(f"s_cbranch_vccz L_ke_ret")
    A("s_mov_b64 exec, vcc")
    A(f"buffer_store_dword v{vZero}, v{vDp}, s[{sWS}:{sWS+3}], s69 offen offset:{DO+4} {stf}")
    A("s_mov_b64 exec, -1")
    A("s_branch L_ke_ret")
    Lb("L_ke3")
    A(f"s_mov_b32 s{sEv}, {K4}")
    A("s_waitcnt vmcnt(0)")
    A("s_branch L_ke_ret")
    Lb("L_ke4")
    A(f"s_mov_b32 s{sEv}, {K5}")
    A(f"s_cmp_lg_u32 s{sC}, 0")
    A("s_cbranch_scc1 L_ke_ret")
    A(f"v_mov_b32 v5, s{sT}"); A("v_mov_b32 v6, 1")
    A(f"buffer_store_dword v5, v{vS0}, s[{sDBG}:{sDBG+3}], s93 offen {stf}")
    if not a3: A(f"buffer_atomic_add v6, v{vS0}, s[{sWS}:{sWS+3}], s69 offen sc1")
    A("s_branch L_ke_ret")
    Lb("L_ke5")
    A(f"s_cmp_lg_u32 s{sC}, 0")
    A("s_cbranch_scc1 L_ke_ret")
    if not a4: A(f"buffer_load_dword v3, v{vS0}, s[{sV}:{sV+3}], s{sOff} offen nt")
    A(f"buffer_load_dword v{vFl}, v{vEo}, s[{sDBG}:{sDBG+3}], 0 offen {epf}")
    A("s_branch L_ke_ret")

    C("---- V phase events")
    Lb("L_ve")
    A(f"s_cmp_eq_u32 s{sCnt}, {T4}"); A("s_cbranch_scc1 L_ve_t4")
    A(f"s_cmp_eq_u32 s{sCnt}, {T3}"); A("s_cbranch_scc1 L_ve_t3")
    if T4 > 1:
        A(f"s_cmp_lt_u32 s{sCnt}, {T4}"); A("s_cbranch_scc1 L_ve_t5")
    if BS:
        A(f"s_cmp_eq_u32 s{sC}, 1"); A("s_cbranch_scc1 L_bd")
    FB = G.bit_length()
    z = [NormalDist().inv_cdf((i + 1 - 0.375) / (G + 0.25)) for i in range(G)]
    TB = 20
    A(f"s_cmp_eq_u32 s{sCnt}, {NQ}"); A("s_cbranch_scc1 L_ve_q")
    if ck:
        A(f"s_sub_u32 s18, s{sCk}, s{sCnt}")
        A(f"s_cmp_eq_u32 s18, 0"); A("s_cbranch_scc1 L_ve_a")
        A(f"s_cmp_eq_u32 s18, {CG}"); A("s_cbranch_scc1 L_ve_b")
    if nA:
        A(f"s_sub_u32 s18, s{sLA}, s{sCnt}")
        A(f"s_cmp_eq_u32 s18, 0"); A("s_cbranch_scc1 L_ve_la")
        A(f"s_cmp_eq_u32 s18, {CG}"); A("s_cbranch_scc1 L_ve_lb")
        A(f"s_cmp_eq_u32 s18, {CG + L}"); A("s_cbranch_scc1 L_ve_lc")
    A(f"s_sub_u32 s18, s{sNd}, s{sCnt}")
    A(f"s_cmp_eq_u32 s18, 3"); A("s_cbranch_scc1 L_ve_d")
    A(f"s_cmp_lg_u32 s18, 0"); A("s_cbranch_scc1 L_ve_ret")
    assert (ND < ck - CG or ND - 3 > ck or not ck) and (ND - 3 > nA) and (nA < ck - CG or not ck)
    D = 4
    if a1 == 0: A(f"buffer_load_dwordx2 v[{D}:{D+1}], v{vDp}, s[{sWS}:{sWS+3}], s69 offen offset:{DO} {dnf}")
    if a1 == 2: A(f"buffer_load_dwordx2 v[{D}:{D+1}], v{vSl}, s[{sWS}:{sWS+3}], s69 offen offset:{DO} {dnf}")
    if wu:
        A(f"v_lshlrev_b32 v2, 3, v{vL16}")
        A(f"buffer_load_dword v3, v2, s[{sWS}:{sWS+3}], s67 offen {wuf.replace('+', ' ').replace('none', '')}")
    A("s_branch L_ve_ret")
    C("finishing workgroup: the dens of the others")
    Lb("L_ve_d")
    A(f"s_mov_b32 s53, {1<<20}")
    Lb("L_dn")
    A("s_waitcnt vmcnt(0)")
    A(f"v_cmp_ne_u32 vcc, s{sT}, v{D+1}")
    A(f"v_cndmask_b32 v6, v{D}, v{vDen}, s[{sOwn}:{sOwn+1}]")
    A(f"s_andn2_b64 vcc, vcc, s[{sOwn}:{sOwn+1}]")
    A("s_cbranch_scc0 L_dn_ok")
    if a1: A("s_branch L_dn_ok")
    A(f"buffer_load_dwordx2 v[{D}:{D+1}], v{vDp}, s[{sWS}:{sWS+3}], s69 offen offset:{DO} {ldf}")
    A("s_sub_u32 s53, s53, 1")
    A("s_cbranch_scc0 L_dn")
    A("s_waitcnt vmcnt(0)")
    A(f"v_mov_b32 v6, -1")
    A("s_nop 1")
    Lb("L_dn_ok")
    A(f"v_add_f32_dpp v6, v6, v6 quad_perm:[1,0,3,2] row_mask:0xf bank_mask:0xf"); A("s_nop 1")
    A(f"v_add_f32_dpp v6, v6, v6 quad_perm:[2,3,0,1] row_mask:0xf bank_mask:0xf"); A("s_nop 1")
    A(f"v_add_f32_dpp v6, v6, v6 row_half_mirror row_mask:0xf bank_mask:0xf")
    A(f"v_cvt_pk_bf16_f32 v6, v6, v6"); A(f"v_and_b32 v6, 0xffff0000, v6")
    A(f"v_add_f32 v6, v6, v{vEps}")
    A(f"v_cvt_pk_bf16_f32 v6, v6, v6"); A(f"v_and_b32 v6, 0xffff0000, v6")
    A(f"v_rcp_f32 v7, v6")
    A("s_nop 0")
    A(f"ds_write_b32 v{vMB}, v7 offset:4")
    A("s_branch L_ve_ret")
    def draw(sh):
        if sat == 1:
            A(f"s_mov_b32 s98, {1 << sh:#x}")
            A("s_waitcnt lgkmcnt(0)")
            A(f"s_atomic_add s98, s[16:17], s86 glc")
            A("s_branch L_v")
            return
        A(f"v_mov_b32 v{vFl}, {1 << sh:#x}")
        A(f"buffer_atomic_add v{vFl}, v{vS0}, s[{sWS}:{sWS+3}], s86 offen {fx(atf)}")
        A("s_branch L_ve_ret")
    def look(sh, ent):
        for q in range(G // 2): A(f"s_mov_b32 s{TB+q}, {(ent[2*q] & 0xffff) | ((ent[2*q+1] & 0xffff) << 16):#x}")
        if sat == 1:
            A("s_waitcnt lgkmcnt(0)"); A("s_mov_b32 s18, s98")
        else:
            A("s_waitcnt vmcnt(0)")
            A(f"v_readfirstlane_b32 s18, v{vFl}")
        A(f"s_sub_u32 s18, s18, s{sTF}"); A("s_add_u32 s18, s18, 1")
        A(f"s_bfe_u32 s18, s18, {hex(sh | ((FB - 1) << 16))}")
        A("s_lshr_b32 m0, s18, 1")
        A("s_lshl_b32 s53, s18, 4")
        A(f"s_movrels_b32 s54, s{TB}")
        A("s_lshr_b32 s54, s54, s53")
    if ck:
        Lb("L_ve_a"); draw(2)
        Lb("L_ve_b")
        ent = [min(255, int(round(SB * max(0.0, x)))) | (min(255, int(round(ST * max(0.0, -x)))) << 8) for x in z]
        C("groups with the wide / narrow window by arrival rank: " + " ".join("%d/%d" % (e & 255, e >> 8) for e in ent))
        look(2, ent)
        if stamp: A("s_and_b32 s54, s54, 0xffff")
        A("v_mov_b32 v2, s54")
        A(f"ds_write_b32 v{vMB}, v2 offset:12")
        A("s_branch L_ve_ret")
    if nA:
        Lb("L_ve_la"); draw(2 + FB)
        Lb("L_ve_lb")
        ent = [int(round(sd0 * x / 16)) for x in z]
        C("shift of the posted round by arrival rank: " + " ".join(str(e) for e in ent))
        look(2 + FB, ent)
        A("s_sext_i32_i16 s54, s54")
        A("v_mov_b32 v2, s54")
        A(f"ds_write_b32 v{vMB}, v2 offset:16")
        A("s_branch L_ve_ret")
        Lb("L_ve_lc")
        A(f"ds_write_b32 v{vMB}, v{vZero} offset:16")
        A("s_branch L_ve_ret")

    C("wave c=0 takes over the epoch words and hands the den of this workgroup over")
    Lb("L_ve_q")
    A(f"v_add_u32 v2, v{vL4}, v{vMB}")
    A(f"ds_read_b32 v{vDen}, v2 offset:256")
    A(f"s_mov_b32 s53, {1<<20}")
    Lb("L_ep")
    A("s_waitcnt vmcnt(0)")
    A(f"v_readlane_b32 s{sT}, v{vFl}, 0")
    A(f"v_readlane_b32 s{sTF}, v{vFl}, 1")
    A(f"v_readlane_b32 s87, v{vFl}, 2")
    A(f"s_cmp_lg_u32 s{sT}, 0")
    A("s_cbranch_scc1 L_ep_ok")
    A(f"buffer_load_dword v{vFl}, v{vEo}, s[{sDBG}:{sDBG+3}], 0 offen sc1")
    A("s_sub_u32 s53, s53, 1")
    A("s_cbranch_scc0 L_ep")
    A("s_waitcnt vmcnt(0)")
    Lb("L_ep_ok")
    A(f"v_mov_b32 v4, s{sT}"); A("v_mov_b32 v5, 0"); A("v_mov_b32 v6, s87"); A("v_mov_b32 v7, 0")
    A(f"ds_write_b128 v{vMB}, v[4:7]")
    if nA: A(f"ds_write_b32 v{vMB}, v{vZero} offset:16")
    A(f"s_movk_i32 s18, 0x400")
    A(f"s_cmp_eq_u32 s{sPart}, 0"); A(f"s_cselect_b32 s{sNd}, {ND}, s18")
    A(f"s_cmp_lg_u32 s{sTF}, 0")
    A(f"s_cselect_b32 s{sCk}, s{sCk}, s18")
    if nA: A(f"s_cselect_b32 s{sLA}, s{sLA}, s18")
    A(f"s_mov_b32 s{sEv}, {max(ck + max(stg - 1, 0), ND)}")
    A("s_getreg_b32 s18, hwreg(HW_REG_XCC_ID, 0, 4)")
    A(f"s_bfe_u32 s{sFar}, s{sT}, 0x40018")
    A("s_waitcnt lgkmcnt(0)")
    for sft in (1, 2, 4, 8):
        A(f"v_add_f32_dpp v{vDen}, v{vDen}, v{vDen} row_ror:{sft} row_mask:0xf bank_mask:0xf")
        A("s_nop 1")
    for sw in (32, 16):
        A(f"v_mov_b32 v2, v{vDen}"); A("s_nop 1")
        A(f"v_permlane{sw}_swap_b32 v2, v{vDen}")
        A(f"v_add_f32 v{vDen}, v{vDen}, v2")
    A(f"s_cmp_eq_u32 s{sPart}, 0")
    A("s_cbranch_scc1 L_ve_ret")
    A(f"v_mov_b32 v4, v{vDen}"); A(f"v_mov_b32 v5, s{sT}"); A("v_mov_b32 v6, 0")
    A(f"s_cmp_lg_u32 s{sFar}, s18")
    if force: A("s_cmp_eq_u32 0, 0")
    A("s_cbranch_scc1 L_dfar")
    if a1 == 0: A(f"buffer_store_dwordx4 v[4:7], v{vSl}, s[{sWS}:{sWS+3}], s63 offen offset:{DO}")
    if a1 == 2:
        A(f"s_lshl_b32 s18, s{sPart}, 4"); A("s_add_u32 s18, s18, s69")
        A(f"buffer_store_dwordx4 v[4:7], v{vS0}, s[{sWS}:{sWS+3}], s18 offen offset:{DO}")
    A("s_branch L_ve_ret")
    Lb("L_dfar")
    A(f"buffer_store_dwordx4 v[4:7], v{vSl}, s[{sWS}:{sWS+3}], s63 offen offset:{DO} {stf}")
    A("s_branch L_ve_ret")

    if BS:
        assert BS + 4 < NQ and BE > T3 and dl <= per
        C("progress board (wave c=1): post the own round, compare with the neighbours behind the same L2")
        vBv, vBo = 2, 3
        Lb("L_bd")
        A(f"ds_read_b32 v4, v{vMB} offset:8")
        if nA: A(f"ds_read_b32 v5, v{vMB} offset:16")
        A(f"s_cmp_lg_u32 s{sCnt}, {BS + 4}")
        A("s_cbranch_scc1 L_bd1")
        A("s_getreg_b32 s89, hwreg(HW_REG_XCC_ID, 0, 4)")
        A(f"s_mul_i32 s89, s89, {HS}"); A(f"s_add_u32 s89, s89, {BRD}"); A("s_add_u32 s88, s88, s89")
        A(f"v_and_b32 v{vBo}, 0x7c, v{vL4}")
        A(f"s_movk_i32 s91, {1024 + bias}")
        if fb:
            A(f"s_cmp_eq_u32 s{sPart}, 0"); A(f"s_cselect_b32 s18, {fb}, 0"); A("s_sub_u32 s91, s91, s18")
        Lb("L_bd1")
        A(f"s_sub_u32 s90, {BS + 8 * per}, s{sCnt}"); A(f"s_and_b32 s90, s90, {per - 1}")
        A("s_waitcnt lgkmcnt(0)")
        A(f"v_lshl_add_u32 v4, v4, 8, s{sCnt}")
        A("s_cbranch_scc1 L_bd2")
        A(f"s_cmp_gt_u32 s{sCnt}, {BS}")
        A("s_cbranch_scc1 L_bd2")
        A(f"s_waitcnt vmcnt({dl - 1})")
        A(f"v_sub_u32 v{vBv}, v{vBv}, v4")
        A(f"v_add_u32 v{vBv}, {32 - dl}, v{vBv}")
        A(f"v_cmp_gt_u32 vcc, 64, v{vBv}")
        A("s_nop 1")
        A(f"v_cndmask_b32 v{vBv}, 32, v{vBv}, vcc")
        for sft in (1, 2, 4, 8):
            A("s_nop 1")
            A(f"v_add_u32_dpp v{vBv}, v{vBv}, v{vBv} row_ror:{sft} row_mask:0xf bank_mask:0xf")
        A("s_nop 0")
        A(f"v_readlane_b32 s18, v{vBv}, 0"); A(f"v_readlane_b32 s53, v{vBv}, 16")
        A("s_add_u32 s18, s18, s53")
        A(f"s_sub_i32 s18, s18, s91")
        A(f"s_mul_i32 s53, s18, {kT}"); A(f"s_add_i32 s53, s53, {16 - bT * kT}"); A("s_ashr_i32 s53, s53, 5")
        A("s_max_i32 s53, s53, 0"); A(f"s_min_i32 s53, s53, {mx}"); A("s_lshl_b32 s53, s53, 8")
        A(f"s_mul_i32 s18, s18, {-kB}"); A("s_add_i32 s18, s18, 16"); A("s_ashr_i32 s18, s18, 5")
        A("s_max_i32 s18, s18, 0"); A(f"s_min_i32 s18, s18, {mx}"); A("s_or_b32 s18, s18, s53")
        A("v_mov_b32 v6, s18")
        A(f"ds_write_b32 v{vMB}, v6 offset:12")
        Lb("L_bd2")
        A(f"s_cmp_eq_u32 s{sCnt}, {BE}")
        A(f"s_cselect_b32 s{sEv}, {T3}, s{sEv}")
        if nA: A("v_sub_u32 v4, v4, v5")
        A(f"buffer_store_dword v4, v{vS0}, s[{sWS}:{sWS+3}], s88 offen")
        A(f"s_cmp_lg_u32 s90, {(per - dl) % per}")
        A("s_cbranch_scc1 L_ve_ret")
        A(f"buffer_load_dword v{vBv}, v{vBo}, s[{sWS}:{sWS+3}], s89 offen {bdf}")
        A("s_branch L_ve_ret")
    Lb("L_ve_t3")
    A(f"ds_read_b64 v[{vFl}:{vFl+1}], v{vMB}")
    A("s_branch L_ve_ret")
    Lb("L_ve_t4")
    A(f"v_readfirstlane_b32 s{sTg}, v{vFl}")
    A("s_getreg_b32 s18, hwreg(HW_REG_XCC_ID, 0, 4)")
    A(f"s_mov_b32 s53, {1<<20}")
    A(f"s_bfe_u32 s{sFar}, s{sTg}, 0x40018")
    A(f"s_xor_b32 s{sFar}, s{sFar}, s18")
    if force: A(f"s_mov_b32 s{sFar}, 1")
    for t in range(1, 4): A(f"s_lshr_b32 s{sTg+t}, s{sTg}, {6*t}")
    if T4 > 1: A(f"s_mov_b32 s{sEv}, 0")
    A(f"s_cmp_lg_u32 s{sPart}, 0")
    A("s_cbranch_scc1 L_ve_ret")
    if T4 > 1: A(f"s_mov_b32 s{sEv}, 1")
    polls(p1f)
    A("s_mov_b32 s24, 0xffff0000"); A("s_mov_b32 s25, 0xffff0000"); A("s_mov_b32 s26, 0"); A("s_mov_b32 s27, -1")
    for t in range(4): A(f"v_mov_b32 v{vE+t}, s{sTg+t}")
    A("s_bfm_b64 exec, 16, 0")
    for t in range(4): A(f"v_mov_b32 v{vE+t}, 0")
    A("s_mov_b64 exec, -1")
    A("s_branch L_ve_ret")
    if T4 > 1:
        Lb("L_ve_t5")
        polls(p2f)
        A("s_branch L_ve_ret")

    if stamp:
        Lb("L_fin")
        A("s_waitcnt vmcnt(0)")
        A("s_memrealtime s[74:75]")
        A("s_getreg_b32 s82, hwreg(HW_REG_XCC_ID)")
        A("s_getreg_b32 s83, hwreg(HW_REG_HW_ID)")
        A("s_waitcnt lgkmcnt(0)")
        A(f"s_mul_i32 s19, s2, 5"); A("s_add_u32 s19, s19, s3"); A("s_lshl_b32 s19, s19, 5"); A("s_add_u32 s19, s19, 0x100000")
        A("v_mov_b32 v2, s19")
        A("v_mov_b32 v4, s70"); A("v_mov_b32 v5, s76"); A("v_mov_b32 v6, s72"); A("v_mov_b32 v7, s82")
        A("v_mov_b32 v8, s83"); A("v_mov_b32 v9, s78"); A("v_mov_b32 v10, s80"); A("v_mov_b32 v11, s74")
        A("s_mov_b64 exec, 1")
        A("global_store_dwordx4 v2, v[4:7], s[16:17]")
        A("global_store_dwordx4 v2, v[8:11], s[16:17] offset:16")
        A("s_waitcnt vmcnt(0)")
    if amp:
        for i in range(len(o)):
            if o[i].strip() == "s_endpgm": o[i] = "  s_branch L_amp"
        Lb("L_amp")
        A("s_waitcnt vmcnt(0)")
        A("s_memrealtime s[74:75]"); A("s_waitcnt lgkmcnt(0)")
        A("s_sub_u32 s74, s74, s70"); A(f"s_mul_i32 s76, s74, {amp}")
        Lb("L_amp2")
        A("s_memrealtime s[72:73]"); A("s_waitcnt lgkmcnt(0)")
        A("s_sub_u32 s72, s72, s70"); A(f"s_cmp_lt_u32 s72, s76"); A("s_cbranch_scc1 L_amp2")
    Lb("L_end")
    A("s_endpgm")
    o.append('.section .rodata,"a"'); o.append(".p2align 6"); o.append(f".amdhsa_kernel {KN}")
    A(f".amdhsa_next_free_vgpr {nv}"); A(".amdhsa_next_free_sgpr 100"); A(f".amdhsa_accum_offset {nv}")
    A(".amdhsa_group_segment_fixed_size 0"); A(".amdhsa_kernarg_size 56"); A(".amdhsa_user_sgpr_count 2")
    A(".amdhsa_user_sgpr_kernarg_segment_ptr 1"); A(".amdhsa_system_sgpr_workgroup_id_x 1")
    A(".amdhsa_float_denorm_mode_32 3")
    o.append(".end_amdhsa_kernel")
    return "\n".join(o) + "\n"

if __name__ == "__main__":
    out = sys.argv[1]
    kw = {}
    for kv in sys.argv[2:]:
        k, v = kv.split("=")
        kw[k] = int(v) if v.lstrip("-").isdigit() else v
    open(out, "w").write(gen(**kw))
```

```python
import sys, struct, math
KN = "standalone__linear_kernel_rfa__decode_kernel"
def f2u(x): return struct.unpack("<I", struct.pack("<f", x))[0]

HEADER = """; Kernarg layout for this problem (56 bytes, ptrs only, base s[0:1]):
"""

def gen(W=22, WB=32, WT=16, WO=0, ND=56, T4=2, jo="x30142675", K2=25, K3=23, K4=21, K5=6,
        CS=12, CE=122, tau=53, kB=20, kT=16, bias=-2, dead=0, gG=3, mxB=4, mxT=3, fr=1, dif=2, SPn=4, wc=3, per=1, RG=2048, gsf="sc1", gab=0, gph=4, gat=1, an=3, gf=0, al=0, eB=0, eT=0, cR=0, cN=0, aR=5, cX=0, sx=0, GX=100, GSH=1, ib=0, ro="", k1=8, k2=64, uB=110, uT=128, gE=12, gm="x16.48.80.96.110",
        cp=0, trace=0, nb=16, lp=2, dT=0, gp=16, gl=2, glf="sc1", gs=256, stamp=0, prio=3, force=0, hx=-1, hk=20):
    NWG = 256
    stf = ldf = "sc1"; chkf = "sc1 nt"
    o = []
    A = lambda s: o.append("  " + s)
    Lb = lambda s: o.append(s + ":")
    C = lambda s: o.append("; " + s)
    WA = 65536
    OMG = WA + 16384
    QL = OMG + 8192
    MB = QL + 512
    lds = QL + 1024
    o.append(HEADER.rstrip("\n"))
    o.append(f"; @launch grid=({NWG},1,1) block=(384,1,1) lds={lds}")
    o.append('.amdgcn_target "amdgcn-amd-amdhsa--gfx950"')
    o.append(".text"); o.append(f".globl {KN}"); o.append(".p2align 8"); o.append(f".type {KN},@function"); Lb(KN)

    sK, sV, sOM, sQ, sOUT, sWS, sDBG = 20, 24, 28, 32, 36, 40, 44
    sOff, sRing, sCnt = 48, 49, 50
    sT = 51
    sMask, sL2E = 54, 62
    sHead, sPart, sC = 64, 65, 66
    sEv, sFar = 84, 85
    sRaw = 82
    GRP = 2048
    CTR = 128 * GRP
    HS = 8448
    BRD = CTR + 32 * HS
    GLB = BRD + 16 * HS
    WSB = GLB + 16 * gs + 130 // gp * gf
    DO = 1024
    OOB = 0x7ff00000

    sJ, sBE, sTE, sR, sX, sTab = 50, 51, 52, 53, 54, 56
    A(f"s_load_dwordx2 s[{sK}:{sK+1}], s[0:1], 8")
    if stamp: A("s_memrealtime s[70:71]")
    A("v_readfirstlane_b32 s3, v0")
    A(f"s_lshr_b32 s18, s2, 8")
    A("s_cbranch_scc1 L_end")
    A(f"s_mov_b32 s{sRaw}, s2")
    C("head = low five bits of the id rotated right by one, part = the upper three")
    A("s_and_b32 s18, s2, 31"); A("s_mul_i32 s18, s18, 33"); A("s_bfe_u32 s18, s18, 0x50001")
    A("s_lshr_b32 s2, s2, 5"); A("s_lshl3_add_u32 s2, s18, s2")
    A(f"s_lshl_b32 s{sOff}, s2, 20")
    A("s_cmp_lg_u32 s3, 0")
    A("s_cbranch_scc1 L_cons")
    def dma_offsets():
        A("v_and_b32 v1, 32, v0")
        A("v_lshlrev_b32 v4, 4, v0")
        A("v_xor_b32 v4, v4, v1")
        A("v_xor_b32 v5, 64, v4")
        A("v_xor_b32 v6, 0x80, v4")
        A("v_xor_b32 v7, 64, v6")

    C("---- loader wave: 4 KiB groups, a barrier after every fourth")
    assert WB <= 32
    cols = [1 << int(ch, 16) for ch in jo[1:]]
    assert len(cols) == 8
    T = []; acc = 0
    for c in cols: acc ^= c; T.append(acc)
    T.append(acc)
    movk = lambda r, v: A(f"s_mov_b32 s{r}, {v}" if v <= 64 else f"s_movk_i32 s{r}, {v}")
    dma_offsets()
    A(f"s_brev_b32 s{sK+2}, 8"); A(f"s_mov_b32 s{sK+3}, 0x20000")
    A(f"s_mov_b32 m0, 0")
    rot = [(int(x[0]), int(x[1])) for x in ro[1:].split(".")] if ro else []
    sJr = 66
    if rot:
        A(f"s_mov_b32 s{sJr}, 0")
        for ib, jb in rot:
            A(f"s_bfe_u32 s18, s2, {ib | 0x10000:#x}")
            A(f"s_lshl_b32 s19, s18, {jb}"); A(f"s_or_b32 s{sJr}, s{sJr}, s19")
            A(f"s_lshl_b32 s19, s18, {12 + cols[jb].bit_length() - 1}"); A(f"s_or_b32 s{sOff}, s{sOff}, s19")
    def loads():
        for n in range(4):
            A(f"buffer_load_dwordx4 v{4+n}, s[{sK}:{sK+3}], s{sOff} offen offset:{n*1024} nt lds")
    A("s_waitcnt lgkmcnt(0)")
    loads()
    A(f"s_mov_b64 s[{sJ}:{sJ+1}], 0"); A(f"s_mov_b32 s{sTE}, 0")
    if ib: A(f"s_mov_b32 s{sBE}, {ib}")
    A(f"s_lshr_b32 s{sX}, s{sOff}, 12")
    if WO: A("s_getreg_b32 s55, hwreg(HW_REG_XCC_ID, 0, 1)")
    early = 9 if any(jb < 3 for ib, jb in rot) else 3
    for k in range(early): movk(sTab + k, T[k])
    A(f"s_load_dwordx2 s[8:9], s[0:1], 16")
    if stamp: A(f"s_load_dwordx2 s[16:17], s[0:1], 48")
    A(f"v_mov_b32 v9, {MB}")
    A("s_branch L_st")
    Lb("L_ld")
    A(f"ds_read_b32 v8, v9 offset:12")
    A(f"s_cmp_lt_u32 s{sJ}, s{sTE}")
    A("s_cbranch_scc0 L_nt")
    A(f"s_waitcnt vmcnt({WT-4})")
    Lb("L_nt")
    A(f"s_cmp_lt_u32 s{sJ}, s{sBE}")
    A("s_cbranch_scc1 L_w")
    if WO:
        A(f"s_cmp_eq_u32 s55, 0")
        A("s_cbranch_scc1 L_wo")
        A(f"s_waitcnt vmcnt({WO-4})")
        Lb("L_wo")
    A(f"s_waitcnt vmcnt({W-4})")
    Lb("L_w")
    A(f"s_waitcnt vmcnt({WB-4})")
    loads()
    Lb("L_st")
    A(f"s_add_u32 s{sJ}, s{sJ}, 1")
    if rot:
        A(f"s_add_u32 s{sJr}, s{sJr}, 1"); A(f"s_ff1_i32_b32 m0, s{sJr}")
    else:
        A(f"s_ff1_i32_b32 m0, s{sJ}")
    A(f"s_lshl_b32 s18, s{sJ}, 12")
    A(f"s_movrels_b32 s19, s{sTab}")
    A(f"s_and_b32 m0, s18, 0xffff")
    A(f"s_xor_b32 s{sX}, s{sX}, s19")
    A(f"s_lshl_b32 s{sOff}, s{sX}, 12")
    A(f"s_and_b32 s18, s{sJ}, 3")
    A("s_cbranch_scc1 L_ld")
    A(f"s_cmp_lt_u32 s{sJ}, 12")
    A("s_cbranch_scc1 L_in2")
    A("s_waitcnt lgkmcnt(0)")
    A(f"v_readfirstlane_b32 s{sR}, v8")
    A("s_barrier")
    A(f"s_and_b32 s{sBE}, s{sR}, 0xffff")
    A(f"s_lshr_b32 s{sTE}, s{sR}, 16")
    A(f"s_and_b32 s18, s{sJ}, 0xff")
    A("s_cbranch_scc1 L_ld")
    A(f"s_mov_b32 s{sK}, s8"); A(f"s_mov_b32 s{sK+1}, s9")
    if stamp:
        A(f"s_cmpk_lg_u32 s{sJ}, 256"); A("s_cbranch_scc1 L_nk"); A("s_memrealtime s[76:77]"); Lb("L_nk")
    A(f"s_cmpk_lg_u32 s{sJ}, 512")
    A("s_cbranch_scc1 L_ld")
    if stamp: A("s_memrealtime s[78:79]")
    A("s_waitcnt vmcnt(16)")
    A("s_barrier")
    A("s_waitcnt vmcnt(0)")
    A("s_barrier")
    if stamp:
        A("s_memrealtime s[72:73]")
        A("s_branch L_fin")
    else:
        A("s_endpgm")
    Lb("L_in2")
    for k in range(early, 9): movk(sTab + k, T[k])
    if rot: movk(sTab + 9, T[8])
    A(f"v_mov_b32 v10, {ib}")
    A("ds_write_b32 v9, v10 offset:12")
    if prio: A(f"s_setprio {prio}")
    if stamp: A("s_mov_b32 s80, 0")
    A("s_branch L_ld")

    def steering():
        C("---- steering wave: every workgroup posts the time at which it would finish at the nominal rate; who is")
        C("     behind the others gets a wider window of loads for a few groups, who is ahead a narrower one")
        Lb("L_ctl")
        vB, vD, vLo, vP0, vG, vA, vMBc, vP = 2, 3, 4, 5, 7, 8, 9, 10
        sB, sRem, sE, sGm, sXc, sJ0, sAc, sBase = 50, 51, 52, 53, 54, 55, 56, 57
        A(f"s_getreg_b32 s{sXc}, hwreg(HW_REG_XCC_ID, 0, 4)")
        A(f"s_mov_b32 s{sWS+2}, {WSB}"); A(f"s_mov_b32 s{sWS+3}, 0x20000")
        A(f"s_mul_i32 s{sBase}, s{sXc}, {HS}"); A(f"s_add_u32 s{sBase}, s{sBase}, {BRD}")
        A(f"v_mul_u32_u24 v{vLo}, {gs}, v0"); A(f"v_add_u32 v{vLo}, {GLB - 48 * gs}, v{vLo}")
        A(f"s_mul_i32 s19, s{sXc}, {gs}"); A(f"s_add_u32 s19, s19, {GLB - 48 * 16}"); A(f"v_lshl_add_u32 v{vG}, v0, 4, s19")
        A("s_bfm_b64 s[66:67], 34, 0"); A("s_bfm_b64 s[64:65], 8, 48")
        A("s_mov_b64 exec, s[66:67]"); A(f"v_lshl_add_u32 v{vLo}, v0, 3, s{sBase}")
        A("s_bfm_b64 exec, 2, 32"); A(f"v_subrev_u32 v{vLo}, {256 - 4}, v{vLo}")
        A("s_mov_b64 exec, -1")
        A(f"v_mov_b32 v{vMBc}, {MB}"); A(f"v_mov_b32 v{vB}, 0")
        A("v_mov_b32 v13, 0"); A("v_mov_b32 v14, 0"); A("v_mov_b32 v15, 0")
        A(f"s_lshr_b32 s18, s{sRaw}, 3")
        A(f"s_cselect_b32 s69, 0, 3"); A(f"s_cselect_b32 s{sGm}, -1, {gp - 1}")
        if gm:
            m = sum(1 << ((4 * int(x) + 16) // 8 + 1) for x in gm[1:].split("."))
            A(f"s_cselect_b32 s80, 0, {m & 0xffffffff:#x}"); A(f"s_cselect_b32 s81, 0, {m >> 32:#x}")
        A("s_lshl_b32 s68, 1, s18")
        A(f"s_movk_i32 s{sRem}, {(128 - CS) * tau}")
        if WO and wc:
            A(f"s_bitcmp0_b32 s{sXc}, 0"); A(f"s_cselect_b32 s18, {wc}, 0"); A(f"s_add_u32 s{sRem}, s{sRem}, s18")
        A(f"s_add_u32 s{sXc}, s{sXc}, 48")
        A(f"s_movk_i32 s{sJ0}, {4 * CS + 16 - 4 * per}")
        A(f"s_mov_b32 s{sB}, 0"); A(f"s_mov_b32 s{sAc}, 0"); A("s_mov_b32 s71, 0"); A("s_mov_b32 s72, 0"); A(f"s_mov_b32 s73, 0")
        A("s_waitcnt lgkmcnt(0)")
        A(f"s_mov_b32 s{sWS}, s16"); A(f"s_mov_b32 s{sWS+1}, s17")
        if cp: A(f"s_setprio {cp}")
        if trace:
            A(f"s_mov_b32 s{sWS+2}, 0x1000000")
            A(f"s_lshl_b32 s60, s{sRaw}, 11"); A("s_add_u32 s60, s60, 0x200000"); A("v_mov_b32 v20, s60")
        Lb("L_c1")
        A("s_barrier")
        A(f"s_add_u32 s{sB}, s{sB}, 1")
        A(f"s_cmp_lt_u32 s{sB}, {CS + 1 - per}")
        A("s_cbranch_scc1 L_c1")
        A(f"s_movk_i32 s{sB}, {1023 - gph}")
        Lb("L_c2")
        for _ in range(per): A("s_barrier")
        A("s_memrealtime s[18:19]")
        A(f"s_add_u32 s{sJ0}, s{sJ0}, {4 * per}")
        A(f"s_add_u32 s{sB}, s{sB}, 1")
        A(f"s_waitcnt vmcnt({nb}) lgkmcnt(0)")
        A(f"s_add_u32 s{sE}, s18, s{sRem}")
        if cR or cN:
            A(f"s_sub_i32 s74, s{sE}, s73"); A(f"s_mov_b32 s73, s{sE}"); A("s_min_i32 s74, s74, 48"); A("s_max_i32 s74, s74, -48")
            A(f"s_ashr_i32 s75, s72, {aR}"); A("s_sub_i32 s72, s75, s72"); A("s_add_i32 s72, s72, s74")
            A(f"s_bitcmp1_b32 s{sJ0}, 2"); A(f"s_cselect_b32 s74, {cR - cN}, {-cR - cN}")
            A("s_mul_i32 s76, s74, s72"); A(f"s_ashr_i32 s74, s76, {aR + 3}")
            if cX: A(f"s_cmpk_ge_u32 s{sJ0}, {4 * cX + 16}"); A("s_cselect_b32 s74, s74, 0")
            A(f"s_add_u32 s{sE}, s{sE}, s74")
        A(f"s_sub_u32 s18, {RG}, s{sE}")
        A(f"v_add_u32 v{vD}, s18, v{vB}")
        A(f"v_cmp_gt_u32 vcc, {2 * RG}, v{vD}")
        A(f"v_subrev_u32 v{vD}, {RG}, v{vD}")
        A("s_lshr_b32 s61, vcc_hi, 16")
        A(f"v_cndmask_b32 v{vD}, 0, v{vD}, vcc")
        A(f"s_sub_u32 s{sRem}, s{sRem}, {tau * per}")
        A(f"v_readlane_b32 s58, v{vD}, 32"); A(f"v_readlane_b32 s59, v{vD}, 33"); A(f"v_readlane_b32 s60, v{vD}, s{sXc}")
        for sft in (1, 2, 4, 8):
            A(f"v_add_u32_dpp v{vD}, v{vD}, v{vD} row_ror:{sft} row_mask:0xf bank_mask:0xf")
            if sft == 1 and gE:
                A("s_sub_i32 s58, s58, s59"); A(f"s_cmpk_lt_u32 s{sJ0}, {4 * GX + 16}"); A(f"s_cselect_b32 s59, {gE * 4}, {gG * 4}"); A(f"s_mul_i32 s58, s58, s59")
            elif sft == 1: A("s_sub_i32 s58, s58, s59"); A(f"s_mul_i32 s58, s58, {gG * 4}")
            elif sft < 8: A("s_nop 1")
        A("s_cmpk_eq_u32 s61, 0xff")
        A(f"v_readlane_b32 s18, v{vD}, 0"); A(f"v_readlane_b32 s19, v{vD}, 16"); A(f"v_readlane_b32 s59, v{vD}, 48")
        A("s_cselect_b32 s60, s60, 0"); A("s_cselect_b32 s59, s59, 0")
        A("s_add_i32 s18, s18, s19")
        A("s_sub_i32 s58, s58, s18")
        if bias: A(f"s_add_i32 s58, s58, {bias * 32}")
        if GX and dif != 2:
            A(f"s_cmpk_lt_u32 s{sJ0}, {4 * GX + 16}"); A(f"s_cselect_b32 s19, {GSH}, 0"); A("s_ashr_i32 s58, s58, s19")
        if al:
            if trace: A("s_mov_b32 s70, s58")
            A(f"s_sub_i32 s58, s58, s71"); A(f"s_ashr_i32 s58, s58, {al}"); A(f"s_add_i32 s58, s58, s71")
        if dif == 2:
            A(f"s_cmpk_lt_u32 s{sJ0}, {4 * GX + 16}"); A(f"s_cselect_b32 s19, {k1}, {k2}")
            A("s_mul_i32 s19, s19, s58"); A("s_ashr_i32 s19, s19, 8"); A(f"s_add_i32 s{sAc}, s{sAc}, s19")
            A(f"s_mul_i32 s62, s{sAc}, {65536 // uB + 1}"); A("s_ashr_i32 s62, s62, 16")
            A(f"s_mul_i32 s63, s{sAc}, {-(65536 // uT + 1)}"); A("s_ashr_i32 s63, s63, 16")
            A(f"s_max_i32 s62, s62, 0"); A(f"s_max_i32 s63, s63, 0")
            A(f"s_mul_i32 s19, s62, {uB}"); A(f"s_sub_i32 s{sAc}, s{sAc}, s19")
            A(f"s_mul_i32 s19, s63, {uT}"); A(f"s_add_i32 s{sAc}, s{sAc}, s19")
        elif dif:
            A(f"s_cmp_ge_i32 s58, 0"); A(f"s_cselect_b32 s19, {kB}, {kT}")
            A(f"s_mul_i32 s19, s19, s58"); A(f"s_add_i32 s19, s19, s{sAc}")
            A(f"s_add_i32 s62, s19, {1 << 12}"); A("s_ashr_i32 s62, s62, 13")
            A("s_lshl_b32 s63, s62, 13"); A(f"s_sub_i32 s{sAc}, s19, s63")
            A("s_sub_i32 s63, 0, s62")
        else:
            A(f"s_mul_i32 s62, s58, {kB}"); A(f"s_add_i32 s62, s62, {(1 << 12) - dead * 32 * kB}"); A("s_ashr_i32 s62, s62, 13")
            A(f"s_mul_i32 s63, s58, {-kT}"); A(f"s_add_i32 s63, s63, {(1 << 12) - dT * 32 * kT}"); A("s_ashr_i32 s63, s63, 13")
        A(f"s_min_i32 s62, s62, {mxB}"); A(f"s_min_i32 s63, s63, {mxT}")
        A(f"s_max_i32 s62, s62, 0"); A(f"s_max_i32 s63, s63, 0")
        if al:
            A(f"s_mul_i32 s19, s62, {-eB * 4}"); A(f"s_mul_i32 s71, s63, {eT * 4}"); A("s_add_i32 s71, s71, s19"); A("s_add_i32 s71, s71, s58")
            if trace: A("s_mov_b32 s58, s70")
        A(f"s_add_u32 s62, s62, s{sJ0}"); A(f"s_add_u32 s63, s63, s{sJ0}")
        A("s_pack_ll_b32_b16 s62, s62, s63")
        A(f"v_mov_b32 v{vA}, s62")
        A(f"ds_write_b32 v{vMBc}, v{vA} offset:12")
        if trace:
            A(f"v_mov_b32 v24, s{sE}"); A("v_mov_b32 v25, s58"); A("v_mov_b32 v26, s62"); A("v_mov_b32 v27, s18")
            A("s_mov_b64 exec, 1")
            A(f"buffer_store_dwordx4 v[24:27], v20, s[{sWS}:{sWS+3}], 0 offen")
            A("s_mov_b64 exec, -1")
            A("v_add_u32 v20, 16, v20")
        A(f"s_cmpk_lt_u32 s{sJ0}, {4 * CE + 16 - 4 * per + 1}")
        A("s_cbranch_scc0 L_c6")
        if lp > 1:
            A(f"s_and_b32 s19, s{sB}, {lp - 1}"); A("s_cbranch_scc1 L_c3")
        A("s_ashr_i32 s59, s59, 3"); A(f"s_add_u32 s59, s59, s{sE}")
        A(f"s_add_u32 s60, s60, s{sE}")
        A(f"v_mov_b32 v{vP}, s{sE}"); A(f"v_writelane_b32 v{vP}, s60, 32"); A(f"v_writelane_b32 v{vP}, s59, 33")
        A("s_mov_b64 exec, s[68:69]")
        A(f"buffer_store_dword v{vP}, v{vLo}, s[{sWS}:{sWS+3}], 0 offen")
        A("s_mov_b64 exec, s[66:67]")
        A(f"buffer_load_dword v{vB}, v{vLo}, s[{sWS}:{sWS+3}], 0 offen sc1")
        Lb("L_c3")
        if gm:
            A(f"s_lshr_b32 s19, s{sJ0}, 3"); A(f"s_lshr_b64 s[78:79], s[80:81], s19"); A(f"s_bitcmp1_b32 s{sJ0}, 2"); A("s_cselect_b32 s78, 0, s78")
            A("s_bitcmp0_b32 s78, 1")
        else:
            A(f"s_and_b32 s19, s{sB}, s{sGm}")
        A("s_mov_b64 exec, s[64:65]")
        A("s_cbranch_scc1 L_c4")
        A("s_ashr_i32 s18, s18, 5"); A(f"s_add_u32 s18, s18, s{sE}")
        A(f"v_mov_b32 v12, s18")
        if gf: A(f"v_add_u32 v{vG}, {gf}, v{vG}"); A(f"v_add_u32 v{vLo}, {gf}, v{vLo}")
        if gab != 1:
            if gat:
                A("s_bfm_b64 exec, 1, 48")
                A(f"buffer_atomic_swap v12, v{vG}, s[{sWS}:{sWS+3}], 0 offen sc1")
                A("s_mov_b64 exec, s[64:65]")
            elif gs < 128:
                A("s_bfm_b64 exec, 1, 48")
                A(f"buffer_store_dword v12, v{vG}, s[{sWS}:{sWS+3}], 0 offen {gsf.replace('+', ' ')}")
                A("s_mov_b64 exec, s[64:65]")
            else:
                A(f"buffer_store_dwordx4 v[12:15], v{vG}, s[{sWS}:{sWS+3}], 0 offen {gsf.replace('+', ' ')}")
        if gl:
            Lb("L_c4")
            if gm: A("s_bitcmp0_b32 s78, 0")
            else: A(f"s_cmp_lg_u32 s19, {gl}")
            A("s_cbranch_scc1 L_c5")
        if gab != 2: A(f"buffer_load_dword v{vB}, v{vLo}, s[{sWS}:{sWS+3}], 0 offen {glf.replace('+', ' ')}")
        Lb("L_c5" if gl else "L_c4")
        A("s_mov_b64 exec, -1")
        A("s_branch L_c2")
        Lb("L_c6")
        lastb = CS + ((CE - CS) // per) * per
        if SPn:
            spb = 124 - SPn // 4
            assert spb > lastb and SPn % 4 == 0
            for _ in range(spb - lastb): A("s_barrier")
            if sx:
                A("s_cmp_ge_i32 s76, 0"); A(f"s_cselect_b32 s18, 0, {sx}"); A("s_sub_u32 s18, 0x200, s18"); A(f"v_mov_b32 v{vA}, s18")
            else:
                A(f"v_mov_b32 v{vA}, 0x200")
            A(f"ds_write_b32 v{vMBc}, v{vA} offset:12")
        A("s_waitcnt lgkmcnt(0)")
        A("s_branch L_end")

    vM8, vEps = 8, 9
    vM1, vM2, vDen, vQa = 12, 13, 14, 15
    vKb = 16
    vVb = 20
    vAd = 24
    vPa = 28
    vSn = 29
    vFl = 30
    vKP = 32; vG = 36; vX = 40; vT = 42; vY = 44; vPH = 48; vPQ = 52
    vDp = 54
    vPo = 55
    vS0 = 56
    vL4 = 57
    vZero = 58
    vMB = 59
    vL16 = 60
    vSl = 61
    vOM = 64; vK = 96; vB = 128; vA = 144; vACC = 148; vE = 164
    nv = 168
    sOwn = 94
    sNd = 97
    o.append(".p2align 6")
    C("---- consumer waves")
    Lb("L_cons")
    A(f"s_load_dwordx8 s[4:11], s[0:1], 0")
    A(f"s_load_dwordx4 s[12:15], s[0:1], 32")
    A(f"s_load_dwordx2 s[16:17], s[0:1], 48")
    A("v_and_b32 v0, 63, v0")
    A("s_cmpk_eq_u32 s3, 320")
    A("s_cbranch_scc1 L_ctl")
    dma_offsets()
    A("s_lshr_b32 s3, s3, 6")
    A(f"s_sub_u32 s{sC}, s3, 1")
    A(f"s_lshr_b32 s{sHead}, s2, 3")
    A(f"s_mov_b32 s{sOM+2}, 8192"); A(f"s_mov_b32 s{sOM+3}, 0x20000")
    A(f"s_mov_b32 s{sQ+2}, 16384"); A(f"s_mov_b32 s{sQ+3}, 0x20000")
    A(f"s_lshl_b32 s19, s{sHead}, 9")
    A(f"s_mov_b32 m0, {OMG}")
    A(f"s_mov_b32 s18, 4096")
    A(f"s_cmp_lg_u32 s{sC}, 0")
    A("s_waitcnt lgkmcnt(0)")
    A(f"s_mov_b32 s{sOM}, s10"); A(f"s_mov_b32 s{sOM+1}, s11")
    A(f"s_mov_b32 s{sQ}, s4"); A(f"s_mov_b32 s{sQ+1}, s5")
    A("s_cbranch_scc1 L_noom")
    for n in range(4):
        A(f"buffer_load_dwordx4 v{4+n}, s[{sOM}:{sOM+3}], 0 offen offset:{n*1024} lds")
    A(f"s_mov_b32 m0, {OMG+4096}"); A("s_nop 0")
    for n in range(4):
        A(f"buffer_load_dwordx4 v{4+n}, s[{sOM}:{sOM+3}], s18 offen offset:{n*1024} lds")
    A(f"s_mov_b32 m0, {QL}")
    A("s_bfm_b64 exec, 32, 0")
    A(f"buffer_load_dwordx4 v4, s[{sQ}:{sQ+3}], s19 offen nt lds")
    A("s_mov_b64 exec, -1")
    Lb("L_noom")
    A(f"s_lshr_b32 s{sPart}, s2, 5"); A(f"s_sub_u32 s{sPart}, s2, s{sPart}"); A(f"s_and_b32 s{sPart}, s{sPart}, 7")
    A(f"s_mov_b32 s{sWS}, s16"); A(f"s_mov_b32 s{sWS+1}, s17"); A(f"s_mov_b32 s{sWS+2}, {WSB}"); A(f"s_mov_b32 s{sWS+3}, 0x20000")
    A(f"s_mov_b32 s{sOUT}, s12"); A(f"s_mov_b32 s{sOUT+1}, s13"); A(f"s_mov_b32 s{sOUT+2}, 16384"); A(f"s_mov_b32 s{sOUT+3}, 0x20000")
    A(f"s_mov_b32 s{sDBG}, s14"); A(f"s_mov_b32 s{sDBG+1}, s15"); A(f"s_mov_b32 s{sDBG+2}, 256"); A(f"s_mov_b32 s{sDBG+3}, 0x20000")
    A(f"s_mov_b32 s{sV}, s8"); A(f"s_mov_b32 s{sV+1}, s9"); A(f"s_mov_b32 s{sV+2}, {1<<28}"); A(f"s_mov_b32 s{sV+3}, 0x20000")
    A("v_lshrrev_b32 v5, 4, v0")
    A("v_and_b32 v1, 15, v0")
    A(f"s_lshl_b32 s93, s{sHead}, 2")
    A(f"v_lshlrev_b32 v{vL4}, 2, v0"); A(f"v_mov_b32 v{vZero}, 0"); A(f"v_mov_b32 v{vMB}, {MB}")
    A(f"s_add_u32 s67, s93, s{sC}"); A("s_lshl_b32 s67, s67, 11")
    A(f"s_lshl_b32 s68, s{sPart}, 8"); A("s_add_u32 s68, s68, s67")
    A(f"s_mul_i32 s69, s{sHead}, {HS}"); A(f"s_add_u32 s69, s69, {CTR}")
    A(f"s_lshl_b32 s63, s{sPart}, 7"); A("s_add_u32 s63, s63, s69")
    A(f"s_lshl_b32 s18, s{sC}, 7"); A(f"s_add_u32 s19, s18, s19")
    A(f"v_mov_b32 v7, {OOB:#x}"); A(f"v_lshlrev_b32 v{vL16}, 4, v0")
    A("v_and_b32 v3, 7, v0")
    A(f"v_lshlrev_b32 v{vDp}, 7, v3")
    A(f"v_mov_b32 v{vSn}, v7"); A(f"v_mov_b32 v{vPo}, v{vL16}"); A(f"v_mov_b32 v{vSl}, v7")
    A(f"v_mov_b32 v{vS0}, v7")
    A(f"v_mov_b32 v{vM1}, -1"); A(f"v_mov_b32 v{vM2}, 0xffff0000")
    A(f"s_mov_b32 s{sOwn}, 0x01010101"); A(f"s_mov_b32 s{sOwn+1}, 0x01010101")
    A(f"v_cndmask_b32 v{vDp}, v{vDp}, v7, s[{sOwn}:{sOwn+1}]")
    C("finishing workgroup: what earlier launches left in the hand-over words")
    A(f"s_cmp_lg_u32 s{sPart}, 0"); A("s_cbranch_scc1 L_noec")
    if not an: A(f"buffer_load_dword v{vB+10}, v{vZero}, s[{sWS}:{sWS+3}], s69 offen {chkf}")
    A(f"buffer_load_dwordx4 v[{vB}:{vB+3}], v{vL16}, s[{sWS}:{sWS+3}], s67 offen {chkf}")
    A(f"buffer_load_dwordx4 v[{vB+4}:{vB+7}], v{vL16}, s[{sWS}:{sWS+3}], s67 offen offset:1024 {chkf}")
    A(f"buffer_load_dwordx2 v[{vB+8}:{vB+9}], v{vDp}, s[{sWS}:{sWS+3}], s69 offen offset:{DO} {chkf}")
    Lb("L_noec")
    A("s_bfm_b64 exec, 48, 0"); A(f"v_mov_b32 v{vM1}, v{vM2}")
    A("s_bfm_b64 exec, 32, 0"); A(f"v_mov_b32 v{vM2}, 0")
    A("s_bfm_b64 exec, 16, 0"); A(f"v_mov_b32 v{vM1}, 0"); A(f"v_mov_b32 v{vSn}, v{vL16}"); A(f"v_mov_b32 v{vPo}, v7")
    A("s_bfm_b64 exec, 8, 0"); A(f"v_mov_b32 v{vSl}, v{vL16}")
    A("s_mov_b64 exec, -1")
    A(f"v_writelane_b32 v{vS0}, 0, 0")
    A("v_and_b32 v6, 7, v1"); A("v_lshlrev_b32 v6, 1, v6")
    A("v_xor_b32 v6, v6, v5")
    A("v_lshlrev_b32 v6, 4, v6"); A(f"v_lshl_add_u32 v{vKb}, v1, 9, v6")
    for jj in range(1, 4): A(f"v_xor_b32 v{vKb+jj}, {jj*64}, v{vKb}")
    A(f"v_lshlrev_b32 v11, 4, v5")
    A(f"v_lshl_add_u32 v{vQa}, v5, 3, v{vMB}")
    A("v_lshrrev_b32 v6, 2, v0")
    A("v_and_b32 v7, 7, v6")
    A(f"s_lshl_b32 s18, s{sC}, 2")
    A("v_xor_b32 v7, s18, v7")
    A("v_lshlrev_b32 v7, 5, v7"); A("v_lshl_add_u32 v7, v6, 9, v7")
    A("v_and_b32 v10, 3, v0"); A(f"v_lshl_add_u32 v{vVb}, v10, 3, v7")
    for t in range(1, 4): A(f"v_xor_b32 v{vVb+t}, {t*32}, v{vVb}")
    for r in range(4):
        m = (1 << r) | (1 << (20 + r)) | (1 << (40 + r)) | (1 << (60 + r))
        A(f"s_mov_b32 s{sMask+2*r}, {m & 0xffffffff:#x}"); A(f"s_mov_b32 s{sMask+2*r+1}, {m >> 32:#x}")
    A(f"s_mov_b32 s{sL2E}, {f2u(math.log2(math.e)/4):#x}")
    A(f"v_mov_b32 v{vM8}, {f2u(-0.125):#x}"); A(f"v_mov_b32 v{vEps}, {f2u(1e-6):#x}")
    for r in range(16): A(f"v_mov_b32 v{vACC+r}, 0")
    A(f"v_mov_b32 v{vDen}, 0")
    A(f"s_and_b32 s18, s{sC}, 1"); A(f"s_lshr_b32 s52, s{sC}, 1")
    A(f"s_lshl_b32 s{sRing}, s52, 14"); A("s_lshl_b32 s53, s18, 13"); A(f"s_add_u32 s{sRing}, s{sRing}, s53")
    A("s_lshl_b32 s53, s52, 8"); A("s_lshl_b32 s18, s18, 3"); A("s_add_u32 s53, s53, s18"); A(f"s_add_u32 s53, s53, {WA}")
    A(f"v_lshl_add_u32 v{vPa}, v6, 4, s53"); A(f"v_lshl_add_u32 v{vPa}, v10, 1, v{vPa}")
    for jj in range(4): A(f"v_add_u32 v{vAd+jj}, {OMG}, v{vKb+jj}")
    A(f"v_add_u32 v2, {QL}, v11")
    A(f"s_mov_b32 s{sCnt}, 32")
    A(f"s_cmp_eq_u32 s{sPart}, 0")
    A(f"s_cselect_b32 s{sEv}, {K2}, {K5}")
    A("s_cbranch_scc1 L_ecw")
    A("s_waitcnt vmcnt(0)")
    Lb("L_ecw")
    A("s_waitcnt vmcnt(%d)" % (3 if an else 4))
    A("s_barrier")
    for j in range(8):
        A(f"ds_read_b128 v[{vOM+j*4}:{vOM+j*4+3}], v{vAd+(j&3)} offset:{(j>>2)*256}")
    for jj in range(4): A(f"v_add_u32 v{vAd+jj}, s{sRing}, v{vKb+jj}")
    A("s_cmp_eq_u32 s52, 0")
    A("s_cbranch_scc1 L_k_nb")
    A(f"s_cmp_lg_u32 s{sC}, 2")
    A("s_cbranch_scc1 L_k")

    def round4(src, dst):
        A(f"v_cvt_pk_bf16_f32 v{vT}, v{src}, v{src+1}")
        A(f"v_cvt_pk_bf16_f32 v{vT+1}, v{src+2}, v{src+3}")
        A(f"v_lshlrev_b32 v{dst}, 16, v{vT}"); A(f"v_and_b32 v{dst+1}, 0xffff0000, v{vT}")
        A(f"v_lshlrev_b32 v{dst+2}, 16, v{vT+1}"); A(f"v_and_b32 v{dst+3}, 0xffff0000, v{vT+1}")
    def phi_tail():
        round4(vY, vY)
        for r in range(4): A(f"v_mul_f32 v{vY+r}, s{sL2E}, v{vY+r}")
        for r in range(4): A(f"v_exp_f32 v{vY+r}, v{vY+r}")
        A("s_nop 0")
        round4(vY, vY)
        for r in range(4): A(f"v_fmamk_f32 v{vY+r}, v{vY+r}, 0x3e800000, v{vEps}")
        A(f"v_cvt_pk_bf16_f32 v{vPH}, v{vY}, v{vY+1}")
        A(f"v_cvt_pk_bf16_f32 v{vPH+1}, v{vY+2}, v{vY+3}")

    C("phi(q), by the wave that has nothing to do in the first round")
    for j in range(8):
        A(f"ds_read_b128 v[{vK+j*4}:{vK+j*4+3}], v2 offset:{j*64}")
    A("s_waitcnt lgkmcnt(0)")
    for j in range(8):
        qr = f"v[{vK+j*4}:{vK+j*4+3}]"
        c = "0" if j == 0 else f"v[{vKP}:{vKP+3}]"
        A(f"v_mfma_f32_16x16x32_bf16 v[{vKP}:{vKP+3}], v[{vOM+j*4}:{vOM+j*4+3}], {qr}, {c}")
        c = "0" if j == 0 else f"v[{vG}:{vG+3}]"
        A(f"v_mfma_f32_16x16x32_bf16 v[{vG}:{vG+3}], {qr}, {qr}, {c}")
    A("s_nop 7")
    round4(vKP, vKP)
    A(f"v_cvt_pk_bf16_f32 v{vX}, v{vG}, v{vG}")
    A(f"v_and_b32 v{vX}, 0xffff0000, v{vX}")
    for r in range(4): A(f"v_fma_f32 v{vY+r}, v{vX}, v{vM8}, v{vKP+r}")
    phi_tail()
    A(f"ds_write_b64 v{vQa}, v[{vPH}:{vPH+1}] offset:32")
    A("s_waitcnt lgkmcnt(0)")

    C("---- K phase: weights of 16 keys per wave and pair of rounds")
    Lb("L_k")
    A("s_barrier")
    Lb("L_k_nb")
    for j in range(8):
        A(f"ds_read_b128 v[{vK+j*4}:{vK+j*4+3}], v{vAd+(j&3)} offset:{(j>>2)*256}")
    A(f"s_add_u32 s{sRing}, s{sRing}, 32768"); A(f"s_and_b32 s{sRing}, s{sRing}, 0xffff")
    for jj in range(4): A(f"v_add_u32 v{vAd+jj}, s{sRing}, v{vKb+jj}")
    for j in range(8):
        kr = f"v[{vK+j*4}:{vK+j*4+3}]"
        A(f"s_waitcnt lgkmcnt({7-j})")
        c = "0" if j == 0 else f"v[{vG}:{vG+3}]"
        A(f"v_mfma_f32_16x16x32_bf16 v[{vG}:{vG+3}], {kr}, {kr}, {c}")
        c = "0" if j == 0 else f"v[{vKP}:{vKP+3}]"
        A(f"v_mfma_f32_16x16x32_bf16 v[{vKP}:{vKP+3}], v[{vOM+j*4}:{vOM+j*4+3}], {kr}, {c}")
    A("s_barrier")
    A(f"ds_read_b64 v[{vPQ}:{vPQ+1}], v{vQa} offset:32")
    A("s_nop 7")
    A(f"v_cndmask_b32 v{vX}, 0, v{vG}, s[{sMask}:{sMask+1}]")
    for r in range(1, 4):
        A(f"v_cndmask_b32 v{vX}, v{vX}, v{vG+r}, s[{sMask+2*r}:{sMask+2*r+1}]")
    A(f"v_cvt_pk_bf16_f32 v{vX}, v{vX}, v{vX}")
    A(f"v_and_b32 v{vX}, 0xffff0000, v{vX}")
    round4(vKP, vKP)
    A("s_nop 1")
    A(f"v_mfma_f32_16x16x4_f32 v[{vY}:{vY+3}], v{vM8}, v{vX}, v[{vKP}:{vKP+3}]")
    A("s_nop 9")
    phi_tail()
    A("s_waitcnt lgkmcnt(0)")
    A(f"s_sub_u32 s{sCnt}, s{sCnt}, 1")
    A(f"v_mfma_f32_16x16x16_bf16 v[{vG}:{vG+3}], v[{vPQ}:{vPQ+1}], v[{vPH}:{vPH+1}], 0")
    A("s_nop 7")
    A(f"v_and_b32 v{vT}, v{vM1}, v{vG}")
    A(f"v_add_f32 v{vDen}, v{vDen}, v{vG}")
    A(f"v_sub_f32 v{vX}, v{vG}, v{vT}")
    A(f"v_and_b32 v{vT}, v{vM2}, v{vX}")
    A(f"v_sub_f32 v{vX}, v{vX}, v{vT}")
    A(f"ds_write_b16_d16_hi v{vPa}, v{vX}")
    A(f"v_add_u32 v{vPa}, 512, v{vPa}")
    A(f"s_cmp_eq_u32 s{sCnt}, s{sEv}")
    A("s_cbranch_scc1 L_ke")
    Lb("L_ke_ret")
    A(f"s_cmp_lg_u32 s{sCnt}, 0")
    A("s_waitcnt lgkmcnt(0)")
    A("s_cbranch_scc1 L_k")

    C("---- V phase: w^T v for 64 columns per wave")
    NQ = 62
    T3 = T4 + 1
    A(f"v_lshl_add_u32 v{vPa}, v10, 6, v11"); A(f"v_add_u32 v{vPa}, {WA}, v{vPa}")
    A(f"s_lshl_b32 s18, s{sC}, 6"); A(f"v_lshl_add_u32 v2, v1, 2, s18"); A(f"v_add_u32 v2, v2, v{vMB}")
    A(f"ds_read_b128 v[{vA}:{vA+3}], v{vPa}")
    A(f"ds_write_b32 v2, v{vDen} offset:256")
    A(f"s_mov_b32 s{sRing}, 0")
    A(f"s_mov_b32 s{sCnt}, 64")
    A(f"s_cmp_eq_u32 s{sC}, 0"); A(f"s_cselect_b32 s{sEv}, {NQ}, {T3}")
    A("v_lshlrev_b32 v1, 1, v0")
    for t in range(4): A(f"v_mov_b32 v{vAd+t}, v{vVb+t}")
    A("s_cmp_lg_u32 s52, 0")
    A("s_waitcnt lgkmcnt(0)")
    A("s_cbranch_scc1 L_v_nb")
    Lb("L_v")
    A("s_barrier")
    Lb("L_v_nb")
    for t in range(4):
        A(f"ds_read_b64_tr_b16 v[{vB+t*4}:{vB+t*4+1}], v{vAd+t}")
        A(f"ds_read_b64_tr_b16 v[{vB+t*4+2}:{vB+t*4+3}], v{vAd+t} offset:8192")
    A(f"s_add_u32 s{sRing}, s{sRing}, 16384"); A(f"s_and_b32 s{sRing}, s{sRing}, 0xffff")
    A(f"v_add_u32 v{vPa}, 256, v{vPa}")
    A(f"s_sub_u32 s{sCnt}, s{sCnt}, 1")
    for t in range(4):
        A(f"s_waitcnt lgkmcnt({6-2*t})")
        a = vACC + t * 4
        A(f"v_mfma_f32_16x16x32_bf16 v[{a}:{a+3}], v[{vA}:{vA+3}], v[{vB+t*4}:{vB+t*4+3}], v[{a}:{a+3}]")
    A(f"s_cmp_eq_u32 s{sCnt}, 0")
    A("s_cbranch_scc1 L_epi")
    A(f"ds_read_b128 v[{vA}:{vA+3}], v{vPa}")
    for t in range(4): A(f"v_add_u32 v{vAd+t}, s{sRing}, v{vVb+t}")
    A(f"s_cmp_eq_u32 s{sCnt}, s{sEv}")
    A("s_cbranch_scc0 L_v")
    A("s_branch L_ve")
    Lb("L_ve_ret")
    A("s_waitcnt lgkmcnt(0)")
    A("s_branch L_v")

    C("---- epilogue: add the parts, hand over / collect")
    P = vOM
    sTg = 20
    def polls():
        A(f"buffer_load_dwordx4 v[{P}:{P+3}], v{vPo}, s[{sWS}:{sWS+3}], s67 offen sc1")
        A(f"buffer_load_dwordx4 v[{P+4}:{P+7}], v{vL16}, s[{sWS}:{sWS+3}], s67 offen offset:1024 sc1")
    S = vK
    Lb("L_epi")
    if stamp: A("s_memrealtime s[72:73]")
    for t in range(4):
        a = vACC + t * 4
        A(f"v_add_f32 v{S+t}, v{a+1}, v{a+2}")
        A(f"v_add_f32 v{S+t}, v{S+t}, v{a}")
        if t == 2: A(f"s_cmp_eq_u32 s{sPart}, 0")
    A("s_cbranch_scc1 L_final")
    A(f"s_cmp_lg_u32 s{sFar}, 0")
    for t in range(4): A(f"v_bfi_b32 v{S+t}, 63, s{sTg+t}, v{S+t}")
    A("s_cbranch_scc1 L_far")
    for fl in ("", " " + stf):
        if fl: Lb("L_far")
        A(f"buffer_store_dwordx4 v[{S}:{S+3}], v{vSn}, s[{sWS}:{sWS+3}], s68 offen{fl}")
        if stamp:
            A("s_mov_b32 s76, 0"); A("s_mov_b32 s78, 0"); A("s_mov_b32 s80, 0")
            A("s_branch L_fin")
        else:
            A("s_endpgm")
    Lb("L_final")
    if stamp:
        A("s_memrealtime s[78:79]"); A("s_mov_b32 s76, 0")
    A(f"v_cndmask_b32 v{S}, v{S}, v{S+1}, s[24:25]")
    A(f"v_cndmask_b32 v{S+2}, v{S+2}, v{S+3}, s[24:25]")
    A(f"v_cndmask_b32 v{S}, v{S}, v{S+2}, s[26:27]")
    A("s_branch L_chk")
    Lb("L_poll")
    polls()
    A("s_sub_u32 s53, s53, 1")
    A("s_cbranch_scc1 L_end")
    Lb("L_chk")
    if stamp: A("s_add_u32 s76, s76, 1")
    A("s_waitcnt vmcnt(0)")
    X0, X1 = S + 4, S + 5
    A(f"v_add_f32 v{S+8}, v{P}, v{P+4}")
    A(f"v_add_f32 v{S+10}, v{P+2}, v{P+6}")
    A(f"v_add_f32 v{S+9}, v{P+1}, v{P+5}")
    A(f"v_add_f32 v{S+11}, v{P+3}, v{P+7}")
    A(f"v_xor_b32 v{X0}, v{P}, v{vE}")
    A(f"v_permlane32_swap_b32 v{S+8}, v{S+10}")
    A(f"v_xor_b32 v{X1}, s{sTg}, v{P+4}")
    A(f"v_permlane32_swap_b32 v{S+9}, v{S+11}")
    A(f"v_bitop3_b32 v{X0}, v{P+1}, v{X0}, v{vE+1} bitop3:0xde")
    A(f"v_add_f32 v{S+8}, v{S+8}, v{S+10}")
    A(f"v_add_f32 v{S+9}, v{S+9}, v{S+11}")
    A(f"v_bitop3_b32 v{X1}, v{P+5}, v{X1}, s{sTg+1} bitop3:0xde")
    A(f"v_bitop3_b32 v{X0}, v{P+2}, v{X0}, v{vE+2} bitop3:0xde")
    A(f"v_permlane16_swap_b32 v{S+8}, v{S+9}")
    A(f"v_bitop3_b32 v{X1}, v{P+6}, v{X1}, s{sTg+2} bitop3:0xde")
    A(f"v_bitop3_b32 v{X0}, v{P+3}, v{X0}, v{vE+3} bitop3:0xde")
    A(f"v_add_f32 v{S+8}, v{S+8}, v{S+9}")
    A(f"v_bitop3_b32 v{X1}, v{P+7}, v{X1}, s{sTg+3} bitop3:0xde")
    A(f"v_add_f32 v{S+8}, v{S+8}, v{S}")
    A(f"v_bitop3_b32 v{X0}, v{X0}, v{X1}, 63 bitop3:0xa8")
    A(f"v_cvt_pk_bf16_f32 v{S+8}, v{S+8}, v{S+8}")
    A(f"v_cmp_ne_u32 vcc, 0, v{X0}")
    A(f"v_and_b32 v{S+8}, 0xffff0000, v{S+8}")
    A(f"v_mul_f32 v{S+8}, v{S+8}, v{vFl+1}")
    A(f"v_cvt_pk_bf16_f32 v{S+8}, v{S+8}, v{S+8}")
    A("s_cbranch_vccnz L_poll")
    if stamp: A("s_memrealtime s[80:81]")
    A(f"buffer_store_short v{S+8}, v1, s[{sOUT}:{sOUT+3}], s19 offen")
    if stamp:
        A("s_branch L_fin")
    else:
        A("s_endpgm")

    C("---- V phase events")
    Lb("L_ve")
    A(f"s_cmp_eq_u32 s{sCnt}, {T4}"); A("s_cbranch_scc1 L_ve_t4")
    A(f"s_cmp_gt_u32 s{sCnt}, {T3}"); A("s_cbranch_scc1 L_ve_0")
    A(f"s_sub_u32 s{sEv}, s{sEv}, 1")
    A(f"s_cmp_lt_u32 s{sCnt}, {T4}"); A("s_cbranch_scc1 L_ve_t5")
    A(f"ds_read_b64 v[{vFl}:{vFl+1}], v{vMB}")
    A("s_branch L_ve_ret")
    Lb("L_ve_t4")
    A(f"v_readfirstlane_b32 s{sTg}, v{vFl}")
    A("s_getreg_b32 s18, hwreg(HW_REG_XCC_ID, 0, 4)")
    A(f"s_mov_b32 s53, {1<<20}")
    A(f"s_bfe_u32 s{sFar}, s{sTg}, 0x40018")
    A(f"s_xor_b32 s{sFar}, s{sFar}, s18")
    if force: A(f"s_mov_b32 s{sFar}, 1")
    for t in range(1, 4): A(f"s_lshr_b32 s{sTg+t}, s{sTg}, {6*t}")
    A(f"s_cmp_lg_u32 s{sPart}, 0")
    A("s_cbranch_scc1 L_ve_ret")
    A(f"s_mov_b32 s{sEv}, 1")
    A("s_mov_b32 s24, 0xffff0000"); A("s_mov_b32 s25, 0xffff0000"); A("s_mov_b32 s26, 0"); A("s_mov_b32 s27, -1")
    for t in range(4): A(f"v_mov_b32 v{vE+t}, s{sTg+t}")
    A("s_bfm_b64 exec, 16, 0")
    for t in range(4): A(f"v_mov_b32 v{vE+t}, 0")
    A("s_mov_b64 exec, -1")
    Lb("L_ve_t5")
    polls()
    A("s_branch L_ve_ret")
    Lb("L_ve_0")
    A(f"s_cmp_eq_u32 s{sCnt}, {NQ}"); A("s_cbranch_scc1 L_ve_q")
    A(f"s_cmp_eq_u32 s{sCnt}, {ND}"); A("s_cbranch_scc0 L_ve_d")
    D = 4
    A(f"s_mov_b32 s{sEv}, {ND - 3}")
    A(f"buffer_load_dwordx2 v[{D}:{D+1}], v{vDp}, s[{sWS}:{sWS+3}], s69 offen offset:{DO} sc1 nt")
    A("s_branch L_ve_ret")
    C("finishing workgroup: the dens of the others")
    Lb("L_ve_d")
    A(f"s_mov_b32 s{sEv}, {T3}")
    A(f"s_mov_b32 s53, {1<<20}")
    Lb("L_dn")
    A("s_waitcnt vmcnt(0)")
    A(f"v_cmp_ne_u32 vcc, s{sT}, v{D+1}")
    A(f"v_cndmask_b32 v6, v{D}, v{vDen}, s[{sOwn}:{sOwn+1}]")
    A(f"s_andn2_b64 vcc, vcc, s[{sOwn}:{sOwn+1}]")
    A("s_cbranch_scc0 L_dn_ok")
    if an == 1:
        A(f"s_bitcmp0_b32 s53, 20"); A("s_cbranch_scc1 L_dn_a")
        A(f"v_mov_b32 v7, s{sT}"); A("s_bitset1_b32 s93, 7")
        A(f"buffer_store_dword v7, v{vS0}, s[{sDBG}:{sDBG+3}], s93 offen sc1")
        Lb("L_dn_a")
    A(f"buffer_load_dwordx2 v[{D}:{D+1}], v{vDp}, s[{sWS}:{sWS+3}], s69 offen offset:{DO} {ldf}")
    A("s_sub_u32 s53, s53, 1")
    A("s_cbranch_scc0 L_dn")
    A("s_waitcnt vmcnt(0)")
    A(f"v_mov_b32 v6, -1")
    A("s_nop 1")
    Lb("L_dn_ok")
    A(f"v_add_f32_dpp v6, v6, v6 quad_perm:[1,0,3,2] row_mask:0xf bank_mask:0xf"); A("s_nop 1")
    A(f"v_add_f32_dpp v6, v6, v6 quad_perm:[2,3,0,1] row_mask:0xf bank_mask:0xf"); A("s_nop 1")
    A(f"v_add_f32_dpp v6, v6, v6 row_half_mirror row_mask:0xf bank_mask:0xf")
    A(f"v_cvt_pk_bf16_f32 v6, v6, v6"); A(f"v_and_b32 v6, 0xffff0000, v6")
    A(f"v_add_f32 v6, v6, v{vEps}")
    A(f"v_cvt_pk_bf16_f32 v6, v6, v6"); A(f"v_and_b32 v6, 0xffff0000, v6")
    A(f"v_rcp_f32 v7, v6")
    A("s_nop 0")
    A(f"ds_write_b32 v{vMB}, v7 offset:4")
    A("s_branch L_ve_ret")

    C("wave c=0 takes over the epoch word and hands the den of this workgroup over")
    Lb("L_ve_q")
    A(f"v_add_u32 v2, v{vL4}, v{vMB}")
    A(f"ds_read_b32 v{vDen}, v2 offset:256")
    A(f"s_mov_b32 s53, {1<<20}")
    if an == 1:
        A(f"s_cmp_eq_u32 s{sPart}, 0"); A("s_cbranch_scc1 L_ep_ok")
    Lb("L_ep")
    A("s_waitcnt vmcnt(0)")
    A(f"v_readfirstlane_b32 s{sT}, v{vFl}")
    A(f"s_cmp_lg_u32 s{sT}, 0")
    A("s_cbranch_scc1 L_ep_ok")
    if an == 1: A("s_xor_b32 s93, s93, 0x80")
    A(f"buffer_load_dword v{vFl}, v{vS0}, s[{sDBG}:{sDBG+3}], s93 offen sc1")
    A("s_sub_u32 s53, s53, 1")
    A("s_cbranch_scc0 L_ep")
    A("s_waitcnt vmcnt(0)")
    Lb("L_ep_ok")
    A(f"v_mov_b32 v5, s{sT}"); A("v_mov_b32 v6, 0"); A("v_mov_b32 v7, 0")
    A(f"ds_write_b64 v{vMB}, v[5:6]") if False else A(f"ds_write_b32 v{vMB}, v5")
    A(f"s_cmp_eq_u32 s{sPart}, 0"); A(f"s_cselect_b32 s{sEv}, {ND}, {T3}")
    A("s_getreg_b32 s18, hwreg(HW_REG_XCC_ID, 0, 4)")
    A(f"s_bfe_u32 s{sFar}, s{sT}, 0x40018")
    A("s_waitcnt lgkmcnt(0)")
    for sft in (1, 2, 4, 8):
        A(f"v_add_f32_dpp v{vDen}, v{vDen}, v{vDen} row_ror:{sft} row_mask:0xf bank_mask:0xf")
        A("s_nop 1")
    for sw in (32, 16):
        A(f"v_mov_b32 v2, v{vDen}"); A("s_nop 1")
        A(f"v_permlane{sw}_swap_b32 v2, v{vDen}")
        A(f"v_add_f32 v{vDen}, v{vDen}, v2")
    A(f"s_cmp_eq_u32 s{sPart}, 0")
    A("s_cbranch_scc1 L_ve_ret")
    A(f"v_mov_b32 v4, v{vDen}")
    A(f"s_cmp_lg_u32 s{sFar}, s18")
    if force: A("s_cmp_eq_u32 0, 0")
    A("s_cbranch_scc1 L_dfar")
    A(f"buffer_store_dwordx4 v[4:7], v{vSl}, s[{sWS}:{sWS+3}], s63 offen offset:{DO}")
    A("s_branch L_ve_ret")
    Lb("L_dfar")
    A(f"buffer_store_dwordx4 v[4:7], v{vSl}, s[{sWS}:{sWS+3}], s63 offen offset:{DO} {stf}")
    A("s_branch L_ve_ret")

    C("---- K phase events: the finishing workgroup picks an epoch no old granule carries and announces it")
    Lb("L_ke")
    for n, nm in ((K3, "3"), (K4, "4"), (K5, "5")):
        A(f"s_cmp_eq_u32 s{sCnt}, {n}"); A(f"s_cbranch_scc1 L_ke{nm}")
    A(f"s_mov_b32 s{sEv}, {K3}")
    A("s_waitcnt vmcnt(0)")
    if an: A(f"v_readlane_b32 s{sT}, v{vB+9}, 1")
    else: A(f"v_readfirstlane_b32 s{sT}, v{vB+10}")
    A("s_getreg_b32 s18, hwreg(HW_REG_XCC_ID, 0, 4)")
    A(f"s_add_u32 s{sT}, s{sT}, 1"); A(f"s_and_b32 s{sT}, s{sT}, 0xffffff"); A(f"s_bitset1_b32 s{sT}, 31")
    A("s_lshl_b32 s18, s18, 24"); A(f"s_or_b32 s{sT}, s{sT}, s18")
    for h in range(2):
        g = vB + 4 * h
        A(f"v_xor_b32 v3, s{sT}, v{g}")
        for j in range(1, 4):
            A(f"s_lshr_b32 s18, s{sT}, {6*j}")
            A(f"v_bitop3_b32 v3, v{g+j}, v3, s18 bitop3:0xde")
        A("v_and_b32 v3, 63, v3")
        A("v_cmp_eq_u32 vcc, 0, v3")
        A(f"v_xor_b32 v{g}, 1, v{g}")
        A(f"s_cbranch_vccz L_kc{h}")
        A("s_mov_b64 exec, vcc")
        A(f"buffer_store_dword v{g}, v{vL16}, s[{sWS}:{sWS+3}], s67 offen offset:{1024*h} {stf}")
        A("s_mov_b64 exec, -1")
        Lb(f"L_kc{h}")
    A(f"v_cmp_eq_u32 vcc, s{sT}, v{vB+9}")
    A(f"s_cbranch_vccz L_ke_ret")
    A("s_mov_b64 exec, vcc")
    A(f"buffer_store_dword v{vZero}, v{vDp}, s[{sWS}:{sWS+3}], s69 offen offset:{DO+4} {stf}")
    A("s_mov_b64 exec, -1")
    A("s_branch L_ke_ret")
    Lb("L_ke3")
    A(f"s_mov_b32 s{sEv}, {K4}")
    A("s_waitcnt vmcnt(0)")
    A("s_branch L_ke_ret")
    Lb("L_ke4")
    A(f"s_mov_b32 s{sEv}, {K5}")
    A(f"s_cmp_lg_u32 s{sC}, 0")
    A("s_cbranch_scc1 L_ke_ret")
    A(f"v_mov_b32 v5, s{sT}")
    if an == 1:
        if force != 2: A(f"buffer_store_dword v5, v{vS0}, s[{sDBG}:{sDBG+3}], s93 offen")
    elif an == 2:
        A(f"buffer_store_dword v5, v{vS0}, s[{sDBG}:{sDBG+3}], s93 offen sc1")
    elif an == 3:
        A(f"buffer_atomic_swap v5, v{vS0}, s[{sDBG}:{sDBG+3}], s93 offen sc1")
    else:
        A("v_mov_b32 v6, 1")
        A(f"buffer_store_dword v5, v{vS0}, s[{sDBG}:{sDBG+3}], s93 offen {stf}")
        A(f"buffer_atomic_add v6, v{vS0}, s[{sWS}:{sWS+3}], s69 offen sc1")
    A("s_branch L_ke_ret")
    Lb("L_ke5")
    A(f"s_cmp_lg_u32 s{sC}, 0")
    A("s_cbranch_scc1 L_ke_ret")
    A(f"buffer_load_dword v3, v{vS0}, s[{sV}:{sV+3}], s{sOff} offen nt")
    A(f"buffer_load_dword v{vFl}, v{vS0}, s[{sDBG}:{sDBG+3}], s93 offen")
    A("s_branch L_ke_ret")

    steering()

    if stamp:
        Lb("L_fin")
        A("s_waitcnt vmcnt(0)")
        A("s_memrealtime s[74:75]")
        A("s_getreg_b32 s82, hwreg(HW_REG_XCC_ID)")
        A("s_getreg_b32 s83, hwreg(HW_REG_HW_ID)")
        A("s_waitcnt lgkmcnt(0)")
        A(f"s_mul_i32 s19, s2, 5"); A("s_add_u32 s19, s19, s3"); A("s_lshl_b32 s19, s19, 5"); A("s_add_u32 s19, s19, 0x100000")
        A("v_mov_b32 v2, s19")
        A("v_mov_b32 v4, s70"); A("v_mov_b32 v5, s76"); A("v_mov_b32 v6, s72"); A("v_mov_b32 v7, s82")
        A("v_mov_b32 v8, s83"); A("v_mov_b32 v9, s78"); A("v_mov_b32 v10, s80"); A("v_mov_b32 v11, s74")
        A("s_mov_b64 exec, 1")
        A("global_store_dwordx4 v2, v[4:7], s[16:17]")
        A("global_store_dwordx4 v2, v[8:11], s[16:17] offset:16")
        A("s_waitcnt vmcnt(0)")
    Lb("L_end")
    A("s_endpgm")
    o.append('.section .rodata,"a"'); o.append(".p2align 6"); o.append(f".amdhsa_kernel {KN}")
    A(f".amdhsa_next_free_vgpr {nv}"); A(".amdhsa_next_free_sgpr 100"); A(f".amdhsa_accum_offset {nv}")
    A(".amdhsa_group_segment_fixed_size 0"); A(".amdhsa_kernarg_size 56"); A(".amdhsa_user_sgpr_count 2")
    A(".amdhsa_user_sgpr_kernarg_segment_ptr 1"); A(".amdhsa_system_sgpr_workgroup_id_x 1")
    A(".amdhsa_float_denorm_mode_32 3")
    o.append(".end_amdhsa_kernel")
    return "\n".join(o) + "\n"

if __name__ == "__main__":
    out = sys.argv[1]
    kw = {}
    for kv in sys.argv[2:]:
        k, v = kv.split("=")
        kw[k] = int(v) if v.lstrip("-").isdigit() else v
    open(out, "w").write(gen(**kw))
```

```python
import sys, struct, math
KN = "standalone__linear_kernel_rfa__decode_kernel"
def f2u(x): return struct.unpack("<I", struct.pack("<f", x))[0]

HEADER = """; Kernarg layout for this problem (56 bytes, ptrs only, base s[0:1]):
"""

def gen(W=22, WB=32, WT=16, WO=0, ND=56, T4=2, jo="x30142675", K2=25, K3=23, K4=21, K5=6,
        CS=12, CE=122, tau=53, kB=20, kT=16, bias=-2, dead=0, gG=3, mxB=4, mxT=3, fr=1, dif=2, SPn=4, wc=3, per=1, RG=2048, gsf="sc1", gab=0, gph=4, gat=1, an=3, gf=0, al=0, eB=0, eT=0, cR=0, cN=0, aR=5, cX=0, sx=0, GX=100, GSH=1, rr=0, hy=0, ib=0, ro="", k1=8, k2=64, uB=110, uT=128, gE=12, gm="x16.48.80.96.110",
        cp=0, trace=0, nb=16, lp=2, dT=0, gp=16, gl=2, glf="sc1", gs=256, stamp=0, prio=3, force=0, hx=-1, hk=20):
    NWG = 256
    stf = ldf = "sc1"; chkf = "sc1 nt"
    o = []
    A = lambda s: o.append("  " + s)
    Lb = lambda s: o.append(s + ":")
    C = lambda s: o.append("; " + s)
    WA = 65536
    OMG = WA + 16384
    QL = OMG + 8192
    MB = QL + 512
    lds = QL + 1024
    o.append(HEADER.rstrip("\n"))
    o.append(f"; @launch grid=({NWG},1,1) block=(384,1,1) lds={lds}")
    o.append('.amdgcn_target "amdgcn-amd-amdhsa--gfx950"')
    o.append(".text"); o.append(f".globl {KN}"); o.append(".p2align 8"); o.append(f".type {KN},@function"); Lb(KN)

    sK, sV, sOM, sQ, sOUT, sWS, sDBG = 20, 24, 28, 32, 36, 40, 44
    sOff, sRing, sCnt = 48, 49, 50
    sT = 51
    sMask, sL2E = 54, 62
    sHead, sPart, sC = 64, 65, 66
    sEv, sFar = 84, 85
    sRaw = 82
    GRP = 2048
    CTR = 128 * GRP
    HS = 8448
    BRD = CTR + 32 * HS
    GLB = BRD + 16 * HS
    WSB = GLB + 16 * gs + 130 // gp * gf
    DO = 1024
    OOB = 0x7ff00000

    sJ, sBE, sTE, sR, sX, sTab = 50, 51, 52, 53, 54, 56
    A(f"s_load_dwordx2 s[{sK}:{sK+1}], s[0:1], 8")
    if stamp or hy: A("s_memrealtime s[70:71]")
    A("v_readfirstlane_b32 s3, v0")
    A(f"s_lshr_b32 s18, s2, 8")
    A("s_cbranch_scc1 L_end")
    if rr:
        A(f"s_add_u32 s18, s2, {rr}"); A("s_and_b32 s18, s18, 7"); A("s_andn2_b32 s2, s2, 7"); A("s_or_b32 s2, s2, s18")
    A(f"s_mov_b32 s{sRaw}, s2")
    C("head = low five bits of the id rotated right by one, part = the upper three")
    A("s_and_b32 s18, s2, 31"); A("s_mul_i32 s18, s18, 33"); A("s_bfe_u32 s18, s18, 0x50001")
    A("s_lshr_b32 s2, s2, 5"); A("s_lshl3_add_u32 s2, s18, s2")
    A(f"s_lshl_b32 s{sOff}, s2, 20")
    A("s_cmp_lg_u32 s3, 0")
    A("s_cbranch_scc1 L_cons")
    def dma_offsets():
        A("v_and_b32 v1, 32, v0")
        A("v_lshlrev_b32 v4, 4, v0")
        A("v_xor_b32 v4, v4, v1")
        A("v_xor_b32 v5, 64, v4")
        A("v_xor_b32 v6, 0x80, v4")
        A("v_xor_b32 v7, 64, v6")

    C("---- loader wave: 4 KiB groups, a barrier after every fourth")
    assert WB <= 32
    cols = [1 << int(ch, 16) for ch in jo[1:]]
    assert len(cols) == 8
    T = []; acc = 0
    for c in cols: acc ^= c; T.append(acc)
    T.append(acc)
    movk = lambda r, v: A(f"s_mov_b32 s{r}, {v}" if v <= 64 else f"s_movk_i32 s{r}, {v}")
    dma_offsets()
    A(f"s_brev_b32 s{sK+2}, 8"); A(f"s_mov_b32 s{sK+3}, 0x20000")
    A(f"s_mov_b32 m0, 0")
    rot = [(int(x[0]), int(x[1])) for x in ro[1:].split(".")] if ro else []
    sJr = 66
    if rot:
        A(f"s_mov_b32 s{sJr}, 0")
        for ib, jb in rot:
            A(f"s_bfe_u32 s18, s2, {ib | 0x10000:#x}")
            A(f"s_lshl_b32 s19, s18, {jb}"); A(f"s_or_b32 s{sJr}, s{sJr}, s19")
            A(f"s_lshl_b32 s19, s18, {12 + cols[jb].bit_length() - 1}"); A(f"s_or_b32 s{sOff}, s{sOff}, s19")
    def loads():
        for n in range(4):
            A(f"buffer_load_dwordx4 v{4+n}, s[{sK}:{sK+3}], s{sOff} offen offset:{n*1024} nt lds")
    A("s_waitcnt lgkmcnt(0)")
    loads()
    A(f"s_mov_b64 s[{sJ}:{sJ+1}], 0"); A(f"s_mov_b32 s{sTE}, 0")
    if ib: A(f"s_mov_b32 s{sBE}, {ib}")
    A(f"s_lshr_b32 s{sX}, s{sOff}, 12")
    if WO: A("s_getreg_b32 s55, hwreg(HW_REG_XCC_ID, 0, 1)")
    early = 9 if any(jb < 3 for ib, jb in rot) else 3
    for k in range(early): movk(sTab + k, T[k])
    A(f"s_load_dwordx2 s[8:9], s[0:1], 16")
    if stamp: A(f"s_load_dwordx2 s[16:17], s[0:1], 48")
    A(f"v_mov_b32 v9, {MB}")
    A("s_branch L_st")
    Lb("L_ld")
    A(f"ds_read_b32 v8, v9 offset:12")
    A(f"s_cmp_lt_u32 s{sJ}, s{sTE}")
    A("s_cbranch_scc0 L_nt")
    A(f"s_waitcnt vmcnt({WT-4})")
    Lb("L_nt")
    A(f"s_cmp_lt_u32 s{sJ}, s{sBE}")
    A("s_cbranch_scc1 L_w")
    if WO:
        A(f"s_cmp_eq_u32 s55, 0")
        A("s_cbranch_scc1 L_wo")
        A(f"s_waitcnt vmcnt({WO-4})")
        Lb("L_wo")
    A(f"s_waitcnt vmcnt({W-4})")
    Lb("L_w")
    A(f"s_waitcnt vmcnt({WB-4})")
    loads()
    Lb("L_st")
    A(f"s_add_u32 s{sJ}, s{sJ}, 1")
    if rot:
        A(f"s_add_u32 s{sJr}, s{sJr}, 1"); A(f"s_ff1_i32_b32 m0, s{sJr}")
    else:
        A(f"s_ff1_i32_b32 m0, s{sJ}")
    A(f"s_lshl_b32 s18, s{sJ}, 12")
    A(f"s_movrels_b32 s19, s{sTab}")
    A(f"s_and_b32 m0, s18, 0xffff")
    A(f"s_xor_b32 s{sX}, s{sX}, s19")
    A(f"s_lshl_b32 s{sOff}, s{sX}, 12")
    A(f"s_and_b32 s18, s{sJ}, 3")
    A("s_cbranch_scc1 L_ld")
    A(f"s_cmp_lt_u32 s{sJ}, 12")
    A("s_cbranch_scc1 L_in2")
    A("s_waitcnt lgkmcnt(0)")
    A(f"v_readfirstlane_b32 s{sR}, v8")
    A("s_barrier")
    A(f"s_and_b32 s{sBE}, s{sR}, 0xffff")
    A(f"s_lshr_b32 s{sTE}, s{sR}, 16")
    A(f"s_and_b32 s18, s{sJ}, 0xff")
    A("s_cbranch_scc1 L_ld")
    A(f"s_mov_b32 s{sK}, s8"); A(f"s_mov_b32 s{sK+1}, s9")
    if stamp:
        A(f"s_cmpk_lg_u32 s{sJ}, 256"); A("s_cbranch_scc1 L_nk"); A("s_memrealtime s[76:77]"); Lb("L_nk")
    A(f"s_cmpk_lg_u32 s{sJ}, 512")
    A("s_cbranch_scc1 L_ld")
    if stamp: A("s_memrealtime s[78:79]")
    A("s_waitcnt vmcnt(16)")
    A("s_barrier")
    A("s_waitcnt vmcnt(0)")
    A("s_barrier")
    if stamp:
        A("s_memrealtime s[72:73]")
        A("s_branch L_fin")
    else:
        if hy:
            A(f"s_cmp_lg_u32 s{sRaw}, {hy - 1}"); A("s_cbranch_scc1 L_end")
            A("s_getreg_b32 s30, hwreg(HW_REG_XCC_ID, 0, 4)"); A("s_mul_i32 s30, s30, 1000"); A("s_add_u32 s30, s30, 10000")
            Lb("L_h3")
            A("s_memrealtime s[72:73]"); A("s_waitcnt lgkmcnt(0)")
            A("s_sub_u32 s72, s72, s70"); A("s_cmp_lt_i32 s72, s30"); A("s_cbranch_scc1 L_h3")
        A("s_endpgm")
    Lb("L_in2")
    for k in range(early, 9): movk(sTab + k, T[k])
    if rot: movk(sTab + 9, T[8])
    A(f"v_mov_b32 v10, {ib}")
    A("ds_write_b32 v9, v10 offset:12")
    if prio: A(f"s_setprio {prio}")
    if stamp: A("s_mov_b32 s80, 0")
    A("s_branch L_ld")

    def steering():
        C("---- steering wave: every workgroup posts the time at which it would finish at the nominal rate; who is")
        C("     behind the others gets a wider window of loads for a few groups, who is ahead a narrower one")
        Lb("L_ctl")
        vB, vD, vLo, vP0, vG, vA, vMBc, vP = 2, 3, 4, 5, 7, 8, 9, 10
        sB, sRem, sE, sGm, sXc, sJ0, sAc, sBase = 50, 51, 52, 53, 54, 55, 56, 57
        A(f"s_getreg_b32 s{sXc}, hwreg(HW_REG_XCC_ID, 0, 4)")
        A(f"s_mov_b32 s{sWS+2}, {WSB}"); A(f"s_mov_b32 s{sWS+3}, 0x20000")
        A(f"s_mul_i32 s{sBase}, s{sXc}, {HS}"); A(f"s_add_u32 s{sBase}, s{sBase}, {BRD}")
        A(f"v_mul_u32_u24 v{vLo}, {gs}, v0"); A(f"v_add_u32 v{vLo}, {GLB - 48 * gs}, v{vLo}")
        A(f"s_mul_i32 s19, s{sXc}, {gs}"); A(f"s_add_u32 s19, s19, {GLB - 48 * 16}"); A(f"v_lshl_add_u32 v{vG}, v0, 4, s19")
        A("s_bfm_b64 s[66:67], 34, 0"); A("s_bfm_b64 s[64:65], 8, 48")
        A("s_mov_b64 exec, s[66:67]"); A(f"v_lshl_add_u32 v{vLo}, v0, 3, s{sBase}")
        A("s_bfm_b64 exec, 2, 32"); A(f"v_subrev_u32 v{vLo}, {256 - 4}, v{vLo}")
        A("s_mov_b64 exec, -1")
        A(f"v_mov_b32 v{vMBc}, {MB}"); A(f"v_mov_b32 v{vB}, 0")
        A("v_mov_b32 v13, 0"); A("v_mov_b32 v14, 0"); A("v_mov_b32 v15, 0")
        A(f"s_lshr_b32 s18, s{sRaw}, 3")
        A(f"s_cselect_b32 s69, 0, 3"); A(f"s_cselect_b32 s{sGm}, -1, {gp - 1}")
        if gm:
            m = sum(1 << ((4 * int(x) + 16) // 8 + 1) for x in gm[1:].split("."))
            A(f"s_cselect_b32 s80, 0, {m & 0xffffffff:#x}"); A(f"s_cselect_b32 s81, 0, {m >> 32:#x}")
        A("s_lshl_b32 s68, 1, s18")
        A(f"s_movk_i32 s{sRem}, {(128 - CS) * tau}")
        if WO and wc:
            A(f"s_bitcmp0_b32 s{sXc}, 0"); A(f"s_cselect_b32 s18, {wc}, 0"); A(f"s_add_u32 s{sRem}, s{sRem}, s18")
        A(f"s_add_u32 s{sXc}, s{sXc}, 48")
        A(f"s_movk_i32 s{sJ0}, {4 * CS + 16 - 4 * per}")
        A(f"s_mov_b32 s{sB}, 0"); A(f"s_mov_b32 s{sAc}, 0"); A("s_mov_b32 s71, 0"); A("s_mov_b32 s72, 0"); A(f"s_mov_b32 s73, 0")
        A("s_waitcnt lgkmcnt(0)")
        A(f"s_mov_b32 s{sWS}, s16"); A(f"s_mov_b32 s{sWS+1}, s17")
        if cp: A(f"s_setprio {cp}")
        if trace:
            A(f"s_mov_b32 s{sWS+2}, 0x1000000")
            A(f"s_lshl_b32 s60, s{sRaw}, 11"); A("s_add_u32 s60, s60, 0x200000"); A("v_mov_b32 v20, s60")
        Lb("L_c1")
        A("s_barrier")
        A(f"s_add_u32 s{sB}, s{sB}, 1")
        A(f"s_cmp_lt_u32 s{sB}, {CS + 1 - per}")
        A("s_cbranch_scc1 L_c1")
        A(f"s_movk_i32 s{sB}, {1023 - gph}")
        Lb("L_c2")
        for _ in range(per): A("s_barrier")
        A("s_memrealtime s[18:19]")
        A(f"s_add_u32 s{sJ0}, s{sJ0}, {4 * per}")
        A(f"s_add_u32 s{sB}, s{sB}, 1")
        A(f"s_waitcnt vmcnt({nb}) lgkmcnt(0)")
        A(f"s_add_u32 s{sE}, s18, s{sRem}")
        if cR or cN:
            A(f"s_sub_i32 s74, s{sE}, s73"); A(f"s_mov_b32 s73, s{sE}"); A("s_min_i32 s74, s74, 48"); A("s_max_i32 s74, s74, -48")
            A(f"s_ashr_i32 s75, s72, {aR}"); A("s_sub_i32 s72, s75, s72"); A("s_add_i32 s72, s72, s74")
            A(f"s_bitcmp1_b32 s{sJ0}, 2"); A(f"s_cselect_b32 s74, {cR - cN}, {-cR - cN}")
            A("s_mul_i32 s76, s74, s72"); A(f"s_ashr_i32 s74, s76, {aR + 3}")
            if cX: A(f"s_cmpk_ge_u32 s{sJ0}, {4 * cX + 16}"); A("s_cselect_b32 s74, s74, 0")
            A(f"s_add_u32 s{sE}, s{sE}, s74")
        A(f"s_sub_u32 s18, {RG}, s{sE}")
        A(f"v_add_u32 v{vD}, s18, v{vB}")
        A(f"v_cmp_gt_u32 vcc, {2 * RG}, v{vD}")
        A(f"v_subrev_u32 v{vD}, {RG}, v{vD}")
        A("s_lshr_b32 s61, vcc_hi, 16")
        A(f"v_cndmask_b32 v{vD}, 0, v{vD}, vcc")
        A(f"s_sub_u32 s{sRem}, s{sRem}, {tau * per}")
        A(f"v_readlane_b32 s58, v{vD}, 32"); A(f"v_readlane_b32 s59, v{vD}, 33"); A(f"v_readlane_b32 s60, v{vD}, s{sXc}")
        for sft in (1, 2, 4, 8):
            A(f"v_add_u32_dpp v{vD}, v{vD}, v{vD} row_ror:{sft} row_mask:0xf bank_mask:0xf")
            if sft == 1 and gE:
                A("s_sub_i32 s58, s58, s59"); A(f"s_cmpk_lt_u32 s{sJ0}, {4 * GX + 16}"); A(f"s_cselect_b32 s59, {gE * 4}, {gG * 4}"); A(f"s_mul_i32 s58, s58, s59")
            elif sft == 1: A("s_sub_i32 s58, s58, s59"); A(f"s_mul_i32 s58, s58, {gG * 4}")
            elif sft < 8: A("s_nop 1")
        A("s_cmpk_eq_u32 s61, 0xff")
        A(f"v_readlane_b32 s18, v{vD}, 0"); A(f"v_readlane_b32 s19, v{vD}, 16"); A(f"v_readlane_b32 s59, v{vD}, 48")
        A("s_cselect_b32 s60, s60, 0"); A("s_cselect_b32 s59, s59, 0")
        A("s_add_i32 s18, s18, s19")
        A("s_sub_i32 s58, s58, s18")
        if bias: A(f"s_add_i32 s58, s58, {bias * 32}")
        if GX and dif != 2:
            A(f"s_cmpk_lt_u32 s{sJ0}, {4 * GX + 16}"); A(f"s_cselect_b32 s19, {GSH}, 0"); A("s_ashr_i32 s58, s58, s19")
        if al:
            if trace: A("s_mov_b32 s70, s58")
            A(f"s_sub_i32 s58, s58, s71"); A(f"s_ashr_i32 s58, s58, {al}"); A(f"s_add_i32 s58, s58, s71")
        if dif == 2:
            A(f"s_cmpk_lt_u32 s{sJ0}, {4 * GX + 16}"); A(f"s_cselect_b32 s19, {k1}, {k2}")
            A("s_mul_i32 s19, s19, s58"); A("s_ashr_i32 s19, s19, 8"); A(f"s_add_i32 s{sAc}, s{sAc}, s19")
            A(f"s_mul_i32 s62, s{sAc}, {65536 // uB + 1}"); A("s_ashr_i32 s62, s62, 16")
            A(f"s_mul_i32 s63, s{sAc}, {-(65536 // uT + 1)}"); A("s_ashr_i32 s63, s63, 16")
            A(f"s_max_i32 s62, s62, 0"); A(f"s_max_i32 s63, s63, 0")
            A(f"s_mul_i32 s19, s62, {uB}"); A(f"s_sub_i32 s{sAc}, s{sAc}, s19")
            A(f"s_mul_i32 s19, s63, {uT}"); A(f"s_add_i32 s{sAc}, s{sAc}, s19")
        elif dif:
            A(f"s_cmp_ge_i32 s58, 0"); A(f"s_cselect_b32 s19, {kB}, {kT}")
            A(f"s_mul_i32 s19, s19, s58"); A(f"s_add_i32 s19, s19, s{sAc}")
            A(f"s_add_i32 s62, s19, {1 << 12}"); A("s_ashr_i32 s62, s62, 13")
            A("s_lshl_b32 s63, s62, 13"); A(f"s_sub_i32 s{sAc}, s19, s63")
            A("s_sub_i32 s63, 0, s62")
        else:
            A(f"s_mul_i32 s62, s58, {kB}"); A(f"s_add_i32 s62, s62, {(1 << 12) - dead * 32 * kB}"); A("s_ashr_i32 s62, s62, 13")
            A(f"s_mul_i32 s63, s58, {-kT}"); A(f"s_add_i32 s63, s63, {(1 << 12) - dT * 32 * kT}"); A("s_ashr_i32 s63, s63, 13")
        A(f"s_min_i32 s62, s62, {mxB}"); A(f"s_min_i32 s63, s63, {mxT}")
        A(f"s_max_i32 s62, s62, 0"); A(f"s_max_i32 s63, s63, 0")
        if al:
            A(f"s_mul_i32 s19, s62, {-eB * 4}"); A(f"s_mul_i32 s71, s63, {eT * 4}"); A("s_add_i32 s71, s71, s19"); A("s_add_i32 s71, s71, s58")
            if trace: A("s_mov_b32 s58, s70")
        A(f"s_add_u32 s62, s62, s{sJ0}"); A(f"s_add_u32 s63, s63, s{sJ0}")
        A("s_pack_ll_b32_b16 s62, s62, s63")
        A(f"v_mov_b32 v{vA}, s62")
        A(f"ds_write_b32 v{vMBc}, v{vA} offset:12")
        if trace:
            A(f"v_mov_b32 v24, s{sE}"); A("v_mov_b32 v25, s58"); A("v_mov_b32 v26, s62"); A("v_mov_b32 v27, s18")
            A("s_mov_b64 exec, 1")
            A(f"buffer_store_dwordx4 v[24:27], v20, s[{sWS}:{sWS+3}], 0 offen")
            A("s_mov_b64 exec, -1")
            A("v_add_u32 v20, 16, v20")
        A(f"s_cmpk_lt_u32 s{sJ0}, {4 * CE + 16 - 4 * per + 1}")
        A("s_cbranch_scc0 L_c6")
        if lp > 1:
            A(f"s_and_b32 s19, s{sB}, {lp - 1}"); A("s_cbranch_scc1 L_c3")
        A("s_ashr_i32 s59, s59, 3"); A(f"s_add_u32 s59, s59, s{sE}")
        A(f"s_add_u32 s60, s60, s{sE}")
        A(f"v_mov_b32 v{vP}, s{sE}"); A(f"v_writelane_b32 v{vP}, s60, 32"); A(f"v_writelane_b32 v{vP}, s59, 33")
        A("s_mov_b64 exec, s[68:69]")
        A(f"buffer_store_dword v{vP}, v{vLo}, s[{sWS}:{sWS+3}], 0 offen")
        A("s_mov_b64 exec, s[66:67]")
        A(f"buffer_load_dword v{vB}, v{vLo}, s[{sWS}:{sWS+3}], 0 offen sc1")
        Lb("L_c3")
        if gm:
            A(f"s_lshr_b32 s19, s{sJ0}, 3"); A(f"s_lshr_b64 s[78:79], s[80:81], s19"); A(f"s_bitcmp1_b32 s{sJ0}, 2"); A("s_cselect_b32 s78, 0, s78")
            A("s_bitcmp0_b32 s78, 1")
        else:
            A(f"s_and_b32 s19, s{sB}, s{sGm}")
        A("s_mov_b64 exec, s[64:65]")
        A("s_cbranch_scc1 L_c4")
        A("s_ashr_i32 s18, s18, 5"); A(f"s_add_u32 s18, s18, s{sE}")
        A(f"v_mov_b32 v12, s18")
        if gf: A(f"v_add_u32 v{vG}, {gf}, v{vG}"); A(f"v_add_u32 v{vLo}, {gf}, v{vLo}")
        if gab != 1:
            if gat:
                A("s_bfm_b64 exec, 1, 48")
                A(f"buffer_atomic_swap v12, v{vG}, s[{sWS}:{sWS+3}], 0 offen sc1")
                A("s_mov_b64 exec, s[64:65]")
            elif gs < 128:
                A("s_bfm_b64 exec, 1, 48")
                A(f"buffer_store_dword v12, v{vG}, s[{sWS}:{sWS+3}], 0 offen {gsf.replace('+', ' ')}")
                A("s_mov_b64 exec, s[64:65]")
            else:
                A(f"buffer_store_dwordx4 v[12:15], v{vG}, s[{sWS}:{sWS+3}], 0 offen {gsf.replace('+', ' ')}")
        if gl:
            Lb("L_c4")
            if gm: A("s_bitcmp0_b32 s78, 0")
            else: A(f"s_cmp_lg_u32 s19, {gl}")
            A("s_cbranch_scc1 L_c5")
        if gab != 2: A(f"buffer_load_dword v{vB}, v{vLo}, s[{sWS}:{sWS+3}], 0 offen {glf.replace('+', ' ')}")
        Lb("L_c5" if gl else "L_c4")
        A("s_mov_b64 exec, -1")
        A("s_branch L_c2")
        Lb("L_c6")
        lastb = CS + ((CE - CS) // per) * per
        if SPn:
            spb = 124 - SPn // 4
            assert spb > lastb and SPn % 4 == 0
            for _ in range(spb - lastb): A("s_barrier")
            if sx:
                A("s_cmp_ge_i32 s76, 0"); A(f"s_cselect_b32 s18, 0, {sx}"); A("s_sub_u32 s18, 0x200, s18"); A(f"v_mov_b32 v{vA}, s18")
            else:
                A(f"v_mov_b32 v{vA}, 0x200")
            A(f"ds_write_b32 v{vMBc}, v{vA} offset:12")
        A("s_waitcnt lgkmcnt(0)")
        A("s_branch L_end")

    vM8, vEps = 8, 9
    vM1, vM2, vDen, vQa = 12, 13, 14, 15
    vKb = 16
    vVb = 20
    vAd = 24
    vPa = 28
    vSn = 29
    vFl = 30
    vKP = 32; vG = 36; vX = 40; vT = 42; vY = 44; vPH = 48; vPQ = 52
    vDp = 54
    vPo = 55
    vS0 = 56
    vL4 = 57
    vZero = 58
    vMB = 59
    vL16 = 60
    vSl = 61
    vOM = 64; vK = 96; vB = 128; vA = 144; vACC = 148; vE = 164
    nv = 168
    sOwn = 94
    sNd = 97
    o.append(".p2align 6")
    C("---- consumer waves")
    Lb("L_cons")
    A(f"s_load_dwordx8 s[4:11], s[0:1], 0")
    A(f"s_load_dwordx4 s[12:15], s[0:1], 32")
    A(f"s_load_dwordx2 s[16:17], s[0:1], 48")
    A("v_and_b32 v0, 63, v0")
    A("s_cmpk_eq_u32 s3, 320")
    A("s_cbranch_scc1 L_ctl")
    dma_offsets()
    A("s_lshr_b32 s3, s3, 6")
    A(f"s_sub_u32 s{sC}, s3, 1")
    A(f"s_lshr_b32 s{sHead}, s2, 3")
    A(f"s_mov_b32 s{sOM+2}, 8192"); A(f"s_mov_b32 s{sOM+3}, 0x20000")
    A(f"s_mov_b32 s{sQ+2}, 16384"); A(f"s_mov_b32 s{sQ+3}, 0x20000")
    A(f"s_lshl_b32 s19, s{sHead}, 9")
    A(f"s_mov_b32 m0, {OMG}")
    A(f"s_mov_b32 s18, 4096")
    A(f"s_cmp_lg_u32 s{sC}, 0")
    A("s_waitcnt lgkmcnt(0)")
    A(f"s_mov_b32 s{sOM}, s10"); A(f"s_mov_b32 s{sOM+1}, s11")
    A(f"s_mov_b32 s{sQ}, s4"); A(f"s_mov_b32 s{sQ+1}, s5")
    A("s_cbranch_scc1 L_noom")
    for n in range(4):
        A(f"buffer_load_dwordx4 v{4+n}, s[{sOM}:{sOM+3}], 0 offen offset:{n*1024} lds")
    A(f"s_mov_b32 m0, {OMG+4096}"); A("s_nop 0")
    for n in range(4):
        A(f"buffer_load_dwordx4 v{4+n}, s[{sOM}:{sOM+3}], s18 offen offset:{n*1024} lds")
    A(f"s_mov_b32 m0, {QL}")
    A("s_bfm_b64 exec, 32, 0")
    A(f"buffer_load_dwordx4 v4, s[{sQ}:{sQ+3}], s19 offen nt lds")
    A("s_mov_b64 exec, -1")
    Lb("L_noom")
    A(f"s_lshr_b32 s{sPart}, s2, 5"); A(f"s_sub_u32 s{sPart}, s2, s{sPart}"); A(f"s_and_b32 s{sPart}, s{sPart}, 7")
    A(f"s_mov_b32 s{sWS}, s16"); A(f"s_mov_b32 s{sWS+1}, s17"); A(f"s_mov_b32 s{sWS+2}, {WSB}"); A(f"s_mov_b32 s{sWS+3}, 0x20000")
    A(f"s_mov_b32 s{sOUT}, s12"); A(f"s_mov_b32 s{sOUT+1}, s13"); A(f"s_mov_b32 s{sOUT+2}, 16384"); A(f"s_mov_b32 s{sOUT+3}, 0x20000")
    A(f"s_mov_b32 s{sDBG}, s14"); A(f"s_mov_b32 s{sDBG+1}, s15"); A(f"s_mov_b32 s{sDBG+2}, 256"); A(f"s_mov_b32 s{sDBG+3}, 0x20000")
    A(f"s_mov_b32 s{sV}, s8"); A(f"s_mov_b32 s{sV+1}, s9"); A(f"s_mov_b32 s{sV+2}, {1<<28}"); A(f"s_mov_b32 s{sV+3}, 0x20000")
    A("v_lshrrev_b32 v5, 4, v0")
    A("v_and_b32 v1, 15, v0")
    A(f"s_lshl_b32 s93, s{sHead}, 2")
    A(f"v_lshlrev_b32 v{vL4}, 2, v0"); A(f"v_mov_b32 v{vZero}, 0"); A(f"v_mov_b32 v{vMB}, {MB}")
    A(f"s_add_u32 s67, s93, s{sC}"); A("s_lshl_b32 s67, s67, 11")
    A(f"s_lshl_b32 s68, s{sPart}, 8"); A("s_add_u32 s68, s68, s67")
    A(f"s_mul_i32 s69, s{sHead}, {HS}"); A(f"s_add_u32 s69, s69, {CTR}")
    A(f"s_lshl_b32 s63, s{sPart}, 7"); A("s_add_u32 s63, s63, s69")
    A(f"s_lshl_b32 s18, s{sC}, 7"); A(f"s_add_u32 s19, s18, s19")
    A(f"v_mov_b32 v7, {OOB:#x}"); A(f"v_lshlrev_b32 v{vL16}, 4, v0")
    A("v_and_b32 v3, 7, v0")
    A(f"v_lshlrev_b32 v{vDp}, 7, v3")
    A(f"v_mov_b32 v{vSn}, v7"); A(f"v_mov_b32 v{vPo}, v{vL16}"); A(f"v_mov_b32 v{vSl}, v7")
    A(f"v_mov_b32 v{vS0}, v7")
    A(f"v_mov_b32 v{vM1}, -1"); A(f"v_mov_b32 v{vM2}, 0xffff0000")
    A(f"s_mov_b32 s{sOwn}, 0x01010101"); A(f"s_mov_b32 s{sOwn+1}, 0x01010101")
    A(f"v_cndmask_b32 v{vDp}, v{vDp}, v7, s[{sOwn}:{sOwn+1}]")
    C("finishing workgroup: what earlier launches left in the hand-over words")
    A(f"s_cmp_lg_u32 s{sPart}, 0"); A("s_cbranch_scc1 L_noec")
    if not an: A(f"buffer_load_dword v{vB+10}, v{vZero}, s[{sWS}:{sWS+3}], s69 offen {chkf}")
    A(f"buffer_load_dwordx4 v[{vB}:{vB+3}], v{vL16}, s[{sWS}:{sWS+3}], s67 offen {chkf}")
    A(f"buffer_load_dwordx4 v[{vB+4}:{vB+7}], v{vL16}, s[{sWS}:{sWS+3}], s67 offen offset:1024 {chkf}")
    A(f"buffer_load_dwordx2 v[{vB+8}:{vB+9}], v{vDp}, s[{sWS}:{sWS+3}], s69 offen offset:{DO} {chkf}")
    Lb("L_noec")
    A("s_bfm_b64 exec, 48, 0"); A(f"v_mov_b32 v{vM1}, v{vM2}")
    A("s_bfm_b64 exec, 32, 0"); A(f"v_mov_b32 v{vM2}, 0")
    A("s_bfm_b64 exec, 16, 0"); A(f"v_mov_b32 v{vM1}, 0"); A(f"v_mov_b32 v{vSn}, v{vL16}"); A(f"v_mov_b32 v{vPo}, v7")
    A("s_bfm_b64 exec, 8, 0"); A(f"v_mov_b32 v{vSl}, v{vL16}")
    A("s_mov_b64 exec, -1")
    A(f"v_writelane_b32 v{vS0}, 0, 0")
    A("v_and_b32 v6, 7, v1"); A("v_lshlrev_b32 v6, 1, v6")
    A("v_xor_b32 v6, v6, v5")
    A("v_lshlrev_b32 v6, 4, v6"); A(f"v_lshl_add_u32 v{vKb}, v1, 9, v6")
    for jj in range(1, 4): A(f"v_xor_b32 v{vKb+jj}, {jj*64}, v{vKb}")
    A(f"v_lshlrev_b32 v11, 4, v5")
    A(f"v_lshl_add_u32 v{vQa}, v5, 3, v{vMB}")
    A("v_lshrrev_b32 v6, 2, v0")
    A("v_and_b32 v7, 7, v6")
    A(f"s_lshl_b32 s18, s{sC}, 2")
    A("v_xor_b32 v7, s18, v7")
    A("v_lshlrev_b32 v7, 5, v7"); A("v_lshl_add_u32 v7, v6, 9, v7")
    A("v_and_b32 v10, 3, v0"); A(f"v_lshl_add_u32 v{vVb}, v10, 3, v7")
    for t in range(1, 4): A(f"v_xor_b32 v{vVb+t}, {t*32}, v{vVb}")
    for r in range(4):
        m = (1 << r) | (1 << (20 + r)) | (1 << (40 + r)) | (1 << (60 + r))
        A(f"s_mov_b32 s{sMask+2*r}, {m & 0xffffffff:#x}"); A(f"s_mov_b32 s{sMask+2*r+1}, {m >> 32:#x}")
    A(f"s_mov_b32 s{sL2E}, {f2u(math.log2(math.e)/4):#x}")
    A(f"v_mov_b32 v{vM8}, {f2u(-0.125):#x}"); A(f"v_mov_b32 v{vEps}, {f2u(1e-6):#x}")
    for r in range(16): A(f"v_mov_b32 v{vACC+r}, 0")
    A(f"v_mov_b32 v{vDen}, 0")
    A(f"s_and_b32 s18, s{sC}, 1"); A(f"s_lshr_b32 s52, s{sC}, 1")
    A(f"s_lshl_b32 s{sRing}, s52, 14"); A("s_lshl_b32 s53, s18, 13"); A(f"s_add_u32 s{sRing}, s{sRing}, s53")
    A("s_lshl_b32 s53, s52, 8"); A("s_lshl_b32 s18, s18, 3"); A("s_add_u32 s53, s53, s18"); A(f"s_add_u32 s53, s53, {WA}")
    A(f"v_lshl_add_u32 v{vPa}, v6, 4, s53"); A(f"v_lshl_add_u32 v{vPa}, v10, 1, v{vPa}")
    for jj in range(4): A(f"v_add_u32 v{vAd+jj}, {OMG}, v{vKb+jj}")
    A(f"v_add_u32 v2, {QL}, v11")
    A(f"s_mov_b32 s{sCnt}, 32")
    A(f"s_cmp_eq_u32 s{sPart}, 0")
    A(f"s_cselect_b32 s{sEv}, {K2}, {K5}")
    A("s_cbranch_scc1 L_ecw")
    A("s_waitcnt vmcnt(0)")
    Lb("L_ecw")
    A("s_waitcnt vmcnt(%d)" % (3 if an else 4))
    A("s_barrier")
    for j in range(8):
        A(f"ds_read_b128 v[{vOM+j*4}:{vOM+j*4+3}], v{vAd+(j&3)} offset:{(j>>2)*256}")
    for jj in range(4): A(f"v_add_u32 v{vAd+jj}, s{sRing}, v{vKb+jj}")
    A("s_cmp_eq_u32 s52, 0")
    A("s_cbranch_scc1 L_k_nb")
    A(f"s_cmp_lg_u32 s{sC}, 2")
    A("s_cbranch_scc1 L_k")

    def round4(src, dst):
        A(f"v_cvt_pk_bf16_f32 v{vT}, v{src}, v{src+1}")
        A(f"v_cvt_pk_bf16_f32 v{vT+1}, v{src+2}, v{src+3}")
        A(f"v_lshlrev_b32 v{dst}, 16, v{vT}"); A(f"v_and_b32 v{dst+1}, 0xffff0000, v{vT}")
        A(f"v_lshlrev_b32 v{dst+2}, 16, v{vT+1}"); A(f"v_and_b32 v{dst+3}, 0xffff0000, v{vT+1}")
    def phi_tail():
        round4(vY, vY)
        for r in range(4): A(f"v_mul_f32 v{vY+r}, s{sL2E}, v{vY+r}")
        for r in range(4): A(f"v_exp_f32 v{vY+r}, v{vY+r}")
        A("s_nop 0")
        round4(vY, vY)
        for r in range(4): A(f"v_fmamk_f32 v{vY+r}, v{vY+r}, 0x3e800000, v{vEps}")
        A(f"v_cvt_pk_bf16_f32 v{vPH}, v{vY}, v{vY+1}")
        A(f"v_cvt_pk_bf16_f32 v{vPH+1}, v{vY+2}, v{vY+3}")

    C("phi(q), by the wave that has nothing to do in the first round")
    for j in range(8):
        A(f"ds_read_b128 v[{vK+j*4}:{vK+j*4+3}], v2 offset:{j*64}")
    A("s_waitcnt lgkmcnt(0)")
    for j in range(8):
        qr = f"v[{vK+j*4}:{vK+j*4+3}]"
        c = "0" if j == 0 else f"v[{vKP}:{vKP+3}]"
        A(f"v_mfma_f32_16x16x32_bf16 v[{vKP}:{vKP+3}], v[{vOM+j*4}:{vOM+j*4+3}], {qr}, {c}")
        c = "0" if j == 0 else f"v[{vG}:{vG+3}]"
        A(f"v_mfma_f32_16x16x32_bf16 v[{vG}:{vG+3}], {qr}, {qr}, {c}")
    A("s_nop 7")
    round4(vKP, vKP)
    A(f"v_cvt_pk_bf16_f32 v{vX}, v{vG}, v{vG}")
    A(f"v_and_b32 v{vX}, 0xffff0000, v{vX}")
    for r in range(4): A(f"v_fma_f32 v{vY+r}, v{vX}, v{vM8}, v{vKP+r}")
    phi_tail()
    A(f"ds_write_b64 v{vQa}, v[{vPH}:{vPH+1}] offset:32")
    A("s_waitcnt lgkmcnt(0)")

    C("---- K phase: weights of 16 keys per wave and pair of rounds")
    Lb("L_k")
    A("s_barrier")
    Lb("L_k_nb")
    for j in range(8):
        A(f"ds_read_b128 v[{vK+j*4}:{vK+j*4+3}], v{vAd+(j&3)} offset:{(j>>2)*256}")
    A(f"s_add_u32 s{sRing}, s{sRing}, 32768"); A(f"s_and_b32 s{sRing}, s{sRing}, 0xffff")
    for jj in range(4): A(f"v_add_u32 v{vAd+jj}, s{sRing}, v{vKb+jj}")
    for j in range(8):
        kr = f"v[{vK+j*4}:{vK+j*4+3}]"
        A(f"s_waitcnt lgkmcnt({7-j})")
        c = "0" if j == 0 else f"v[{vG}:{vG+3}]"
        A(f"v_mfma_f32_16x16x32_bf16 v[{vG}:{vG+3}], {kr}, {kr}, {c}")
        c = "0" if j == 0 else f"v[{vKP}:{vKP+3}]"
        A(f"v_mfma_f32_16x16x32_bf16 v[{vKP}:{vKP+3}], v[{vOM+j*4}:{vOM+j*4+3}], {kr}, {c}")
    A("s_barrier")
    A(f"ds_read_b64 v[{vPQ}:{vPQ+1}], v{vQa} offset:32")
    A("s_nop 7")
    A(f"v_cndmask_b32 v{vX}, 0, v{vG}, s[{sMask}:{sMask+1}]")
    for r in range(1, 4):
        A(f"v_cndmask_b32 v{vX}, v{vX}, v{vG+r}, s[{sMask+2*r}:{sMask+2*r+1}]")
    A(f"v_cvt_pk_bf16_f32 v{vX}, v{vX}, v{vX}")
    A(f"v_and_b32 v{vX}, 0xffff0000, v{vX}")
    round4(vKP, vKP)
    A("s_nop 1")
    A(f"v_mfma_f32_16x16x4_f32 v[{vY}:{vY+3}], v{vM8}, v{vX}, v[{vKP}:{vKP+3}]")
    A("s_nop 9")
    phi_tail()
    A("s_waitcnt lgkmcnt(0)")
    A(f"s_sub_u32 s{sCnt}, s{sCnt}, 1")
    A(f"v_mfma_f32_16x16x16_bf16 v[{vG}:{vG+3}], v[{vPQ}:{vPQ+1}], v[{vPH}:{vPH+1}], 0")
    A("s_nop 7")
    A(f"v_and_b32 v{vT}, v{vM1}, v{vG}")
    A(f"v_add_f32 v{vDen}, v{vDen}, v{vG}")
    A(f"v_sub_f32 v{vX}, v{vG}, v{vT}")
    A(f"v_and_b32 v{vT}, v{vM2}, v{vX}")
    A(f"v_sub_f32 v{vX}, v{vX}, v{vT}")
    A(f"ds_write_b16_d16_hi v{vPa}, v{vX}")
    A(f"v_add_u32 v{vPa}, 512, v{vPa}")
    A(f"s_cmp_eq_u32 s{sCnt}, s{sEv}")
    A("s_cbranch_scc1 L_ke")
    Lb("L_ke_ret")
    A(f"s_cmp_lg_u32 s{sCnt}, 0")
    A("s_waitcnt lgkmcnt(0)")
    A("s_cbranch_scc1 L_k")

    C("---- V phase: w^T v for 64 columns per wave")
    NQ = 62
    T3 = T4 + 1
    A(f"v_lshl_add_u32 v{vPa}, v10, 6, v11"); A(f"v_add_u32 v{vPa}, {WA}, v{vPa}")
    A(f"s_lshl_b32 s18, s{sC}, 6"); A(f"v_lshl_add_u32 v2, v1, 2, s18"); A(f"v_add_u32 v2, v2, v{vMB}")
    A(f"ds_read_b128 v[{vA}:{vA+3}], v{vPa}")
    A(f"ds_write_b32 v2, v{vDen} offset:256")
    A(f"s_mov_b32 s{sRing}, 0")
    A(f"s_mov_b32 s{sCnt}, 64")
    A(f"s_cmp_eq_u32 s{sC}, 0"); A(f"s_cselect_b32 s{sEv}, {NQ}, {T3}")
    A("v_lshlrev_b32 v1, 1, v0")
    for t in range(4): A(f"v_mov_b32 v{vAd+t}, v{vVb+t}")
    A("s_cmp_lg_u32 s52, 0")
    A("s_waitcnt lgkmcnt(0)")
    A("s_cbranch_scc1 L_v_nb")
    Lb("L_v")
    A("s_barrier")
    Lb("L_v_nb")
    for t in range(4):
        A(f"ds_read_b64_tr_b16 v[{vB+t*4}:{vB+t*4+1}], v{vAd+t}")
        A(f"ds_read_b64_tr_b16 v[{vB+t*4+2}:{vB+t*4+3}], v{vAd+t} offset:8192")
    A(f"s_add_u32 s{sRing}, s{sRing}, 16384"); A(f"s_and_b32 s{sRing}, s{sRing}, 0xffff")
    A(f"v_add_u32 v{vPa}, 256, v{vPa}")
    A(f"s_sub_u32 s{sCnt}, s{sCnt}, 1")
    for t in range(4):
        A(f"s_waitcnt lgkmcnt({6-2*t})")
        a = vACC + t * 4
        A(f"v_mfma_f32_16x16x32_bf16 v[{a}:{a+3}], v[{vA}:{vA+3}], v[{vB+t*4}:{vB+t*4+3}], v[{a}:{a+3}]")
    A(f"s_cmp_eq_u32 s{sCnt}, 0")
    A("s_cbranch_scc1 L_epi")
    A(f"ds_read_b128 v[{vA}:{vA+3}], v{vPa}")
    for t in range(4): A(f"v_add_u32 v{vAd+t}, s{sRing}, v{vVb+t}")
    A(f"s_cmp_eq_u32 s{sCnt}, s{sEv}")
    A("s_cbranch_scc0 L_v")
    A("s_branch L_ve")
    Lb("L_ve_ret")
    A("s_waitcnt lgkmcnt(0)")
    A("s_branch L_v")

    C("---- epilogue: add the parts, hand over / collect")
    P = vOM
    sTg = 20
    def polls():
        A(f"buffer_load_dwordx4 v[{P}:{P+3}], v{vPo}, s[{sWS}:{sWS+3}], s67 offen sc1")
        A(f"buffer_load_dwordx4 v[{P+4}:{P+7}], v{vL16}, s[{sWS}:{sWS+3}], s67 offen offset:1024 sc1")
    S = vK
    Lb("L_epi")
    if stamp: A("s_memrealtime s[72:73]")
    for t in range(4):
        a = vACC + t * 4
        A(f"v_add_f32 v{S+t}, v{a+1}, v{a+2}")
        A(f"v_add_f32 v{S+t}, v{S+t}, v{a}")
        if t == 2: A(f"s_cmp_eq_u32 s{sPart}, 0")
    A("s_cbranch_scc1 L_final")
    A(f"s_cmp_lg_u32 s{sFar}, 0")
    for t in range(4): A(f"v_bfi_b32 v{S+t}, 63, s{sTg+t}, v{S+t}")
    A("s_cbranch_scc1 L_far")
    for fl in ("", " " + stf):
        if fl: Lb("L_far")
        A(f"buffer_store_dwordx4 v[{S}:{S+3}], v{vSn}, s[{sWS}:{sWS+3}], s68 offen{fl}")
        if stamp:
            A("s_mov_b32 s76, 0"); A("s_mov_b32 s78, 0"); A("s_mov_b32 s80, 0")
            A("s_branch L_fin")
        else:
            A("s_endpgm")
    Lb("L_final")
    if stamp:
        A("s_memrealtime s[78:79]"); A("s_mov_b32 s76, 0")
    A(f"v_cndmask_b32 v{S}, v{S}, v{S+1}, s[24:25]")
    A(f"v_cndmask_b32 v{S+2}, v{S+2}, v{S+3}, s[24:25]")
    A(f"v_cndmask_b32 v{S}, v{S}, v{S+2}, s[26:27]")
    A("s_branch L_chk")
    Lb("L_poll")
    polls()
    A("s_sub_u32 s53, s53, 1")
    A("s_cbranch_scc1 L_end")
    Lb("L_chk")
    if stamp: A("s_add_u32 s76, s76, 1")
    A("s_waitcnt vmcnt(0)")
    X0, X1 = S + 4, S + 5
    A(f"v_add_f32 v{S+8}, v{P}, v{P+4}")
    A(f"v_add_f32 v{S+10}, v{P+2}, v{P+6}")
    A(f"v_add_f32 v{S+9}, v{P+1}, v{P+5}")
    A(f"v_add_f32 v{S+11}, v{P+3}, v{P+7}")
    A(f"v_xor_b32 v{X0}, v{P}, v{vE}")
    A(f"v_permlane32_swap_b32 v{S+8}, v{S+10}")
    A(f"v_xor_b32 v{X1}, s{sTg}, v{P+4}")
    A(f"v_permlane32_swap_b32 v{S+9}, v{S+11}")
    A(f"v_bitop3_b32 v{X0}, v{P+1}, v{X0}, v{vE+1} bitop3:0xde")
    A(f"v_add_f32 v{S+8}, v{S+8}, v{S+10}")
    A(f"v_add_f32 v{S+9}, v{S+9}, v{S+11}")
    A(f"v_bitop3_b32 v{X1}, v{P+5}, v{X1}, s{sTg+1} bitop3:0xde")
    A(f"v_bitop3_b32 v{X0}, v{P+2}, v{X0}, v{vE+2} bitop3:0xde")
    A(f"v_permlane16_swap_b32 v{S+8}, v{S+9}")
    A(f"v_bitop3_b32 v{X1}, v{P+6}, v{X1}, s{sTg+2} bitop3:0xde")
    A(f"v_bitop3_b32 v{X0}, v{P+3}, v{X0}, v{vE+3} bitop3:0xde")
    A(f"v_add_f32 v{S+8}, v{S+8}, v{S+9}")
    A(f"v_bitop3_b32 v{X1}, v{P+7}, v{X1}, s{sTg+3} bitop3:0xde")
    A(f"v_add_f32 v{S+8}, v{S+8}, v{S}")
    A(f"v_bitop3_b32 v{X0}, v{X0}, v{X1}, 63 bitop3:0xa8")
    A(f"v_cvt_pk_bf16_f32 v{S+8}, v{S+8}, v{S+8}")
    A(f"v_cmp_ne_u32 vcc, 0, v{X0}")
    A(f"v_and_b32 v{S+8}, 0xffff0000, v{S+8}")
    A(f"v_mul_f32 v{S+8}, v{S+8}, v{vFl+1}")
    A(f"v_cvt_pk_bf16_f32 v{S+8}, v{S+8}, v{S+8}")
    A("s_cbranch_vccnz L_poll")
    if stamp: A("s_memrealtime s[80:81]")
    A(f"buffer_store_short v{S+8}, v1, s[{sOUT}:{sOUT+3}], s19 offen")
    if stamp:
        A("s_branch L_fin")
    else:
        A("s_endpgm")

    C("---- V phase events")
    Lb("L_ve")
    A(f"s_cmp_eq_u32 s{sCnt}, {T4}"); A("s_cbranch_scc1 L_ve_t4")
    A(f"s_cmp_gt_u32 s{sCnt}, {T3}"); A("s_cbranch_scc1 L_ve_0")
    A(f"s_sub_u32 s{sEv}, s{sEv}, 1")
    A(f"s_cmp_lt_u32 s{sCnt}, {T4}"); A("s_cbranch_scc1 L_ve_t5")
    A(f"ds_read_b64 v[{vFl}:{vFl+1}], v{vMB}")
    A("s_branch L_ve_ret")
    Lb("L_ve_t4")
    A(f"v_readfirstlane_b32 s{sTg}, v{vFl}")
    A("s_getreg_b32 s18, hwreg(HW_REG_XCC_ID, 0, 4)")
    A(f"s_mov_b32 s53, {1<<20}")
    A(f"s_bfe_u32 s{sFar}, s{sTg}, 0x40018")
    A(f"s_xor_b32 s{sFar}, s{sFar}, s18")
    if force: A(f"s_mov_b32 s{sFar}, 1")
    for t in range(1, 4): A(f"s_lshr_b32 s{sTg+t}, s{sTg}, {6*t}")
    A(f"s_cmp_lg_u32 s{sPart}, 0")
    A("s_cbranch_scc1 L_ve_ret")
    A(f"s_mov_b32 s{sEv}, 1")
    A("s_mov_b32 s24, 0xffff0000"); A("s_mov_b32 s25, 0xffff0000"); A("s_mov_b32 s26, 0"); A("s_mov_b32 s27, -1")
    for t in range(4): A(f"v_mov_b32 v{vE+t}, s{sTg+t}")
    A("s_bfm_b64 exec, 16, 0")
    for t in range(4): A(f"v_mov_b32 v{vE+t}, 0")
    A("s_mov_b64 exec, -1")
    Lb("L_ve_t5")
    polls()
    A("s_branch L_ve_ret")
    Lb("L_ve_0")
    A(f"s_cmp_eq_u32 s{sCnt}, {NQ}"); A("s_cbranch_scc1 L_ve_q")
    A(f"s_cmp_eq_u32 s{sCnt}, {ND}"); A("s_cbranch_scc0 L_ve_d")
    D = 4
    A(f"s_mov_b32 s{sEv}, {ND - 3}")
    A(f"buffer_load_dwordx2 v[{D}:{D+1}], v{vDp}, s[{sWS}:{sWS+3}], s69 offen offset:{DO} sc1 nt")
    A("s_branch L_ve_ret")
    C("finishing workgroup: the dens of the others")
    Lb("L_ve_d")
    A(f"s_mov_b32 s{sEv}, {T3}")
    A(f"s_mov_b32 s53, {1<<20}")
    Lb("L_dn")
    A("s_waitcnt vmcnt(0)")
    A(f"v_cmp_ne_u32 vcc, s{sT}, v{D+1}")
    A(f"v_cndmask_b32 v6, v{D}, v{vDen}, s[{sOwn}:{sOwn+1}]")
    A(f"s_andn2_b64 vcc, vcc, s[{sOwn}:{sOwn+1}]")
    A("s_cbranch_scc0 L_dn_ok")
    if an == 1:
        A(f"s_bitcmp0_b32 s53, 20"); A("s_cbranch_scc1 L_dn_a")
        A(f"v_mov_b32 v7, s{sT}"); A("s_bitset1_b32 s93, 7")
        A(f"buffer_store_dword v7, v{vS0}, s[{sDBG}:{sDBG+3}], s93 offen sc1")
        Lb("L_dn_a")
    A(f"buffer_load_dwordx2 v[{D}:{D+1}], v{vDp}, s[{sWS}:{sWS+3}], s69 offen offset:{DO} {ldf}")
    A("s_sub_u32 s53, s53, 1")
    A("s_cbranch_scc0 L_dn")
    A("s_waitcnt vmcnt(0)")
    A(f"v_mov_b32 v6, -1")
    A("s_nop 1")
    Lb("L_dn_ok")
    A(f"v_add_f32_dpp v6, v6, v6 quad_perm:[1,0,3,2] row_mask:0xf bank_mask:0xf"); A("s_nop 1")
    A(f"v_add_f32_dpp v6, v6, v6 quad_perm:[2,3,0,1] row_mask:0xf bank_mask:0xf"); A("s_nop 1")
    A(f"v_add_f32_dpp v6, v6, v6 row_half_mirror row_mask:0xf bank_mask:0xf")
    A(f"v_cvt_pk_bf16_f32 v6, v6, v6"); A(f"v_and_b32 v6, 0xffff0000, v6")
    A(f"v_add_f32 v6, v6, v{vEps}")
    A(f"v_cvt_pk_bf16_f32 v6, v6, v6"); A(f"v_and_b32 v6, 0xffff0000, v6")
    A(f"v_rcp_f32 v7, v6")
    A("s_nop 0")
    A(f"ds_write_b32 v{vMB}, v7 offset:4")
    A("s_branch L_ve_ret")

    C("wave c=0 takes over the epoch word and hands the den of this workgroup over")
    Lb("L_ve_q")
    A(f"v_add_u32 v2, v{vL4}, v{vMB}")
    A(f"ds_read_b32 v{vDen}, v2 offset:256")
    A(f"s_mov_b32 s53, {1<<20}")
    if an == 1:
        A(f"s_cmp_eq_u32 s{sPart}, 0"); A("s_cbranch_scc1 L_ep_ok")
    Lb("L_ep")
    A("s_waitcnt vmcnt(0)")
    A(f"v_readfirstlane_b32 s{sT}, v{vFl}")
    A(f"s_cmp_lg_u32 s{sT}, 0")
    A("s_cbranch_scc1 L_ep_ok")
    if an == 1: A("s_xor_b32 s93, s93, 0x80")
    A(f"buffer_load_dword v{vFl}, v{vS0}, s[{sDBG}:{sDBG+3}], s93 offen sc1")
    A("s_sub_u32 s53, s53, 1")
    A("s_cbranch_scc0 L_ep")
    A("s_waitcnt vmcnt(0)")
    Lb("L_ep_ok")
    A(f"v_mov_b32 v5, s{sT}"); A("v_mov_b32 v6, 0"); A("v_mov_b32 v7, 0")
    A(f"ds_write_b64 v{vMB}, v[5:6]") if False else A(f"ds_write_b32 v{vMB}, v5")
    A(f"s_cmp_eq_u32 s{sPart}, 0"); A(f"s_cselect_b32 s{sEv}, {ND}, {T3}")
    A("s_getreg_b32 s18, hwreg(HW_REG_XCC_ID, 0, 4)")
    A(f"s_bfe_u32 s{sFar}, s{sT}, 0x40018")
    A("s_waitcnt lgkmcnt(0)")
    for sft in (1, 2, 4, 8):
        A(f"v_add_f32_dpp v{vDen}, v{vDen}, v{vDen} row_ror:{sft} row_mask:0xf bank_mask:0xf")
        A("s_nop 1")
    for sw in (32, 16):
        A(f"v_mov_b32 v2, v{vDen}"); A("s_nop 1")
        A(f"v_permlane{sw}_swap_b32 v2, v{vDen}")
        A(f"v_add_f32 v{vDen}, v{vDen}, v2")
    A(f"s_cmp_eq_u32 s{sPart}, 0")
    A("s_cbranch_scc1 L_ve_ret")
    A(f"v_mov_b32 v4, v{vDen}")
    A(f"s_cmp_lg_u32 s{sFar}, s18")
    if force: A("s_cmp_eq_u32 0, 0")
    A("s_cbranch_scc1 L_dfar")
    A(f"buffer_store_dwordx4 v[4:7], v{vSl}, s[{sWS}:{sWS+3}], s63 offen offset:{DO}")
    A("s_branch L_ve_ret")
    Lb("L_dfar")
    A(f"buffer_store_dwordx4 v[4:7], v{vSl}, s[{sWS}:{sWS+3}], s63 offen offset:{DO} {stf}")
    A("s_branch L_ve_ret")

    C("---- K phase events: the finishing workgroup picks an epoch no old granule carries and announces it")
    Lb("L_ke")
    for n, nm in ((K3, "3"), (K4, "4"), (K5, "5")):
        A(f"s_cmp_eq_u32 s{sCnt}, {n}"); A(f"s_cbranch_scc1 L_ke{nm}")
    A(f"s_mov_b32 s{sEv}, {K3}")
    A("s_waitcnt vmcnt(0)")
    if an: A(f"v_readlane_b32 s{sT}, v{vB+9}, 1")
    else: A(f"v_readfirstlane_b32 s{sT}, v{vB+10}")
    A("s_getreg_b32 s18, hwreg(HW_REG_XCC_ID, 0, 4)")
    A(f"s_add_u32 s{sT}, s{sT}, 1"); A(f"s_and_b32 s{sT}, s{sT}, 0xffffff"); A(f"s_bitset1_b32 s{sT}, 31")
    A("s_lshl_b32 s18, s18, 24"); A(f"s_or_b32 s{sT}, s{sT}, s18")
    for h in range(2):
        g = vB + 4 * h
        A(f"v_xor_b32 v3, s{sT}, v{g}")
        for j in range(1, 4):
            A(f"s_lshr_b32 s18, s{sT}, {6*j}")
            A(f"v_bitop3_b32 v3, v{g+j}, v3, s18 bitop3:0xde")
        A("v_and_b32 v3, 63, v3")
        A("v_cmp_eq_u32 vcc, 0, v3")
        A(f"v_xor_b32 v{g}, 1, v{g}")
        A(f"s_cbranch_vccz L_kc{h}")
        A("s_mov_b64 exec, vcc")
        A(f"buffer_store_dword v{g}, v{vL16}, s[{sWS}:{sWS+3}], s67 offen offset:{1024*h} {stf}")
        A("s_mov_b64 exec, -1")
        Lb(f"L_kc{h}")
    A(f"v_cmp_eq_u32 vcc, s{sT}, v{vB+9}")
    A(f"s_cbranch_vccz L_ke_ret")
    A("s_mov_b64 exec, vcc")
    A(f"buffer_store_dword v{vZero}, v{vDp}, s[{sWS}:{sWS+3}], s69 offen offset:{DO+4} {stf}")
    A("s_mov_b64 exec, -1")
    A("s_branch L_ke_ret")
    Lb("L_ke3")
    A(f"s_mov_b32 s{sEv}, {K4}")
    A("s_waitcnt vmcnt(0)")
    A("s_branch L_ke_ret")
    Lb("L_ke4")
    A(f"s_mov_b32 s{sEv}, {K5}")
    A(f"s_cmp_lg_u32 s{sC}, 0")
    A("s_cbranch_scc1 L_ke_ret")
    A(f"v_mov_b32 v5, s{sT}")
    if an == 1:
        if force != 2: A(f"buffer_store_dword v5, v{vS0}, s[{sDBG}:{sDBG+3}], s93 offen")
    elif an == 2:
        A(f"buffer_store_dword v5, v{vS0}, s[{sDBG}:{sDBG+3}], s93 offen sc1")
    elif an == 3:
        A(f"buffer_atomic_swap v5, v{vS0}, s[{sDBG}:{sDBG+3}], s93 offen sc1")
    else:
        A("v_mov_b32 v6, 1")
        A(f"buffer_store_dword v5, v{vS0}, s[{sDBG}:{sDBG+3}], s93 offen {stf}")
        A(f"buffer_atomic_add v6, v{vS0}, s[{sWS}:{sWS+3}], s69 offen sc1")
    A("s_branch L_ke_ret")
    Lb("L_ke5")
    A(f"s_cmp_lg_u32 s{sC}, 0")
    A("s_cbranch_scc1 L_ke_ret")
    A(f"buffer_load_dword v3, v{vS0}, s[{sV}:{sV+3}], s{sOff} offen nt")
    A(f"buffer_load_dword v{vFl}, v{vS0}, s[{sDBG}:{sDBG+3}], s93 offen")
    A("s_branch L_ke_ret")

    steering()

    if stamp:
        Lb("L_fin")
        A("s_waitcnt vmcnt(0)")
        A("s_memrealtime s[74:75]")
        A("s_getreg_b32 s82, hwreg(HW_REG_XCC_ID)")
        A("s_getreg_b32 s83, hwreg(HW_REG_HW_ID)")
        A("s_waitcnt lgkmcnt(0)")
        A(f"s_mul_i32 s19, s2, 5"); A("s_add_u32 s19, s19, s3"); A("s_lshl_b32 s19, s19, 5"); A("s_add_u32 s19, s19, 0x100000")
        A("v_mov_b32 v2, s19")
        A("v_mov_b32 v4, s70"); A("v_mov_b32 v5, s76"); A("v_mov_b32 v6, s72"); A("v_mov_b32 v7, s82")
        A("v_mov_b32 v8, s83"); A("v_mov_b32 v9, s78"); A("v_mov_b32 v10, s80"); A("v_mov_b32 v11, s74")
        A("s_mov_b64 exec, 1")
        A("global_store_dwordx4 v2, v[4:7], s[16:17]")
        A("global_store_dwordx4 v2, v[8:11], s[16:17] offset:16")
        A("s_waitcnt vmcnt(0)")
    Lb("L_end")
    A("s_endpgm")
    o.append('.section .rodata,"a"'); o.append(".p2align 6"); o.append(f".amdhsa_kernel {KN}")
    A(f".amdhsa_next_free_vgpr {nv}"); A(".amdhsa_next_free_sgpr 100"); A(f".amdhsa_accum_offset {nv}")
    A(".amdhsa_group_segment_fixed_size 0"); A(".amdhsa_kernarg_size 56"); A(".amdhsa_user_sgpr_count 2")
    A(".amdhsa_user_sgpr_kernarg_segment_ptr 1"); A(".amdhsa_system_sgpr_workgroup_id_x 1")
    A(".amdhsa_float_denorm_mode_32 3")
    o.append(".end_amdhsa_kernel")
    return "\n".join(o) + "\n"

if __name__ == "__main__":
    out = sys.argv[1]
    kw = {}
    for kv in sys.argv[2:]:
        k, v = kv.split("=")
        kw[k] = int(v) if v.lstrip("-").isdigit() else v
    open(out, "w").write(gen(**kw))
```

```python
import sys, struct, math
KN = "standalone__linear_kernel_rfa__decode_kernel"
def f2u(x): return struct.unpack("<I", struct.pack("<f", x))[0]

HEADER = """; Kernarg layout for this problem (56 bytes, ptrs only, base s[0:1]):
"""

def gen(W=22, WB=32, WT=16, ND=56, jo="x30142675", K2=25, K3=23, K4=21, K5=6,
        CS=12, CE=122, tau=53, bias=-2, gG=3, gE=12, mxB=4, mxT=3, RG=2048, GX=100, k1=8, k2=64, uB=110, uT=128,
        gm="x16.48.80.96.110", gs=256, qe=0, sts=0, st=1, pad=0, pt=1, vt=1, pk=0, pc=0, nvx=0, cw=0, cx=1, pe=0, pz=0, al=2, ot=0, ev1=1, cwf="none", cwa=0, H0=0, H1=0, k3=32, gH=4, stamp=0, prio=3, force=0, trace=0):
    NWG = 256
    stf = ldf = "sc1"; chkf = "sc1 nt"
    o = []
    A = lambda s: o.append("  " + s)
    Lb = lambda s: o.append(s + ":")
    C = lambda s: o.append("; " + s)
    WA = 65536
    OMG = WA + 16384
    QL = OMG + 8192
    MB = QL + 512
    lds = QL + 1024
    o.append(HEADER.rstrip("\n"))
    o.append(f"; @launch grid=({NWG},1,1) block=(384,1,1) lds={lds}")
    o.append('.amdgcn_target "amdgcn-amd-amdhsa--gfx950"')
    o.append(".text"); o.append(f".globl {KN}"); o.extend([".p2align 12"] if al == 1 else []); o.append(".p2align 8"); o.append(f".type {KN},@function"); Lb(KN)

    sK, sV, sOM, sQ, sOUT, sWS, sDBG = 20, 24, 28, 32, 36, 40, 44
    sOff, sRing, sCnt = 48, 49, 50
    sT = 51
    sMask, sL2E = 54, 62
    sHead, sPart, sC = 64, 65, 66
    sEv, sFar = 84, 85
    sRaw, sId = 2, 90
    GRP = 2048
    CTR = 128 * GRP
    HS = 8448
    BRD = CTR + 32 * HS
    GLB = BRD + 16 * HS
    WSB = GLB + 16 * gs
    DO = 1024
    OOB = 0x7ff00000

    sJ, sBE, sTE, sR, sX, sTab = 50, 51, 52, 53, 54, 56
    A(f"s_load_dwordx2 s[{sK}:{sK+1}], s[0:1], 8")
    if stamp: A("s_memrealtime s[70:71]")
    A("v_readfirstlane_b32 s3, v0")
    A(f"s_lshr_b32 s18, s2, 8")
    A("s_cbranch_scc1 L_end")
    C("head = low five bits of the id rotated right by one, part = the upper three")
    A("s_and_b32 s18, s2, 31"); A("s_mul_i32 s18, s18, 33"); A("s_bfe_u32 s18, s18, 0x50001")
    A(f"s_lshr_b32 s{sId}, s2, 5"); A(f"s_lshl3_add_u32 s{sId}, s18, s{sId}")
    A(f"s_lshl_b32 s{sOff}, s{sId}, 20")
    A("s_cmp_lg_u32 s3, 0")
    A("s_cbranch_scc1 L_cons")
    def dma_offsets():
        A("v_and_b32 v1, 32, v0")
        A("v_lshlrev_b32 v4, 4, v0")
        A("v_xor_b32 v4, v4, v1")
        A("v_xor_b32 v5, 64, v4")
        A("v_xor_b32 v6, 0x80, v4")
        A("v_xor_b32 v7, 64, v6")

    C("---- loader wave: 4 KiB groups, a barrier after every fourth")
    assert WB <= 32
    cols = [1 << int(ch, 16) for ch in jo[1:]]
    assert len(cols) == 8
    T = []; acc = 0
    for c in cols: acc ^= c; T.append(acc)
    T.append(acc)
    movk = lambda r, v: A(f"s_mov_b32 s{r}, {v}" if v <= 64 else f"s_movk_i32 s{r}, {v}")
    dma_offsets()
    A(f"s_brev_b32 s{sK+2}, 8"); A(f"s_lshl_b32 s{sK+3}, 1, 17")
    A(f"s_mov_b32 m0, 0")
    def loads():
        for n in range(4):
            A(f"buffer_load_dwordx4 v{4+n}, s[{sK}:{sK+3}], s{sOff} offen offset:{n*1024} nt lds")
    if st == 2:
        A("s_waitcnt lgkmcnt(0)")
        loads()
    A(f"s_mov_b64 s[{sJ}:{sJ+1}], 0"); A(f"s_mov_b32 s{sTE}, 0")
    A(f"s_lshl_b32 s{sX}, s{sId}, 8")
    for k in range(4): movk(sTab + k, T[k])
    A("s_mov_b32 s55, 7")
    A(f"v_mov_b32 v9, {MB}")
    A("s_branch L_st" if st == 2 else "s_branch L_w")
    for _ in range(pad): A("s_nop 0")
    Lb("L_ld")
    A(f"s_cmp_lt_u32 s{sJ}, s{sTE}")
    A("s_cbranch_scc0 L_nt")
    A(f"s_waitcnt vmcnt({WT-4})")
    Lb("L_nt")
    A(f"s_cmp_lt_u32 s{sJ}, s{sBE}")
    A("s_cbranch_scc1 L_w")
    A(f"s_waitcnt vmcnt({W-4})")
    Lb("L_w")
    A(f"s_waitcnt vmcnt({WB-4}) lgkmcnt(0)")
    loads()
    Lb("L_st")
    A(f"ds_read_b32 v8, v9 offset:12")
    A(f"s_add_u32 s{sJ}, s{sJ}, 1")
    A(f"s_ff1_i32_b32 m0, s{sJ}")
    A(f"s_lshl_b32 s18, s{sJ}, 12")
    A(f"s_movrels_b32 s19, s{sTab}")
    A(f"s_and_b32 m0, s18, 0xffff")
    A(f"s_xor_b32 s{sX}, s{sX}, s19")
    A(f"s_lshl_b32 s{sOff}, s{sX}, 12")
    A(f"s_and_b32 s18, s{sJ}, s55")
    A("s_cbranch_scc1 L_ld")
    A(f"s_load_dwordx2 s[8:9], s[0:1], 16")
    if stamp: A(f"s_load_dwordx2 s[16:17], s[0:1], 48")
    A(f"s_cmp_lt_u32 s{sJ}, 12")
    A("s_cbranch_scc1 L_in2")
    A(f"v_readfirstlane_b32 s{sR}, v8")
    if sts > 3:
        A(f"s_cmp_lg_u32 s{sJ}, {sts}"); A("s_cbranch_scc1 L_s1")
        A("s_memrealtime s[86:87]"); A("s_barrier"); A("s_memrealtime s[88:89]"); A("s_branch L_s2")
        Lb("L_s1")
    A("s_barrier")
    if sts > 3: Lb("L_s2")
    A(f"s_and_b32 s{sBE}, s{sR}, 0xffff")
    A(f"s_lshr_b32 s{sTE}, s{sR}, 16")
    A(f"s_and_b32 s18, s{sJ}, 0xff")
    A("s_cbranch_scc1 L_ld")
    A(f"s_mov_b32 s{sK}, s8"); A(f"s_mov_b32 s{sK+1}, s9")
    if stamp:
        A(f"s_cmpk_lg_u32 s{sJ}, 256"); A("s_cbranch_scc1 L_nk"); A("s_memrealtime s[76:77]"); Lb("L_nk")
    A(f"s_cmpk_lg_u32 s{sJ}, 512")
    A("s_cbranch_scc1 L_ld")
    if stamp: A("s_memrealtime s[78:79]")
    for i, n in enumerate((16, 8, 0)):
        A(f"s_waitcnt vmcnt({n})")
        if sts == i + 1: A("s_memrealtime s[86:87]")
        A("s_barrier")
        if sts == i + 1: A("s_memrealtime s[88:89]")
    if stamp:
        A("s_memrealtime s[72:73]")
        if sts: A("s_waitcnt lgkmcnt(0)"); A("s_mov_b32 s78, s86"); A("s_mov_b32 s80, s88")
        A("s_branch L_fin")
    else:
        A("s_endpgm")
    Lb("L_in2")
    for k in range(4, 9): movk(sTab + k, T[k])
    A("s_mov_b32 s55, 3")
    A("v_mov_b32 v10, 0")
    A("ds_write_b32 v9, v10 offset:12")
    if prio: A(f"s_setprio {prio}")
    if stamp: A("s_mov_b32 s80, 0")
    A("s_branch L_ld")

    def steering():
        C("---- steering wave: every workgroup posts the time at which it would finish at the nominal rate; who is")
        C("     behind the others gets a wider window of loads for a few groups, who is ahead a narrower one")
        vB, vD, vLo, vG, vA, vMBc, vP = 2, 3, 4, 7, 8, 9, 10
        sB, sRem, sE, sXc, sJ0, sAc, sBase = 50, 51, 52, 54, 55, 56, 57
        assert CS % 2 == 0 and CE == 122
        Lb("L_ctl")
        A(f"s_getreg_b32 s{sXc}, hwreg(HW_REG_XCC_ID, 0, 4)")
        A(f"s_mov_b32 s{sWS+2}, {WSB}"); A(f"s_mov_b32 s{sWS+3}, 0x20000")
        A(f"s_mul_i32 s{sBase}, s{sXc}, {HS}"); A(f"s_add_u32 s{sBase}, s{sBase}, {BRD}")
        C("lanes 0..31: the entries of the board of this L2, 32 / 33: mean of this L2 / of all, 48..55: the means of the eight")
        A(f"v_mul_u32_u24 v{vLo}, {gs}, v0"); A(f"v_add_u32 v{vLo}, {GLB - 48 * gs}, v{vLo}")
        A("s_bfm_b64 s[66:67], 34, 0"); A("s_bfm_b64 s[64:65], 8, 48")
        A("s_mov_b64 exec, s[66:67]"); A(f"v_lshl_add_u32 v{vLo}, v0, 3, s{sBase}")
        A("s_bfm_b64 exec, 2, 32"); A(f"v_subrev_u32 v{vLo}, {256 - 4}, v{vLo}")
        A("s_mov_b64 exec, -1")
        A(f"v_mov_b32 v{vMBc}, {MB}"); A(f"v_mov_b32 v{vB}, 0")
        C("lanes that post: the own entry; the first eight workgroups also 32 / 33, and they look after the means")
        m = sum(1 << ((4 * int(x) + 16) // 8 + 1) for x in gm[1:].split("."))
        A(f"s_lshr_b32 s18, s{sRaw}, 3")
        A(f"s_cselect_b32 s69, 0, 3")
        A(f"s_cselect_b32 s80, 0, {m & 0xffffffff:#x}"); A(f"s_cselect_b32 s81, 0, {m >> 32:#x}")
        if cw:
            A(f"s_cselect_b32 s75, {cw - 1 if cwa else -1}, {cw - 1}")
            A("s_getpc_b64 s[76:77]")
            Lb("L_pc")
            A(f"s_sub_u32 s76, s76, L_pc-{KN}"); A("s_subb_u32 s77, s77, 0")
            A(f"v_min_u32 v14, (L_end-{KN})/128, v0"); A("v_lshlrev_b32 v14, 7, v14")
            A("v_mov_b32 v15, s77"); A("v_add_co_u32 v14, vcc, s76, v14"); A("s_nop 1"); A("v_addc_co_u32 v15, vcc, 0, v15, vcc")
        A("s_lshl_b32 s68, 1, s18")
        A(f"s_movk_i32 s{sRem}, {(128 - CS) * tau}")
        A(f"s_add_u32 s{sXc}, s{sXc}, 48")
        A(f"s_bfm_b64 s[72:73], 1, s{sXc}")
        A(f"s_movk_i32 s{sJ0}, 12")
        A(f"s_mov_b32 s{sAc}, 0")
        A("s_waitcnt lgkmcnt(0)")
        A(f"s_mov_b32 s{sWS}, s16"); A(f"s_mov_b32 s{sWS+1}, s17")
        if vt == 1: A(f"s_load_dword s74, s[8:9], s{sOff}")
        if ot: A("s_load_dword s58, s[12:13], 0"); A("s_load_dword s59, s[14:15], 0")
        if cw:
            A("s_cmp_lt_i32 s75, 0"); A("s_cbranch_scc1 L_c7")
            A(f"global_load_dword v16, v[14:15], off")
            Lb("L_c7")
        if pt:
            C("the lines of the board into this L2 while the first loads are on their way")
            A("s_mov_b64 exec, s[68:69]")
            A(f"buffer_store_dword v{vB}, v{vLo}, s[{sWS}:{sWS+3}], 0 offen")
            A("s_mov_b64 exec, s[66:67]")
            A(f"buffer_load_dword v{vB}, v{vLo}, s[{sWS}:{sWS+3}], 0 offen sc1")
            A("s_mov_b64 exec, -1")
        if trace:
            A(f"s_mov_b32 s{sWS+2}, 0x1000000")
            A(f"s_lshl_b32 s60, s{sRaw}, 11"); A("s_add_u32 s60, s60, 0x200000"); A("v_mov_b32 v20, s60")
        A("s_branch L_c2")
        def leave():
            Lb("L_c6")
            A("s_barrier")
            A(f"v_mov_b32 v{vA}, 0x200")
            A(f"ds_write_b32 v{vMBc}, v{vA} offset:12")
            A("s_waitcnt lgkmcnt(0)")
            if cx == 2:
                for _ in range(5): A("s_barrier")
            A("s_endpgm")
        leave()
        Lb("L_c2")
        A("s_barrier")
        A("s_memrealtime s[18:19]")
        A(f"s_add_u32 s{sJ0}, s{sJ0}, 4")
        A(f"s_cmpk_lt_u32 s{sJ0}, {4 * CS + 16}")
        A(f"s_waitcnt vmcnt(16) lgkmcnt(0)")
        A("s_cbranch_scc1 L_c2")
        A(f"s_add_u32 s{sE}, s18, s{sRem}")
        A(f"s_sub_u32 s18, {RG}, s{sE}")
        A(f"v_add_u32 v{vD}, s18, v{vB}")
        A(f"v_cmp_gt_u32 vcc, {2 * RG}, v{vD}")
        A(f"v_subrev_u32 v{vD}, {RG}, v{vD}")
        A("s_lshr_b32 s61, vcc_hi, 16")
        A(f"v_cndmask_b32 v{vD}, 0, v{vD}, vcc")
        A(f"s_sub_u32 s{sRem}, s{sRem}, {tau}")
        A(f"v_readlane_b32 s58, v{vD}, 32"); A(f"v_readlane_b32 s59, v{vD}, 33"); A(f"v_readlane_b32 s60, v{vD}, s{sXc}")
        fill = [["s_sub_i32 s58, s58, s59", f"s_cmpk_lt_u32 s{sJ0}, {4 * GX + 16}"],
                [f"s_cselect_b32 s59, {gE * 4}, {gG * 4}", f"s_cselect_b32 s74, {k1}, {k2}"],
                ([f"s_sub_u32 s19, s{sJ0}, {4 * H0 + 16}", f"s_cmpk_lt_u32 s19, {4 * (H1 - H0)}", f"s_cselect_b32 s59, {gH * 4}, s59", f"s_cselect_b32 s74, {k3}, s74"] if H1 else []) +
                ["s_mul_i32 s58, s58, s59", f"s_add_i32 s58, s58, {bias * 32}"],
                ["s_cmpk_eq_u32 s61, 0xff"]]
        for sft, fl in zip((1, 2, 4, 8), fill):
            A(f"v_add_u32_dpp v{vD}, v{vD}, v{vD} row_ror:{sft} row_mask:0xf bank_mask:0xf")
            for x in fl: A(x)
        A(f"v_readlane_b32 s18, v{vD}, 0"); A(f"v_readlane_b32 s19, v{vD}, 16"); A(f"v_readlane_b32 s59, v{vD}, 48")
        A("s_cselect_b32 s60, s60, 0"); A("s_cselect_b32 s59, s59, 0")
        A("s_add_i32 s18, s18, s19")
        A("s_sub_i32 s58, s58, s18")
        C("a share of the lag goes on the account, whole groups are taken off it")
        A("s_mul_i32 s19, s74, s58"); A("s_ashr_i32 s19, s19, 8"); A(f"s_add_i32 s{sAc}, s{sAc}, s19")
        A(f"s_mul_i32 s62, s{sAc}, {65536 // uB + 1}"); A("s_ashr_i32 s62, s62, 16")
        A(f"s_mul_i32 s63, s{sAc}, {-(65536 // uT + 1)}"); A("s_ashr_i32 s63, s63, 16")
        A(f"s_max_i32 s62, s62, 0"); A(f"s_max_i32 s63, s63, 0")
        A(f"s_mul_i32 s19, s62, {uB}"); A(f"s_sub_i32 s{sAc}, s{sAc}, s19")
        A(f"s_mul_i32 s19, s63, {uT}"); A(f"s_add_i32 s{sAc}, s{sAc}, s19")
        A(f"s_min_i32 s62, s62, {mxB}"); A(f"s_min_i32 s63, s63, {mxT}")
        A(f"s_add_u32 s62, s62, s{sJ0}"); A(f"s_add_u32 s63, s63, s{sJ0}")
        A("s_pack_ll_b32_b16 s62, s62, s63")
        A(f"v_mov_b32 v{vA}, s62")
        A(f"ds_write_b32 v{vMBc}, v{vA} offset:12")
        if trace:
            A(f"v_mov_b32 v24, s{sE}"); A("v_mov_b32 v25, s58"); A("v_mov_b32 v26, s62"); A("v_mov_b32 v27, s18")
            A("s_mov_b64 exec, 1")
            A(f"buffer_store_dwordx4 v[24:27], v20, s[{sWS}:{sWS+3}], 0 offen")
            A("s_mov_b64 exec, -1")
            A("v_add_u32 v20, 16, v20")
        A(f"s_bitcmp1_b32 s{sJ0}, 2")
        A("s_cbranch_scc1 L_c2")
        A(f"s_cmpk_eq_u32 s{sJ0}, {4 * CE + 16}")
        A("s_cbranch_scc1 L_c6")
        C("every other round: post and look")
        A("s_ashr_i32 s59, s59, 3"); A(f"s_add_u32 s59, s59, s{sE}")
        A(f"s_add_u32 s60, s60, s{sE}")
        A("s_ashr_i32 s18, s18, 5"); A(f"s_add_u32 s18, s18, s{sE}")
        A(f"v_mov_b32 v{vP}, s{sE}"); A(f"v_writelane_b32 v{vP}, s60, 32"); A(f"v_writelane_b32 v{vP}, s59, 33")
        A(f"v_mov_b32 v{vG}, s18")
        A(f"s_lshr_b32 s19, s{sJ0}, 3"); A(f"s_lshr_b64 s[78:79], s[80:81], s19")
        A("s_mov_b64 exec, s[68:69]")
        A(f"buffer_store_dword v{vP}, v{vLo}, s[{sWS}:{sWS+3}], 0 offen")
        A("s_mov_b64 exec, s[66:67]")
        A(f"buffer_load_dword v{vB}, v{vLo}, s[{sWS}:{sWS+3}], 0 offen sc1")
        A("s_bitcmp0_b32 s78, 1")
        A("s_cbranch_scc1 L_c4")
        A("s_mov_b64 exec, s[72:73]")
        A(f"buffer_atomic_swap v{vG}, v{vLo}, s[{sWS}:{sWS+3}], 0 offen sc1")
        Lb("L_c4")
        A("s_bitcmp0_b32 s78, 0")
        A("s_cbranch_scc1 L_c5")
        A("s_mov_b64 exec, s[64:65]")
        A(f"buffer_load_dword v{vB}, v{vLo}, s[{sWS}:{sWS+3}], 0 offen sc1")
        Lb("L_c5")
        A("s_mov_b64 exec, -1")
        if cw:
            A(f"s_lshr_b32 s19, s{sJ0}, 3"); A("s_and_b32 s19, s19, s75"); A("s_cbranch_scc1 L_c2")
            A(f"global_load_dword v16, v[14:15], off {cwf.replace('none', '').replace('+', ' ')}")
        A("s_branch L_c2")

    vM8, vEps = 8, 9
    vM1, vM2, vDen, vQa = 12, 13, 14, 15
    vKb = 16
    vVb = 20
    vAd = 24
    vPa = 28
    vSn = 29
    vFl = 30
    vKP = 32; vG = 36; vX = 40; vT = 42; vY = 44; vPH = 48; vPQ = 52
    vDp = 54
    vS0 = 56
    vL4 = 57
    vZero = 58
    vMB = 59
    vL16 = 60
    vSl = 61
    vOM = 64; vK = 96; vB = 128; vA = 144; vACC = 148
    nv = 164 + nvx
    sOwn = 94
    o.append(".p2align 6")
    for _ in range(pc): A("s_nop 0")
    C("---- consumer waves")
    Lb("L_cons")
    A(f"s_load_dwordx8 s[4:11], s[0:1], 0")
    A(f"s_load_dwordx4 s[12:15], s[0:1], 32")
    A(f"s_load_dwordx2 s[16:17], s[0:1], 48")
    A("v_and_b32 v0, 63, v0")
    A("s_cmpk_eq_u32 s3, 320")
    A("s_cbranch_scc1 L_ctl")
    dma_offsets()
    A("s_lshr_b32 s3, s3, 6")
    A(f"s_sub_u32 s{sC}, s3, 1")
    A(f"s_lshr_b32 s{sHead}, s{sId}, 3")
    A(f"s_mov_b32 s{sOM+2}, 8192"); A(f"s_mov_b32 s{sOM+3}, 0x20000")
    A(f"s_mov_b32 s{sQ+2}, 16384"); A(f"s_mov_b32 s{sQ+3}, 0x20000")
    A(f"s_lshl_b32 s19, s{sHead}, 9")
    A(f"s_mov_b32 m0, {OMG}")
    A(f"s_mov_b32 s18, 4096")
    A(f"s_cmp_lg_u32 s{sC}, 0")
    A("s_waitcnt lgkmcnt(0)")
    A(f"s_mov_b32 s{sOM}, s10"); A(f"s_mov_b32 s{sOM+1}, s11")
    A(f"s_mov_b32 s{sQ}, s4"); A(f"s_mov_b32 s{sQ+1}, s5")
    A("s_cbranch_scc1 L_noom")
    for n in range(4):
        A(f"buffer_load_dwordx4 v{4+n}, s[{sOM}:{sOM+3}], 0 offen offset:{n*1024} lds")
    A(f"s_mov_b32 m0, {OMG+4096}"); A("s_nop 0")
    for n in range(4):
        A(f"buffer_load_dwordx4 v{4+n}, s[{sOM}:{sOM+3}], s18 offen offset:{n*1024} lds")
    A(f"s_mov_b32 m0, {QL}")
    A("s_bfm_b64 exec, 32, 0")
    A(f"buffer_load_dwordx4 v4, s[{sQ}:{sQ+3}], s19 offen nt lds")
    A("s_mov_b64 exec, -1")
    Lb("L_noom")
    A(f"s_lshr_b32 s{sPart}, s{sId}, 5"); A(f"s_sub_u32 s{sPart}, s{sId}, s{sPart}"); A(f"s_and_b32 s{sPart}, s{sPart}, 7")
    A(f"s_mov_b32 s{sWS}, s16"); A(f"s_mov_b32 s{sWS+1}, s17"); A(f"s_mov_b32 s{sWS+2}, {WSB}"); A(f"s_mov_b32 s{sWS+3}, 0x20000")
    A(f"s_mov_b32 s{sOUT}, s12"); A(f"s_mov_b32 s{sOUT+1}, s13"); A(f"s_mov_b32 s{sOUT+2}, 16384"); A(f"s_mov_b32 s{sOUT+3}, 0x20000")
    A(f"s_mov_b32 s{sDBG}, s14"); A(f"s_mov_b32 s{sDBG+1}, s15"); A(f"s_mov_b32 s{sDBG+2}, 256"); A(f"s_mov_b32 s{sDBG+3}, 0x20000")
    if vt == 0: A(f"s_mov_b32 s{sV}, s8"); A(f"s_mov_b32 s{sV+1}, s9"); A(f"s_mov_b32 s{sV+2}, {1<<28}"); A(f"s_mov_b32 s{sV+3}, 0x20000")
    A("v_lshrrev_b32 v5, 4, v0")
    A("v_and_b32 v1, 15, v0")
    A(f"s_lshl_b32 s93, s{sHead}, 2")
    A(f"v_lshlrev_b32 v{vL4}, 2, v0"); A(f"v_mov_b32 v{vZero}, 0"); A(f"v_mov_b32 v{vMB}, {MB}")
    A(f"s_add_u32 s67, s93, s{sC}"); A("s_lshl_b32 s67, s67, 11")
    A(f"s_lshl_b32 s68, s{sPart}, 8"); A("s_add_u32 s68, s68, s67")
    A(f"s_mul_i32 s69, s{sHead}, {HS}"); A(f"s_add_u32 s69, s69, {CTR}")
    A(f"s_lshl_b32 s63, s{sPart}, 7"); A("s_add_u32 s63, s63, s69")
    A(f"s_lshl_b32 s18, s{sC}, 7"); A(f"s_add_u32 s19, s18, s19")
    A(f"v_mov_b32 v7, {OOB:#x}"); A(f"v_lshlrev_b32 v{vL16}, 4, v0")
    A("v_and_b32 v3, 7, v0")
    A(f"v_lshlrev_b32 v{vDp}, 7, v3")
    A(f"v_mov_b32 v{vSn}, v7"); A(f"v_mov_b32 v{vSl}, v7")
    A(f"v_mov_b32 v{vS0}, v7")
    A(f"v_mov_b32 v{vM1}, -1"); A(f"v_mov_b32 v{vM2}, 0xffff0000")
    A(f"s_mov_b32 s{sOwn}, 0x01010101"); A(f"s_mov_b32 s{sOwn+1}, 0x01010101")
    A(f"v_cndmask_b32 v{vDp}, v{vDp}, v7, s[{sOwn}:{sOwn+1}]")
    C("finishing workgroup: what earlier launches left in the hand-over words")
    A(f"s_cmp_lg_u32 s{sPart}, 0"); A("s_cbranch_scc1 L_noec")
    A(f"buffer_load_dwordx4 v[{vB}:{vB+3}], v{vL16}, s[{sWS}:{sWS+3}], s67 offen {chkf}")
    A(f"buffer_load_dwordx4 v[{vB+4}:{vB+7}], v{vL16}, s[{sWS}:{sWS+3}], s67 offen offset:1024 {chkf}")
    A(f"buffer_load_dwordx2 v[{vB+8}:{vB+9}], v{vDp}, s[{sWS}:{sWS+3}], s69 offen offset:{DO} {chkf}")
    Lb("L_noec")
    A("s_bfm_b64 exec, 48, 0"); A(f"v_mov_b32 v{vM1}, v{vM2}")
    A("s_bfm_b64 exec, 32, 0"); A(f"v_mov_b32 v{vM2}, 0")
    A("s_bfm_b64 exec, 16, 0"); A(f"v_mov_b32 v{vM1}, 0"); A(f"v_mov_b32 v{vSn}, v{vL16}")
    A("s_bfm_b64 exec, 8, 0"); A(f"v_mov_b32 v{vSl}, v{vL16}")
    A("s_mov_b64 exec, -1")
    A(f"v_writelane_b32 v{vS0}, 0, 0")
    A("v_and_b32 v6, 7, v1"); A("v_lshlrev_b32 v6, 1, v6")
    A("v_xor_b32 v6, v6, v5")
    A("v_lshlrev_b32 v6, 4, v6"); A(f"v_lshl_add_u32 v{vKb}, v1, 9, v6")
    for jj in range(1, 4): A(f"v_xor_b32 v{vKb+jj}, {jj*64}, v{vKb}")
    A(f"v_lshlrev_b32 v11, 4, v5")
    A(f"v_lshl_add_u32 v{vQa}, v5, 3, v{vMB}")
    A("v_lshrrev_b32 v6, 2, v0")
    A("v_and_b32 v7, 7, v6")
    A(f"s_lshl_b32 s18, s{sC}, 2")
    A("v_xor_b32 v7, s18, v7")
    A("v_lshlrev_b32 v7, 5, v7"); A("v_lshl_add_u32 v7, v6, 9, v7")
    A("v_and_b32 v10, 3, v0"); A(f"v_lshl_add_u32 v{vVb}, v10, 3, v7")
    for t in range(1, 4): A(f"v_xor_b32 v{vVb+t}, {t*32}, v{vVb}")
    for r in range(4):
        m = (1 << r) | (1 << (20 + r)) | (1 << (40 + r)) | (1 << (60 + r))
        A(f"s_mov_b32 s{sMask+2*r}, {m & 0xffffffff:#x}"); A(f"s_mov_b32 s{sMask+2*r+1}, {m >> 32:#x}")
    A(f"s_mov_b32 s{sL2E}, {f2u(math.log2(math.e)/4):#x}")
    A(f"v_mov_b32 v{vM8}, {f2u(-0.125):#x}"); A(f"v_mov_b32 v{vEps}, {f2u(1e-6):#x}")
    for r in range(16): A(f"v_mov_b32 v{vACC+r}, 0")
    A(f"v_mov_b32 v{vDen}, 0")
    A(f"s_and_b32 s18, s{sC}, 1"); A(f"s_lshr_b32 s52, s{sC}, 1")
    A(f"s_lshl_b32 s{sRing}, s52, 14"); A("s_lshl_b32 s53, s18, 13"); A(f"s_add_u32 s{sRing}, s{sRing}, s53")
    A("s_lshl_b32 s53, s52, 8"); A("s_lshl_b32 s18, s18, 3"); A("s_add_u32 s53, s53, s18"); A(f"s_add_u32 s53, s53, {WA}")
    A(f"v_lshl_add_u32 v{vPa}, v6, 4, s53"); A(f"v_lshl_add_u32 v{vPa}, v10, 1, v{vPa}")
    for jj in range(4): A(f"v_add_u32 v{vAd+jj}, {OMG}, v{vKb+jj}")
    A(f"v_add_u32 v2, {QL}, v11")
    A(f"s_mov_b32 s{sCnt}, 32")
    A(f"s_cmp_eq_u32 s{sPart}, 0")
    A(f"s_cselect_b32 s{sEv}, {K2}, {K5}")
    A("s_cbranch_scc1 L_ecw")
    A("s_waitcnt vmcnt(0)")
    Lb("L_ecw")
    A("s_waitcnt vmcnt(3)")
    def first():
        A("s_barrier")
        for j in range(8):
            A(f"ds_read_b128 v[{vOM+j*4}:{vOM+j*4+3}], v{vAd+(j&3)} offset:{(j>>2)*256}")
        for jj in range(4): A(f"v_add_u32 v{vAd+jj}, s{sRing}, v{vKb+jj}")
    if al == 2:
        A(f"s_cmp_eq_u32 s{sC}, 2")
        A("s_cbranch_scc1 L_phi")
    first()
    A("s_cmp_eq_u32 s52, 0")
    A("s_cbranch_scc1 L_k_nb")
    if al < 2:
        A(f"s_cmp_lg_u32 s{sC}, 2")
        A("s_cbranch_scc1 L_k")

    def round4(src, dst):
        A(f"v_cvt_pk_bf16_f32 v{vT}, v{src}, v{src+1}")
        A(f"v_cvt_pk_bf16_f32 v{vT+1}, v{src+2}, v{src+3}")
        A(f"v_lshlrev_b32 v{dst}, 16, v{vT}"); A(f"v_and_b32 v{dst+1}, 0xffff0000, v{vT}")
        A(f"v_lshlrev_b32 v{dst+2}, 16, v{vT+1}"); A(f"v_and_b32 v{dst+3}, 0xffff0000, v{vT+1}")
    def phi_tail():
        round4(vY, vY)
        for r in range(4): A(f"v_mul_f32 v{vY+r}, s{sL2E}, v{vY+r}")
        for r in range(4): A(f"v_exp_f32 v{vY+r}, v{vY+r}")
        A("s_nop 0")
        round4(vY, vY)
        for r in range(4): A(f"v_fmamk_f32 v{vY+r}, v{vY+r}, 0x3e800000, v{vEps}")
        A(f"v_cvt_pk_bf16_f32 v{vPH}, v{vY}, v{vY+1}")
        A(f"v_cvt_pk_bf16_f32 v{vPH+1}, v{vY+2}, v{vY+3}")

    def phiq():
        C("phi(q), by the wave that has nothing to do in the first round")
        for j in range(8):
            A(f"ds_read_b128 v[{vK+j*4}:{vK+j*4+3}], v2 offset:{j*64}")
        A("s_waitcnt lgkmcnt(0)")
        for j in range(8):
            qr = f"v[{vK+j*4}:{vK+j*4+3}]"
            c = "0" if j == 0 else f"v[{vKP}:{vKP+3}]"
            A(f"v_mfma_f32_16x16x32_bf16 v[{vKP}:{vKP+3}], v[{vOM+j*4}:{vOM+j*4+3}], {qr}, {c}")
            c = "0" if j == 0 else f"v[{vG}:{vG+3}]"
            A(f"v_mfma_f32_16x16x32_bf16 v[{vG}:{vG+3}], {qr}, {qr}, {c}")
        A("s_nop 7")
        round4(vKP, vKP)
        A(f"v_cvt_pk_bf16_f32 v{vX}, v{vG}, v{vG}")
        A(f"v_and_b32 v{vX}, 0xffff0000, v{vX}")
        for r in range(4): A(f"v_fma_f32 v{vY+r}, v{vX}, v{vM8}, v{vKP+r}")
        phi_tail()
        A(f"ds_write_b64 v{vQa}, v[{vPH}:{vPH+1}] offset:32")
        A("s_waitcnt lgkmcnt(0)")
    if al < 2: phiq()

    C("---- K phase: weights of 16 keys per wave and pair of rounds")
    Lb("L_k")
    A("s_barrier")
    Lb("L_k_nb")
    for j in range(8):
        A(f"ds_read_b128 v[{vK+j*4}:{vK+j*4+3}], v{vAd+(j&3)} offset:{(j>>2)*256}")
    A(f"s_add_u32 s{sRing}, s{sRing}, 32768"); A(f"s_and_b32 s{sRing}, s{sRing}, 0xffff")
    for jj in range(4): A(f"v_add_u32 v{vAd+jj}, s{sRing}, v{vKb+jj}")
    for j in range(8):
        kr = f"v[{vK+j*4}:{vK+j*4+3}]"
        A(f"s_waitcnt lgkmcnt({7-j})")
        c = "0" if j == 0 else f"v[{vG}:{vG+3}]"
        A(f"v_mfma_f32_16x16x32_bf16 v[{vG}:{vG+3}], {kr}, {kr}, {c}")
        c = "0" if j == 0 else f"v[{vKP}:{vKP+3}]"
        A(f"v_mfma_f32_16x16x32_bf16 v[{vKP}:{vKP+3}], v[{vOM+j*4}:{vOM+j*4+3}], {kr}, {c}")
    A("s_barrier")
    A(f"ds_read_b64 v[{vPQ}:{vPQ+1}], v{vQa} offset:32")
    A("s_nop 7")
    A(f"v_cndmask_b32 v{vX}, 0, v{vG}, s[{sMask}:{sMask+1}]")
    for r in range(1, 4):
        A(f"v_cndmask_b32 v{vX}, v{vX}, v{vG+r}, s[{sMask+2*r}:{sMask+2*r+1}]")
    A(f"v_cvt_pk_bf16_f32 v{vX}, v{vX}, v{vX}")
    A(f"v_and_b32 v{vX}, 0xffff0000, v{vX}")
    round4(vKP, vKP)
    A("s_nop 1")
    A(f"v_mfma_f32_16x16x4_f32 v[{vY}:{vY+3}], v{vM8}, v{vX}, v[{vKP}:{vKP+3}]")
    A("s_nop 9")
    phi_tail()
    A("s_waitcnt lgkmcnt(0)")
    A(f"s_sub_u32 s{sCnt}, s{sCnt}, 1")
    A(f"v_mfma_f32_16x16x16_bf16 v[{vG}:{vG+3}], v[{vPQ}:{vPQ+1}], v[{vPH}:{vPH+1}], 0")
    A("s_nop 7")
    A(f"v_and_b32 v{vT}, v{vM1}, v{vG}")
    A(f"v_add_f32 v{vDen}, v{vDen}, v{vG}")
    A(f"v_sub_f32 v{vX}, v{vG}, v{vT}")
    A(f"v_and_b32 v{vT}, v{vM2}, v{vX}")
    A(f"v_sub_f32 v{vX}, v{vX}, v{vT}")
    A(f"ds_write_b16_d16_hi v{vPa}, v{vX}")
    A(f"v_add_u32 v{vPa}, 512, v{vPa}")
    A(f"s_cmp_eq_u32 s{sCnt}, s{sEv}")
    A("s_cbranch_scc1 L_ke")
    Lb("L_ke_ret")
    A(f"s_cmp_lg_u32 s{sCnt}, 0")
    A("s_waitcnt lgkmcnt(0)")
    A("s_cbranch_scc1 L_k")

    C("---- V phase: w^T v for 64 columns per wave")
    NQ = 62
    T4 = 2; T3 = 3
    A(f"v_lshl_add_u32 v{vPa}, v10, 6, v11"); A(f"v_add_u32 v{vPa}, {WA}, v{vPa}")
    A(f"s_lshl_b32 s18, s{sC}, 6"); A(f"v_lshl_add_u32 v2, v1, 2, s18"); A(f"v_add_u32 v2, v2, v{vMB}")
    A(f"ds_read_b128 v[{vA}:{vA+3}], v{vPa}")
    A(f"ds_write_b32 v2, v{vDen} offset:256")
    A(f"s_mov_b32 s{sRing}, 0")
    A(f"s_mov_b32 s{sCnt}, 64")
    A(f"s_cmp_eq_u32 s{sC}, 0"); A(f"s_cselect_b32 s{sEv}, {NQ}, {T3}")
    A("v_lshlrev_b32 v1, 1, v0")
    for t in range(4): A(f"v_mov_b32 v{vAd+t}, v{vVb+t}")
    A("s_cmp_lg_u32 s52, 0")
    A("s_waitcnt lgkmcnt(0)")
    A("s_cbranch_scc1 L_v_nb")
    Lb("L_v")
    A("s_barrier")
    Lb("L_v_nb")
    for t in range(4):
        A(f"ds_read_b64_tr_b16 v[{vB+t*4}:{vB+t*4+1}], v{vAd+t}")
        A(f"ds_read_b64_tr_b16 v[{vB+t*4+2}:{vB+t*4+3}], v{vAd+t} offset:8192")
    A(f"s_add_u32 s{sRing}, s{sRing}, 16384"); A(f"s_and_b32 s{sRing}, s{sRing}, 0xffff")
    A(f"v_add_u32 v{vPa}, 256, v{vPa}")
    A(f"s_sub_u32 s{sCnt}, s{sCnt}, 1")
    for t in range(4):
        A(f"s_waitcnt lgkmcnt({6-2*t})")
        a = vACC + t * 4
        A(f"v_mfma_f32_16x16x32_bf16 v[{a}:{a+3}], v[{vA}:{vA+3}], v[{vB+t*4}:{vB+t*4+3}], v[{a}:{a+3}]")
    for t in range(4): A(f"v_add_u32 v{vAd+t}, s{sRing}, v{vVb+t}")
    A(f"ds_read_b128 v[{vA}:{vA+3}], v{vPa}")
    A(f"s_cmp_eq_u32 s{sCnt}, s{sEv}")
    A("s_cbranch_scc0 L_v")
    A(f"s_cmp_lg_u32 s{sCnt}, 1")
    A("s_cbranch_scc1 L_ve")

    P = vOM; Q = P + 8
    sTg = 20
    sM1, sM2, sMode = 24, 26, 28
    S = vK
    def polls(R, masked):
        A(f"s_mov_b64 exec, s[{sM1}:{sM1+1}]")
        A(f"buffer_load_dwordx4 v[{R}:{R+3}], v{vL16}, s[{sWS}:{sWS+3}], s67 offen sc1")
        A(f"s_mov_b64 exec, s[{sM2}:{sM2+1}]" if masked else "s_mov_b64 exec, -1")
        A(f"buffer_load_dwordx4 v[{R+4}:{R+7}], v{vL16}, s[{sWS}:{sWS+3}], s67 offen offset:1024 sc1")
        if masked: A("s_mov_b64 exec, -1")
    def add1(t): A(f"v_add_f32 v{S+t}, v{vACC+4*t+1}, v{vACC+4*t+2}")
    def add2(t): A(f"v_add_f32 v{S+t}, v{S+t}, v{vACC+4*t}")
    def tag(t): A(f"v_bfi_b32 v{S+t}, 63, s{sTg+t}, v{S+t}")
    def mf(t):
        A(f"s_waitcnt lgkmcnt({3 - t})")
        a = vACC + t * 4
        A(f"v_mfma_f32_16x16x32_bf16 v[{a}:{a+3}], v[{vA}:{vA+3}], v[{vB+t*4}:{vB+t*4+3}], v[{a}:{a+3}]")
    C("---- the last round, in two halves; add the parts, hand over / collect")
    polls(P, 1)
    A("s_barrier")
    for t in range(4): A(f"ds_read_b64_tr_b16 v[{vB+t*4}:{vB+t*4+1}], v{vAd+t}")
    A(f"s_cmp_lg_u32 s{sMode}, 0")
    A("s_barrier")
    for t in range(4): A(f"ds_read_b64_tr_b16 v[{vB+t*4+2}:{vB+t*4+3}], v{vAd+t} offset:8192")
    if qe: polls(Q, 1)
    mf(0); A("s_nop 1"); mf(1); A("s_nop 1"); mf(2); add1(0); add2(0); mf(3)
    if stamp: A("s_memrealtime s[72:73]")
    add1(1); add2(1); tag(0); tag(1); add1(2); add2(2); tag(2)
    A("s_cbranch_scc1 L_other")
    def out_prod(fl):
        A(f"buffer_store_dwordx4 v[{S}:{S+3}], v{vSn}, s[{sWS}:{sWS+3}], s68 offen{fl}")
        if stamp:
            A("s_mov_b32 s76, 0"); A("s_mov_b32 s78, 0"); A("s_mov_b32 s80, 0")
            A("s_branch L_fin")
        else:
            A("s_endpgm")
    add1(3); add2(3); tag(3)
    out_prod("")
    Lb("L_far")
    out_prod(" " + stf)
    Lb("L_other")
    if not qe: polls(Q, 1)
    add1(3); A(f"s_cmp_lg_u32 s{sPart}, 0"); add2(3); tag(3)
    A("s_cbranch_scc1 L_far")
    if stamp:
        A("s_memrealtime s[78:79]"); A("s_mov_b32 s76, 0")
    A("s_mov_b64 exec, 0xffff")
    for R in (P, Q):
        for h in (0, 2): A(f"v_pk_mov_b32 v[{R+h}:{R+h+1}], v[{S+h}:{S+h+1}], v[{S+h}:{S+h+1}] op_sel:[0,1]")
    A("s_mov_b64 exec, -1")
    X = S + 4
    Lb("L_chk")
    for R, nm in ((P, "L_f1"), (Q, "L_f2")):
        if stamp: A("s_add_u32 s76, s76, 1")
        A(f"s_waitcnt vmcnt(2)")
        A(f"v_pk_add_f32 v[{S+8}:{S+9}], v[{R}:{R+1}], v[{R+4}:{R+5}]")
        A(f"v_pk_add_f32 v[{S+10}:{S+11}], v[{R+2}:{R+3}], v[{R+6}:{R+7}]")
        A(f"v_bitop3_b32 v{X}, v{R}, v{R+4}, s{sTg} bitop3:0x7e")
        A(f"v_bitop3_b32 v{X+1}, v{R+1}, v{R+5}, s{sTg+1} bitop3:0x7e")
        A(f"v_permlane32_swap_b32 v{S+8}, v{S+10}")
        A(f"v_permlane32_swap_b32 v{S+9}, v{S+11}")
        A(f"v_pk_add_f32 v[{S+8}:{S+9}], v[{S+8}:{S+9}], v[{S+10}:{S+11}]")
        A(f"v_bitop3_b32 v{X+2}, v{R+2}, v{R+6}, s{sTg+2} bitop3:0x7e")
        A(f"v_bitop3_b32 v{X+3}, v{R+3}, v{R+7}, s{sTg+3} bitop3:0x7e")
        A(f"v_permlane16_swap_b32 v{S+8}, v{S+9}")
        A(f"v_or3_b32 v{X}, v{X}, v{X+1}, v{X+2}")
        A(f"v_add_f32 v{S+8}, v{S+8}, v{S+9}")
        A(f"v_bitop3_b32 v{X}, v{X}, v{X+3}, 63 bitop3:0xa8")
        A(f"v_cvt_pk_bf16_f32 v{S+8}, 0, v{S+8}")
        A(f"v_cmp_ne_u32 vcc, 0, v{X}")
        A(f"v_mul_f32 v{S+8}, v{S+8}, v{vFl+1}")
        A(f"v_cvt_pk_bf16_f32 v{S+8}, v{S+8}, v{S+8}")
        A(f"s_cbranch_vccnz {nm}")
        if stamp: A("s_memrealtime s[80:81]")
        A(f"buffer_store_short v{S+8}, v1, s[{sOUT}:{sOUT+3}], s19 offen")
        A("s_branch L_fin" if stamp else "s_endpgm")
        Lb(nm)
        polls(R, 0)
    A("s_sub_u32 s53, s53, 1")
    A("s_cbranch_scc0 L_chk")
    A("s_endpgm")

    for _ in range(pk): A("s_nop 0")
    def page2():
        C("---- second page of code: entered at its start by the steering wave")
        o.append(".p2align 12")
        steering()
        Lb("L_phi"); first(); phiq(); A("s_branch L_k")
        return len(o)
    if al == 2 and not ev1: mark = page2()
    C("---- V phase events")
    Lb("L_ve")
    A(f"s_cmp_gt_u32 s{sCnt}, {T3}"); A("s_cbranch_scc1 L_ve_0")
    A(f"s_sub_u32 s{sEv}, s{sEv}, 1")
    A(f"s_cmp_eq_u32 s{sCnt}, {T4}"); A("s_cbranch_scc1 L_ve_t4")
    A(f"ds_read_b64 v[{vFl}:{vFl+1}], v{vMB}")
    Lb("L_ve_ret")
    A("s_waitcnt lgkmcnt(0)")
    A("s_branch L_v")
    Lb("L_ve_t4")
    A(f"v_readfirstlane_b32 s{sTg}, v{vFl}")
    A("s_getreg_b32 s18, hwreg(HW_REG_XCC_ID, 0, 4)")
    A(f"s_mov_b32 s53, {1<<20}")
    A(f"s_bfe_u32 s{sMode}, s{sTg}, 0x40018")
    A(f"s_xor_b32 s{sMode}, s{sMode}, s18")
    if force: A(f"s_mov_b32 s{sMode}, 1")
    for t in range(1, 4): A(f"s_lshr_b32 s{sTg+t}, s{sTg}, {6*t}")
    A(f"s_cmp_eq_u32 s{sPart}, 0")
    A(f"s_cselect_b32 s{sMode}, 1, s{sMode}")
    A(f"s_cselect_b64 s[{sM2}:{sM2+1}], -1, 0")
    A(f"s_lshl_b64 s[{sM1}:{sM1+1}], s[{sM2}:{sM2+1}], 16")
    A("s_cbranch_scc0 L_v")
    polls(P, 0)
    A("s_branch L_v")
    if al == 2 and ev1: mark = page2()
    Lb("L_ve_0")
    A(f"s_cmp_eq_u32 s{sCnt}, {NQ}"); A("s_cbranch_scc1 L_ve_q")
    A(f"s_cmp_eq_u32 s{sCnt}, {ND}"); A("s_cbranch_scc0 L_ve_d")
    D = 4
    A(f"s_mov_b32 s{sEv}, {ND - 3}")
    A(f"buffer_load_dwordx2 v[{D}:{D+1}], v{vDp}, s[{sWS}:{sWS+3}], s69 offen offset:{DO} sc1 nt")
    A("s_branch L_ve_ret")
    C("finishing workgroup: the dens of the others")
    Lb("L_ve_d")
    A(f"s_mov_b32 s{sEv}, {T3}")
    A(f"s_mov_b32 s53, {1<<20}")
    Lb("L_dn")
    A("s_waitcnt vmcnt(0)")
    A(f"v_cmp_ne_u32 vcc, s{sT}, v{D+1}")
    A(f"v_cndmask_b32 v6, v{D}, v{vDen}, s[{sOwn}:{sOwn+1}]")
    A(f"s_andn2_b64 vcc, vcc, s[{sOwn}:{sOwn+1}]")
    A("s_cbranch_scc0 L_dn_ok")
    A(f"buffer_load_dwordx2 v[{D}:{D+1}], v{vDp}, s[{sWS}:{sWS+3}], s69 offen offset:{DO} {ldf}")
    A("s_sub_u32 s53, s53, 1")
    A("s_cbranch_scc0 L_dn")
    A("s_waitcnt vmcnt(0)")
    A(f"v_mov_b32 v6, -1")
    A("s_nop 1")
    Lb("L_dn_ok")
    A(f"v_add_f32_dpp v6, v6, v6 quad_perm:[1,0,3,2] row_mask:0xf bank_mask:0xf"); A("s_nop 1")
    A(f"v_add_f32_dpp v6, v6, v6 quad_perm:[2,3,0,1] row_mask:0xf bank_mask:0xf"); A("s_nop 1")
    A(f"v_add_f32_dpp v6, v6, v6 row_half_mirror row_mask:0xf bank_mask:0xf")
    A(f"v_cvt_pk_bf16_f32 v6, v6, v6"); A(f"v_and_b32 v6, 0xffff0000, v6")
    A(f"v_add_f32 v6, v6, v{vEps}")
    A(f"v_cvt_pk_bf16_f32 v6, v6, v6"); A(f"v_and_b32 v6, 0xffff0000, v6")
    A(f"v_rcp_f32 v7, v6")
    A("s_nop 0")
    A(f"ds_write_b32 v{vMB}, v7 offset:4")
    A("s_branch L_ve_ret")

    C("wave c=0 takes over the epoch word and hands the den of this workgroup over")
    Lb("L_ve_q")
    A(f"v_add_u32 v2, v{vL4}, v{vMB}")
    A(f"ds_read_b32 v{vDen}, v2 offset:256")
    A(f"s_mov_b32 s53, {1<<20}")
    Lb("L_ep")
    A("s_waitcnt vmcnt(0)")
    A(f"v_readfirstlane_b32 s{sT}, v{vFl}")
    A(f"s_cmp_lg_u32 s{sT}, 0")
    A("s_cbranch_scc1 L_ep_ok")
    A(f"buffer_load_dword v{vFl}, v{vS0}, s[{sDBG}:{sDBG+3}], s93 offen sc1")
    A("s_sub_u32 s53, s53, 1")
    A("s_cbranch_scc0 L_ep")
    A("s_waitcnt vmcnt(0)")
    Lb("L_ep_ok")
    A(f"v_mov_b32 v5, s{sT}"); A("v_mov_b32 v6, 0"); A("v_mov_b32 v7, 0")
    A(f"ds_write_b32 v{vMB}, v5")
    A(f"s_cmp_eq_u32 s{sPart}, 0"); A(f"s_cselect_b32 s{sEv}, {ND}, {T3}")
    A("s_getreg_b32 s18, hwreg(HW_REG_XCC_ID, 0, 4)")
    A(f"s_bfe_u32 s{sFar}, s{sT}, 0x40018")
    A("s_waitcnt lgkmcnt(0)")
    for sft in (1, 2, 4, 8):
        A(f"v_add_f32_dpp v{vDen}, v{vDen}, v{vDen} row_ror:{sft} row_mask:0xf bank_mask:0xf")
        A("s_nop 1")
    for sw in (32, 16):
        A(f"v_mov_b32 v2, v{vDen}"); A("s_nop 1")
        A(f"v_permlane{sw}_swap_b32 v2, v{vDen}")
        A(f"v_add_f32 v{vDen}, v{vDen}, v2")
    A(f"s_cmp_eq_u32 s{sPart}, 0")
    A("s_cbranch_scc1 L_ve_ret")
    A(f"v_mov_b32 v4, v{vDen}")
    A(f"s_cmp_lg_u32 s{sFar}, s18")
    if force: A("s_cmp_eq_u32 0, 0")
    A("s_cbranch_scc1 L_dfar")
    A(f"buffer_store_dwordx4 v[4:7], v{vSl}, s[{sWS}:{sWS+3}], s63 offen offset:{DO}")
    A("s_branch L_ve_ret")
    Lb("L_dfar")
    A(f"buffer_store_dwordx4 v[4:7], v{vSl}, s[{sWS}:{sWS+3}], s63 offen offset:{DO} {stf}")
    A("s_branch L_ve_ret")

    markk = len(o)
    C("---- K phase events: the finishing workgroup picks an epoch no old granule carries and announces it")
    Lb("L_ke")
    for n, nm in ((K3, "3"), (K4, "4"), (K5, "5")):
        A(f"s_cmp_eq_u32 s{sCnt}, {n}"); A(f"s_cbranch_scc1 L_ke{nm}")
    A(f"s_mov_b32 s{sEv}, {K3}")
    A("s_waitcnt vmcnt(0)")
    A(f"v_readlane_b32 s{sT}, v{vB+9}, 1")
    A("s_getreg_b32 s18, hwreg(HW_REG_XCC_ID, 0, 4)")
    A(f"s_add_u32 s{sT}, s{sT}, 1"); A(f"s_and_b32 s{sT}, s{sT}, 0xffffff"); A(f"s_bitset1_b32 s{sT}, 31")
    A("s_lshl_b32 s18, s18, 24"); A(f"s_or_b32 s{sT}, s{sT}, s18")
    for h in range(2):
        g = vB + 4 * h
        A(f"v_xor_b32 v3, s{sT}, v{g}")
        for j in range(1, 4):
            A(f"s_lshr_b32 s18, s{sT}, {6*j}")
            A(f"v_bitop3_b32 v3, v{g+j}, v3, s18 bitop3:0xde")
        A("v_and_b32 v3, 63, v3")
        A("v_cmp_eq_u32 vcc, 0, v3")
        A(f"v_xor_b32 v{g}, 1, v{g}")
        A(f"s_cbranch_vccz L_kc{h}")
        A("s_mov_b64 exec, vcc")
        A(f"buffer_store_dword v{g}, v{vL16}, s[{sWS}:{sWS+3}], s67 offen offset:{1024*h} {stf}")
        A("s_mov_b64 exec, -1")
        Lb(f"L_kc{h}")
    A(f"v_cmp_eq_u32 vcc, s{sT}, v{vB+9}")
    A(f"s_cbranch_vccz L_ke_ret")
    A("s_mov_b64 exec, vcc")
    A(f"buffer_store_dword v{vZero}, v{vDp}, s[{sWS}:{sWS+3}], s69 offen offset:{DO+4} {stf}")
    A("s_mov_b64 exec, -1")
    A("s_branch L_ke_ret")
    Lb("L_ke3")
    A(f"s_mov_b32 s{sEv}, {K4}")
    A("s_waitcnt vmcnt(0)")
    A("s_branch L_ke_ret")
    Lb("L_ke4")
    A(f"s_mov_b32 s{sEv}, {K5}")
    A(f"s_cmp_lg_u32 s{sC}, 0")
    A("s_cbranch_scc1 L_ke_ret")
    A(f"v_mov_b32 v5, s{sT}")
    A(f"buffer_atomic_swap v5, v{vS0}, s[{sDBG}:{sDBG+3}], s93 offen sc1")
    A("s_branch L_ke_ret")
    Lb("L_ke5")
    A(f"s_cmp_lg_u32 s{sC}, 0")
    A("s_cbranch_scc1 L_ke_ret")
    if vt == 0: A(f"buffer_load_dword v3, v{vS0}, s[{sV}:{sV+3}], s{sOff} offen nt")
    A(f"buffer_load_dword v{vFl}, v{vS0}, s[{sDBG}:{sDBG+3}], s93 offen")
    A("s_branch L_ke_ret")

    for _ in range(pz): A("s_nop 0")
    if al < 2: steering()
    else: o[mark:] = o[markk:] + o[mark:markk]

    if stamp:
        Lb("L_fin")
        A("s_waitcnt vmcnt(0)")
        A("s_memrealtime s[74:75]")
        A("s_getreg_b32 s82, hwreg(HW_REG_XCC_ID)")
        A("s_getreg_b32 s83, hwreg(HW_REG_HW_ID)")
        A("s_waitcnt lgkmcnt(0)")
        A(f"s_mul_i32 s19, s{sId}, 5"); A("s_add_u32 s19, s19, s3"); A("s_lshl_b32 s19, s19, 5"); A("s_add_u32 s19, s19, 0x100000")
        A("v_mov_b32 v2, s19")
        A("v_mov_b32 v4, s70"); A("v_mov_b32 v5, s76"); A("v_mov_b32 v6, s72"); A("v_mov_b32 v7, s82")
        A("v_mov_b32 v8, s83"); A("v_mov_b32 v9, s78"); A("v_mov_b32 v10, s80"); A("v_mov_b32 v11, s74")
        A("s_mov_b64 exec, 1")
        A("global_store_dwordx4 v2, v[4:7], s[16:17]")
        A("global_store_dwordx4 v2, v[8:11], s[16:17] offset:16")
        A("s_waitcnt vmcnt(0)")
    for _ in range(pe): A("s_nop 0")
    Lb("L_end")
    A("s_endpgm")
    o.append('.section .rodata,"a"'); o.append(".p2align 6"); o.append(f".amdhsa_kernel {KN}")
    A(f".amdhsa_next_free_vgpr {nv}"); A(".amdhsa_next_free_sgpr 100"); A(f".amdhsa_accum_offset {nv}")
    A(".amdhsa_group_segment_fixed_size 0"); A(".amdhsa_kernarg_size 56"); A(".amdhsa_user_sgpr_count 2")
    A(".amdhsa_user_sgpr_kernarg_segment_ptr 1"); A(".amdhsa_system_sgpr_workgroup_id_x 1")
    A(".amdhsa_float_denorm_mode_32 3")
    o.append(".end_amdhsa_kernel")
    return "\n".join(o) + "\n"

if __name__ == "__main__":
    out = sys.argv[1]
    kw = {}
    for kv in sys.argv[2:]:
        k, v = kv.split("=")
        kw[k] = int(v) if v.lstrip("-").isdigit() else v
    open(out, "w").write(gen(**kw))
```

```python
import sys, struct, math
KN = "standalone__linear_kernel_rfa__decode_kernel"
def f2u(x): return struct.unpack("<I", struct.pack("<f", x))[0]

HEADER = """; Kernarg layout for this problem (56 bytes, ptrs only, base s[0:1]):
"""

def gen(W=22, WB=32, WT=16, ND=56, jo="x30142675", K2=25, K3=23, K4=21, K5=6,
        CS=12, CE=122, tau=53, bias=-2, gG=3, gE=12, mxB=4, mxT=3, RG=2048, GX=100, k1=8, k2=64, uB=110, uT=128,
        gm="x16.48.80.96.110", gs=256, qe=0, sts=0, st=1, pad=0, pt=1, vt=1, pk=0, pc=0, nvx=0, cw=0, cx=1, pe=0, pz=0, al=2, ot=0, ev1=0, xo="", xd=0, gnt="", cwf="none", cwa=0, H0=46, H1=72, kx=0, ky=0, hz=0, k3=32, gH=4, stamp=0, prio=3, force=0, trace=0):
    NWG = 256
    stf = ldf = "sc1"; chkf = "sc1 nt"
    o = []
    A = lambda s: o.append("  " + s)
    Lb = lambda s: o.append(s + ":")
    C = lambda s: o.append("; " + s)
    WA = 65536
    OMG = WA + 16384
    QL = OMG + 8192
    MB = QL + 512
    lds = QL + 1024
    o.append(HEADER.rstrip("\n"))
    o.append(f"; @launch grid=({NWG},1,1) block=(384,1,1) lds={lds}")
    o.append('.amdgcn_target "amdgcn-amd-amdhsa--gfx950"')
    o.append(".text"); o.append(f".globl {KN}"); o.extend([".p2align 12"] if al == 1 else []); o.append(".p2align 8"); o.append(f".type {KN},@function"); Lb(KN)

    sK, sV, sOM, sQ, sOUT, sWS, sDBG = 20, 24, 28, 32, 36, 40, 44
    sOff, sRing, sCnt = 48, 49, 50
    sT = 51
    sMask, sL2E = 54, 62
    sHead, sPart, sC = 64, 65, 66
    sEv, sFar = 84, 85
    sRaw, sId = 2, 90
    GRP = 2048
    CTR = 128 * GRP
    HS = 8448
    BRD = CTR + 32 * HS
    GLB = BRD + 16 * HS
    WSB = GLB + 16 * gs + xd * 0x100000
    DO = 1024
    OOB = 0x7ff00000

    sJ, sBE, sTE, sR, sX, sTab = 50, 51, 52, 53, 54, 56
    A(f"s_load_dwordx2 s[{sK}:{sK+1}], s[0:1], 8")
    if stamp or hz: A("s_memrealtime s[70:71]")
    A("v_readfirstlane_b32 s3, v0")
    A(f"s_lshr_b32 s18, s2, 8")
    A("s_cbranch_scc1 L_end")
    C("head = low five bits of the id rotated right by one, part = the upper three")
    A("s_and_b32 s18, s2, 31"); A("s_mul_i32 s18, s18, 33"); A("s_bfe_u32 s18, s18, 0x50001")
    A(f"s_lshr_b32 s{sId}, s2, 5"); A(f"s_lshl3_add_u32 s{sId}, s18, s{sId}")
    A(f"s_lshl_b32 s{sOff}, s{sId}, 20")
    A("s_cmp_lg_u32 s3, 0")
    A("s_cbranch_scc1 L_cons")
    def dma_offsets():
        A("v_and_b32 v1, 32, v0")
        A("v_lshlrev_b32 v4, 4, v0")
        A("v_xor_b32 v4, v4, v1")
        A("v_xor_b32 v5, 64, v4")
        A("v_xor_b32 v6, 0x80, v4")
        A("v_xor_b32 v7, 64, v6")

    C("---- loader wave: 4 KiB groups, a barrier after every fourth")
    assert WB <= 32
    cols = [1 << int(ch, 16) for ch in jo[1:]]
    assert len(cols) == 8
    T = []; acc = 0
    for c in cols: acc ^= c; T.append(acc)
    T.append(acc)
    movk = lambda r, v: A(f"s_mov_b32 s{r}, {v}" if v <= 64 else f"s_movk_i32 s{r}, {v}")
    dma_offsets()
    A(f"s_brev_b32 s{sK+2}, 8"); A(f"s_lshl_b32 s{sK+3}, 1, 17")
    A(f"s_mov_b32 m0, 0")
    for x in (xo[1:].split(".") if xo else []):
        A(f"s_bfe_i32 s18, s{sId}, {int(x[0]) | 0x10000:#x}")
        A(f"s_and_b32 s18, s18, {sum(1 << (12 + int(ch)) for ch in x[1:]):#x}"); A(f"s_xor_b32 s{sOff}, s{sOff}, s18")
    def loads():
        for n in range(4):
            A(f"buffer_load_dwordx4 v{4+n}, s[{sK}:{sK+3}], s{sOff} offen offset:{n*1024} nt lds")
    if st == 2:
        A("s_waitcnt lgkmcnt(0)")
        loads()
    A(f"s_mov_b64 s[{sJ}:{sJ+1}], 0"); A(f"s_mov_b32 s{sTE}, 0")
    A(f"s_lshr_b32 s{sX}, s{sOff}, 12")
    for k in range(4): movk(sTab + k, T[k])
    A("s_mov_b32 s55, 7")
    A(f"v_mov_b32 v9, {MB}")
    A("s_branch L_st" if st == 2 else "s_branch L_w")
    for _ in range(pad): A("s_nop 0")
    Lb("L_ld")
    A(f"s_cmp_lt_u32 s{sJ}, s{sTE}")
    A("s_cbranch_scc0 L_nt")
    A(f"s_waitcnt vmcnt({WT-4})")
    Lb("L_nt")
    A(f"s_cmp_lt_u32 s{sJ}, s{sBE}")
    A("s_cbranch_scc1 L_w")
    A(f"s_waitcnt vmcnt({W-4})")
    Lb("L_w")
    A(f"s_waitcnt vmcnt({WB-4}) lgkmcnt(0)")
    loads()
    Lb("L_st")
    A(f"ds_read_b32 v8, v9 offset:12")
    A(f"s_add_u32 s{sJ}, s{sJ}, 1")
    A(f"s_ff1_i32_b32 m0, s{sJ}")
    A(f"s_lshl_b32 s18, s{sJ}, 12")
    A(f"s_movrels_b32 s19, s{sTab}")
    A(f"s_and_b32 m0, s18, 0xffff")
    A(f"s_xor_b32 s{sX}, s{sX}, s19")
    A(f"s_lshl_b32 s{sOff}, s{sX}, 12")
    A(f"s_and_b32 s18, s{sJ}, s55")
    A("s_cbranch_scc1 L_ld")
    A(f"s_load_dwordx2 s[8:9], s[0:1], 16")
    if stamp: A(f"s_load_dwordx2 s[16:17], s[0:1], 48")
    A(f"s_cmp_lt_u32 s{sJ}, 12")
    A("s_cbranch_scc1 L_in2")
    A(f"v_readfirstlane_b32 s{sR}, v8")
    if hz:
        A(f"s_cmpk_lg_u32 s{sJ}, {hz}"); A("s_cbranch_scc1 L_z1"); A("s_memrealtime s[86:87]"); Lb("L_z1")
        A(f"s_cmpk_lg_u32 s{sJ}, {hz + 40}"); A("s_cbranch_scc1 L_z2"); A("s_memrealtime s[88:89]"); Lb("L_z2")
    if sts > 3:
        A(f"s_cmp_lg_u32 s{sJ}, {sts}"); A("s_cbranch_scc1 L_s1")
        A("s_memrealtime s[86:87]"); A("s_barrier"); A("s_memrealtime s[88:89]"); A("s_branch L_s2")
        Lb("L_s1")
    A("s_barrier")
    if sts > 3: Lb("L_s2")
    A(f"s_and_b32 s{sBE}, s{sR}, 0xffff")
    A(f"s_lshr_b32 s{sTE}, s{sR}, 16")
    A(f"s_and_b32 s18, s{sJ}, 0xff")
    A("s_cbranch_scc1 L_ld")
    A(f"s_mov_b32 s{sK}, s8"); A(f"s_mov_b32 s{sK+1}, s9")
    if stamp:
        A(f"s_cmpk_lg_u32 s{sJ}, 256"); A("s_cbranch_scc1 L_nk"); A("s_memrealtime s[76:77]"); Lb("L_nk")
    A(f"s_cmpk_lg_u32 s{sJ}, 512")
    A("s_cbranch_scc1 L_ld")
    if stamp: A("s_memrealtime s[78:79]")
    for i, n in enumerate((16, 8, 0)):
        A(f"s_waitcnt vmcnt({n})")
        if sts == i + 1: A("s_memrealtime s[86:87]")
        A("s_barrier")
        if sts == i + 1: A("s_memrealtime s[88:89]")
    if stamp:
        A("s_memrealtime s[72:73]")
        if sts: A("s_waitcnt lgkmcnt(0)"); A("s_mov_b32 s78, s86"); A("s_mov_b32 s80, s88")
        A("s_branch L_fin")
    else:
        if hz:
            A(f"s_cmp_lg_u32 s{sRaw}, 100"); A("s_cbranch_scc1 L_end")
            A("s_sub_u32 s30, s88, s86"); A("s_sub_u32 s30, s30, 500"); A("s_mul_i32 s30, s30, 20"); A("s_max_i32 s30, s30, 0"); A("s_min_i32 s30, s30, 20000"); A("s_add_u32 s30, s30, 10000")
            Lb("L_h3")
            A("s_memrealtime s[72:73]"); A("s_waitcnt lgkmcnt(0)")
            A("s_sub_u32 s72, s72, s70"); A("s_cmp_lt_i32 s72, s30"); A("s_cbranch_scc1 L_h3")
        A("s_endpgm")
    Lb("L_in2")
    for k in range(4, 9): movk(sTab + k, T[k])
    A("s_mov_b32 s55, 3")
    A("v_mov_b32 v10, 0")
    A("ds_write_b32 v9, v10 offset:12")
    if prio: A(f"s_setprio {prio}")
    if stamp: A("s_mov_b32 s80, 0")
    A("s_branch L_ld")

    def steering():
        C("---- steering wave: every workgroup posts the time at which it would finish at the nominal rate; who is")
        C("     behind the others gets a wider window of loads for a few groups, who is ahead a narrower one")
        vB, vD, vLo, vG, vA, vMBc, vP = 2, 3, 4, 7, 8, 9, 10
        sB, sRem, sE, sXc, sJ0, sAc, sBase = 50, 51, 52, 54, 55, 56, 57
        assert CS % 2 == 0 and CE == 122
        Lb("L_ctl")
        A(f"s_getreg_b32 s{sXc}, hwreg(HW_REG_XCC_ID, 0, 4)")
        A(f"s_mov_b32 s{sWS+2}, {WSB}"); A(f"s_mov_b32 s{sWS+3}, 0x20000")
        A(f"s_mul_i32 s{sBase}, s{sXc}, {HS}"); A(f"s_add_u32 s{sBase}, s{sBase}, {BRD}")
        C("lanes 0..31: the entries of the board of this L2, 32 / 33: mean of this L2 / of all, 48..55: the means of the eight")
        A(f"v_mul_u32_u24 v{vLo}, {gs}, v0"); A(f"v_add_u32 v{vLo}, {GLB - 48 * gs}, v{vLo}")
        A("s_bfm_b64 s[66:67], 34, 0"); A("s_bfm_b64 s[64:65], 8, 48")
        A("s_mov_b64 exec, s[66:67]"); A(f"v_lshl_add_u32 v{vLo}, v0, 3, s{sBase}")
        A("s_bfm_b64 exec, 2, 32"); A(f"v_subrev_u32 v{vLo}, {256 - 4}, v{vLo}")
        A("s_mov_b64 exec, -1")
        A(f"v_mov_b32 v{vMBc}, {MB}"); A(f"v_mov_b32 v{vB}, 0")
        C("lanes that post: the own entry; the first eight workgroups also 32 / 33, and they look after the means")
        m = sum(1 << ((4 * int(x) + 16) // 8 + 1) for x in gm[1:].split("."))
        A(f"s_lshr_b32 s18, s{sRaw}, 3")
        A(f"s_cselect_b32 s69, 0, 3")
        A(f"s_cselect_b32 s80, 0, {m & 0xffffffff:#x}"); A(f"s_cselect_b32 s81, 0, {m >> 32:#x}")
        if cw:
            A(f"s_cselect_b32 s75, {cw - 1 if cwa else -1}, {cw - 1}")
            A("s_getpc_b64 s[76:77]")
            Lb("L_pc")
            A(f"s_sub_u32 s76, s76, L_pc-{KN}"); A("s_subb_u32 s77, s77, 0")
            A(f"v_min_u32 v14, (L_end-{KN})/128, v0"); A("v_lshlrev_b32 v14, 7, v14")
            A("v_mov_b32 v15, s77"); A("v_add_co_u32 v14, vcc, s76, v14"); A("s_nop 1"); A("v_addc_co_u32 v15, vcc, 0, v15, vcc")
        A("s_lshl_b32 s68, 1, s18")
        A(f"s_movk_i32 s{sRem}, {(128 - CS) * tau}")
        A(f"s_add_u32 s{sXc}, s{sXc}, 48")
        A(f"s_bfm_b64 s[72:73], 1, s{sXc}")
        A(f"s_movk_i32 s{sJ0}, 12")
        A(f"s_mov_b32 s{sAc}, 0")
        A("s_waitcnt lgkmcnt(0)")
        A(f"s_mov_b32 s{sWS}, s16"); A(f"s_mov_b32 s{sWS+1}, s17")
        if vt == 1: A(f"s_load_dword s74, s[8:9], s{sOff}")
        if ot: A("s_load_dword s58, s[12:13], 0"); A("s_load_dword s59, s[14:15], 0")
        if cw:
            A("s_cmp_lt_i32 s75, 0"); A("s_cbranch_scc1 L_c7")
            A(f"global_load_dword v16, v[14:15], off")
            Lb("L_c7")
        if pt:
            C("the lines of the board into this L2 while the first loads are on their way")
            A("s_mov_b64 exec, s[68:69]")
            A(f"buffer_store_dword v{vB}, v{vLo}, s[{sWS}:{sWS+3}], 0 offen")
            A("s_mov_b64 exec, s[66:67]")
            A(f"buffer_load_dword v{vB}, v{vLo}, s[{sWS}:{sWS+3}], 0 offen sc1")
            A("s_mov_b64 exec, -1")
        if trace:
            A(f"s_mov_b32 s{sWS+2}, 0x1000000")
            A(f"s_lshl_b32 s60, s{sRaw}, 11"); A("s_add_u32 s60, s60, 0x200000"); A("v_mov_b32 v20, s60")
        A("s_branch L_c2")
        def leave():
            Lb("L_c6")
            A("s_barrier")
            A(f"v_mov_b32 v{vA}, 0x200")
            A(f"ds_write_b32 v{vMBc}, v{vA} offset:12")
            A("s_waitcnt lgkmcnt(0)")
            if cx == 2:
                for _ in range(5): A("s_barrier")
            A("s_endpgm")
        leave()
        Lb("L_c2")
        A("s_barrier")
        A("s_memrealtime s[18:19]")
        A(f"s_add_u32 s{sJ0}, s{sJ0}, 4")
        A(f"s_cmpk_lt_u32 s{sJ0}, {4 * CS + 16}")
        A(f"s_waitcnt vmcnt(16) lgkmcnt(0)")
        A("s_cbranch_scc1 L_c2")
        A(f"s_add_u32 s{sE}, s18, s{sRem}")
        A(f"s_sub_u32 s18, {RG}, s{sE}")
        A(f"v_add_u32 v{vD}, s18, v{vB}")
        A(f"v_cmp_gt_u32 vcc, {2 * RG}, v{vD}")
        A(f"v_subrev_u32 v{vD}, {RG}, v{vD}")
        A("s_lshr_b32 s61, vcc_hi, 16")
        A(f"v_cndmask_b32 v{vD}, 0, v{vD}, vcc")
        A(f"s_sub_u32 s{sRem}, s{sRem}, {tau}")
        A(f"v_readlane_b32 s58, v{vD}, 32"); A(f"v_readlane_b32 s59, v{vD}, 33"); A(f"v_readlane_b32 s60, v{vD}, s{sXc}")
        fill = [["s_sub_i32 s58, s58, s59", f"s_cmpk_lt_u32 s{sJ0}, {4 * GX + 16}"],
                [f"s_cselect_b32 s59, {gE * 4}, {gG * 4}", f"s_cselect_b32 s74, {k1}, {k2}"],
                ([f"s_sub_u32 s19, s{sJ0}, {4 * H0 + 16}", f"s_cmpk_lt_u32 s19, {4 * (H1 - H0)}", f"s_cselect_b32 s59, {gH * 4}, s59", f"s_cselect_b32 s74, {k3}, s74"] if H1 else []) +
                ["s_mul_i32 s58, s58, s59", f"s_add_i32 s58, s58, {bias * 32}"],
                ["s_cmpk_eq_u32 s61, 0xff"]]
        for sft, fl in zip((1, 2, 4, 8), fill):
            A(f"v_add_u32_dpp v{vD}, v{vD}, v{vD} row_ror:{sft} row_mask:0xf bank_mask:0xf")
            for x in fl: A(x)
        A(f"v_readlane_b32 s18, v{vD}, 0"); A(f"v_readlane_b32 s19, v{vD}, 16"); A(f"v_readlane_b32 s59, v{vD}, 48")
        A("s_cselect_b32 s60, s60, 0"); A("s_cselect_b32 s59, s59, 0")
        A("s_add_i32 s18, s18, s19")
        A("s_sub_i32 s58, s58, s18")
        C("a share of the lag goes on the account, whole groups are taken off it")
        A("s_mul_i32 s19, s74, s58"); A("s_ashr_i32 s19, s19, 8"); A(f"s_add_i32 s{sAc}, s{sAc}, s19")
        A(f"s_mul_i32 s62, s{sAc}, {65536 // uB + 1}"); A("s_ashr_i32 s62, s62, 16")
        A(f"s_mul_i32 s63, s{sAc}, {-(65536 // uT + 1)}"); A("s_ashr_i32 s63, s63, 16")
        A(f"s_max_i32 s62, s62, 0"); A(f"s_max_i32 s63, s63, 0")
        A(f"s_mul_i32 s19, s62, {uB}"); A(f"s_sub_i32 s{sAc}, s{sAc}, s19")
        A(f"s_mul_i32 s19, s63, {uT}"); A(f"s_add_i32 s{sAc}, s{sAc}, s19")
        A(f"s_min_i32 s62, s62, {mxB}"); A(f"s_min_i32 s63, s63, {mxT}")
        if kx:
            A(f"s_sub_u32 s19, s{sJ0}, {256 - 4 * kx}"); A(f"s_cmp_lt_u32 s19, {4 * kx}"); A("s_cselect_b32 s62, 4, s62"); A("s_cselect_b32 s63, 0, s63")
        if ky:
            A(f"s_cmpk_eq_u32 s{sJ0}, 256"); A(f"s_cselect_b32 s62, {max(-ky, 0)}, s62"); A(f"s_cselect_b32 s63, {max(ky, 0)}, s63")
        A(f"s_add_u32 s62, s62, s{sJ0}"); A(f"s_add_u32 s63, s63, s{sJ0}")
        A("s_pack_ll_b32_b16 s62, s62, s63")
        A(f"v_mov_b32 v{vA}, s62")
        A(f"ds_write_b32 v{vMBc}, v{vA} offset:12")
        if trace:
            A(f"v_mov_b32 v24, s{sE}"); A("v_mov_b32 v25, s58"); A("v_mov_b32 v26, s62"); A("v_mov_b32 v27, s18")
            A("s_mov_b64 exec, 1")
            A(f"buffer_store_dwordx4 v[24:27], v20, s[{sWS}:{sWS+3}], 0 offen")
            A("s_mov_b64 exec, -1")
            A("v_add_u32 v20, 16, v20")
        A(f"s_bitcmp1_b32 s{sJ0}, 2")
        A("s_cbranch_scc1 L_c2")
        A(f"s_cmpk_eq_u32 s{sJ0}, {4 * CE + 16}")
        A("s_cbranch_scc1 L_c6")
        C("every other round: post and look")
        A("s_ashr_i32 s59, s59, 3"); A(f"s_add_u32 s59, s59, s{sE}")
        A(f"s_add_u32 s60, s60, s{sE}")
        A("s_ashr_i32 s18, s18, 5"); A(f"s_add_u32 s18, s18, s{sE}")
        A(f"v_mov_b32 v{vP}, s{sE}"); A(f"v_writelane_b32 v{vP}, s60, 32"); A(f"v_writelane_b32 v{vP}, s59, 33")
        A(f"v_mov_b32 v{vG}, s18")
        A(f"s_lshr_b32 s19, s{sJ0}, 3"); A(f"s_lshr_b64 s[78:79], s[80:81], s19")
        A("s_mov_b64 exec, s[68:69]")
        A(f"buffer_store_dword v{vP}, v{vLo}, s[{sWS}:{sWS+3}], 0 offen")
        A("s_mov_b64 exec, s[66:67]")
        A(f"buffer_load_dword v{vB}, v{vLo}, s[{sWS}:{sWS+3}], 0 offen sc1")
        A("s_bitcmp0_b32 s78, 1")
        A("s_cbranch_scc1 L_c4")
        A("s_mov_b64 exec, s[72:73]")
        A(f"buffer_atomic_swap v{vG}, v{vLo}, s[{sWS}:{sWS+3}], 0 offen sc1")
        Lb("L_c4")
        A("s_bitcmp0_b32 s78, 0")
        A("s_cbranch_scc1 L_c5")
        A("s_mov_b64 exec, s[64:65]")
        A(f"buffer_load_dword v{vB}, v{vLo}, s[{sWS}:{sWS+3}], 0 offen sc1")
        Lb("L_c5")
        A("s_mov_b64 exec, -1")
        if cw:
            A(f"s_lshr_b32 s19, s{sJ0}, 3"); A("s_and_b32 s19, s19, s75"); A("s_cbranch_scc1 L_c2")
            A(f"global_load_dword v16, v[14:15], off {cwf.replace('none', '').replace('+', ' ')}")
        A("s_branch L_c2")

    vM8, vEps = 8, 9
    vM1, vM2, vDen, vQa = 12, 13, 14, 15
    vKb = 16
    vVb = 20
    vAd = 24
    vPa = 28
    vSn = 29
    vFl = 30
    vKP = 32; vG = 36; vX = 40; vT = 42; vY = 44; vPH = 48; vPQ = 52
    vDp = 54
    vS0 = 56
    vL4 = 57
    vZero = 58
    vMB = 59
    vL16 = 60
    vSl = 61
    vOM = 64; vK = 96; vB = 128; vA = 144; vACC = 148
    nv = 164 + nvx
    sOwn = 94
    o.append(".p2align 6")
    for _ in range(pc): A("s_nop 0")
    C("---- consumer waves")
    Lb("L_cons")
    A(f"s_load_dwordx8 s[4:11], s[0:1], 0")
    A(f"s_load_dwordx4 s[12:15], s[0:1], 32")
    A(f"s_load_dwordx2 s[16:17], s[0:1], 48")
    A("v_and_b32 v0, 63, v0")
    A("s_cmpk_eq_u32 s3, 320")
    A("s_cbranch_scc1 L_ctl")
    dma_offsets()
    A("s_lshr_b32 s3, s3, 6")
    A(f"s_sub_u32 s{sC}, s3, 1")
    A(f"s_lshr_b32 s{sHead}, s{sId}, 3")
    A(f"s_mov_b32 s{sOM+2}, 8192"); A(f"s_mov_b32 s{sOM+3}, 0x20000")
    A(f"s_mov_b32 s{sQ+2}, 16384"); A(f"s_mov_b32 s{sQ+3}, 0x20000")
    A(f"s_lshl_b32 s19, s{sHead}, 9")
    A(f"s_mov_b32 m0, {OMG}")
    A(f"s_mov_b32 s18, 4096")
    A(f"s_cmp_lg_u32 s{sC}, 0")
    A("s_waitcnt lgkmcnt(0)")
    A(f"s_mov_b32 s{sOM}, s10"); A(f"s_mov_b32 s{sOM+1}, s11")
    A(f"s_mov_b32 s{sQ}, s4"); A(f"s_mov_b32 s{sQ+1}, s5")
    A("s_cbranch_scc1 L_noom")
    for n in range(4):
        A(f"buffer_load_dwordx4 v{4+n}, s[{sOM}:{sOM+3}], 0 offen offset:{n*1024} lds")
    A(f"s_mov_b32 m0, {OMG+4096}"); A("s_nop 0")
    for n in range(4):
        A(f"buffer_load_dwordx4 v{4+n}, s[{sOM}:{sOM+3}], s18 offen offset:{n*1024} lds")
    A(f"s_mov_b32 m0, {QL}")
    A("s_bfm_b64 exec, 32, 0")
    A(f"buffer_load_dwordx4 v4, s[{sQ}:{sQ+3}], s19 offen nt lds")
    A("s_mov_b64 exec, -1")
    Lb("L_noom")
    A(f"s_lshr_b32 s{sPart}, s{sId}, 5"); A(f"s_sub_u32 s{sPart}, s{sId}, s{sPart}"); A(f"s_and_b32 s{sPart}, s{sPart}, 7")
    A(f"s_mov_b32 s{sWS}, s16"); A(f"s_mov_b32 s{sWS+1}, s17"); A(f"s_mov_b32 s{sWS+2}, {WSB}"); A(f"s_mov_b32 s{sWS+3}, 0x20000")
    A(f"s_mov_b32 s{sOUT}, s12"); A(f"s_mov_b32 s{sOUT+1}, s13"); A(f"s_mov_b32 s{sOUT+2}, 16384"); A(f"s_mov_b32 s{sOUT+3}, 0x20000")
    A(f"s_mov_b32 s{sDBG}, s14"); A(f"s_mov_b32 s{sDBG+1}, s15"); A(f"s_mov_b32 s{sDBG+2}, 256"); A(f"s_mov_b32 s{sDBG+3}, 0x20000")
    if vt == 0: A(f"s_mov_b32 s{sV}, s8"); A(f"s_mov_b32 s{sV+1}, s9"); A(f"s_mov_b32 s{sV+2}, {1<<28}"); A(f"s_mov_b32 s{sV+3}, 0x20000")
    A("v_lshrrev_b32 v5, 4, v0")
    A("v_and_b32 v1, 15, v0")
    A(f"s_lshl_b32 s93, s{sHead}, 2")
    A(f"v_lshlrev_b32 v{vL4}, 2, v0"); A(f"v_mov_b32 v{vZero}, 0"); A(f"v_mov_b32 v{vMB}, {MB}")
    A(f"s_add_u32 s67, s93, s{sC}"); A("s_lshl_b32 s67, s67, 11")
    A(f"s_lshl_b32 s68, s{sPart}, 8"); A("s_add_u32 s68, s68, s67")
    A(f"s_mul_i32 s69, s{sHead}, {HS}"); A(f"s_add_u32 s69, s69, {CTR}")
    A(f"s_lshl_b32 s63, s{sPart}, 7"); A("s_add_u32 s63, s63, s69")
    A(f"s_lshl_b32 s18, s{sC}, 7"); A(f"s_add_u32 s19, s18, s19")
    A(f"v_mov_b32 v7, {OOB:#x}"); A(f"v_lshlrev_b32 v{vL16}, 4, v0")
    A("v_and_b32 v3, 7, v0")
    A(f"v_lshlrev_b32 v{vDp}, 7, v3")
    A(f"v_mov_b32 v{vSn}, v7"); A(f"v_mov_b32 v{vSl}, v7")
    A(f"v_mov_b32 v{vS0}, v7")
    A(f"v_mov_b32 v{vM1}, -1"); A(f"v_mov_b32 v{vM2}, 0xffff0000")
    A(f"s_mov_b32 s{sOwn}, 0x01010101"); A(f"s_mov_b32 s{sOwn+1}, 0x01010101")
    A(f"v_cndmask_b32 v{vDp}, v{vDp}, v7, s[{sOwn}:{sOwn+1}]")
    C("finishing workgroup: what earlier launches left in the hand-over words")
    A(f"s_cmp_lg_u32 s{sPart}, 0"); A("s_cbranch_scc1 L_noec")
    A(f"buffer_load_dwordx4 v[{vB}:{vB+3}], v{vL16}, s[{sWS}:{sWS+3}], s67 offen {chkf}")
    A(f"buffer_load_dwordx4 v[{vB+4}:{vB+7}], v{vL16}, s[{sWS}:{sWS+3}], s67 offen offset:1024 {chkf}")
    A(f"buffer_load_dwordx2 v[{vB+8}:{vB+9}], v{vDp}, s[{sWS}:{sWS+3}], s69 offen offset:{DO} {chkf}")
    Lb("L_noec")
    A("s_bfm_b64 exec, 48, 0"); A(f"v_mov_b32 v{vM1}, v{vM2}")
    A("s_bfm_b64 exec, 32, 0"); A(f"v_mov_b32 v{vM2}, 0")
    A("s_bfm_b64 exec, 16, 0"); A(f"v_mov_b32 v{vM1}, 0"); A(f"v_mov_b32 v{vSn}, v{vL16}")
    A("s_bfm_b64 exec, 8, 0"); A(f"v_mov_b32 v{vSl}, v{vL16}")
    A("s_mov_b64 exec, -1")
    A(f"v_writelane_b32 v{vS0}, 0, 0")
    A("v_and_b32 v6, 7, v1"); A("v_lshlrev_b32 v6, 1, v6")
    A("v_xor_b32 v6, v6, v5")
    A("v_lshlrev_b32 v6, 4, v6"); A(f"v_lshl_add_u32 v{vKb}, v1, 9, v6")
    for jj in range(1, 4): A(f"v_xor_b32 v{vKb+jj}, {jj*64}, v{vKb}")
    A(f"v_lshlrev_b32 v11, 4, v5")
    A(f"v_lshl_add_u32 v{vQa}, v5, 3, v{vMB}")
    A("v_lshrrev_b32 v6, 2, v0")
    A("v_and_b32 v7, 7, v6")
    A(f"s_lshl_b32 s18, s{sC}, 2")
    A("v_xor_b32 v7, s18, v7")
    A("v_lshlrev_b32 v7, 5, v7"); A("v_lshl_add_u32 v7, v6, 9, v7")
    A("v_and_b32 v10, 3, v0"); A(f"v_lshl_add_u32 v{vVb}, v10, 3, v7")
    for t in range(1, 4): A(f"v_xor_b32 v{vVb+t}, {t*32}, v{vVb}")
    for r in range(4):
        m = (1 << r) | (1 << (20 + r)) | (1 << (40 + r)) | (1 << (60 + r))
        A(f"s_mov_b32 s{sMask+2*r}, {m & 0xffffffff:#x}"); A(f"s_mov_b32 s{sMask+2*r+1}, {m >> 32:#x}")
    A(f"s_mov_b32 s{sL2E}, {f2u(math.log2(math.e)/4):#x}")
    A(f"v_mov_b32 v{vM8}, {f2u(-0.125):#x}"); A(f"v_mov_b32 v{vEps}, {f2u(1e-6):#x}")
    for r in range(16): A(f"v_mov_b32 v{vACC+r}, 0")
    A(f"v_mov_b32 v{vDen}, 0")
    A(f"s_and_b32 s18, s{sC}, 1"); A(f"s_lshr_b32 s52, s{sC}, 1")
    A(f"s_lshl_b32 s{sRing}, s52, 14"); A("s_lshl_b32 s53, s18, 13"); A(f"s_add_u32 s{sRing}, s{sRing}, s53")
    A("s_lshl_b32 s53, s52, 8"); A("s_lshl_b32 s18, s18, 3"); A("s_add_u32 s53, s53, s18"); A(f"s_add_u32 s53, s53, {WA}")
    A(f"v_lshl_add_u32 v{vPa}, v6, 4, s53"); A(f"v_lshl_add_u32 v{vPa}, v10, 1, v{vPa}")
    for jj in range(4): A(f"v_add_u32 v{vAd+jj}, {OMG}, v{vKb+jj}")
    A(f"v_add_u32 v2, {QL}, v11")
    A(f"s_mov_b32 s{sCnt}, 32")
    A(f"s_cmp_eq_u32 s{sPart}, 0")
    A(f"s_cselect_b32 s{sEv}, {K2}, {K5}")
    A("s_cbranch_scc1 L_ecw")
    A("s_waitcnt vmcnt(0)")
    Lb("L_ecw")
    A("s_waitcnt vmcnt(3)")
    def first():
        A("s_barrier")
        for j in range(8):
            A(f"ds_read_b128 v[{vOM+j*4}:{vOM+j*4+3}], v{vAd+(j&3)} offset:{(j>>2)*256}")
        for jj in range(4): A(f"v_add_u32 v{vAd+jj}, s{sRing}, v{vKb+jj}")
    if al == 2:
        A(f"s_cmp_eq_u32 s{sC}, 2")
        A("s_cbranch_scc1 L_phi")
    first()
    A("s_cmp_eq_u32 s52, 0")
    A("s_cbranch_scc1 L_k_nb")
    if al < 2:
        A(f"s_cmp_lg_u32 s{sC}, 2")
        A("s_cbranch_scc1 L_k")

    def round4(src, dst):
        A(f"v_cvt_pk_bf16_f32 v{vT}, v{src}, v{src+1}")
        A(f"v_cvt_pk_bf16_f32 v{vT+1}, v{src+2}, v{src+3}")
        A(f"v_lshlrev_b32 v{dst}, 16, v{vT}"); A(f"v_and_b32 v{dst+1}, 0xffff0000, v{vT}")
        A(f"v_lshlrev_b32 v{dst+2}, 16, v{vT+1}"); A(f"v_and_b32 v{dst+3}, 0xffff0000, v{vT+1}")
    def phi_tail():
        round4(vY, vY)
        for r in range(4): A(f"v_mul_f32 v{vY+r}, s{sL2E}, v{vY+r}")
        for r in range(4): A(f"v_exp_f32 v{vY+r}, v{vY+r}")
        A("s_nop 0")
        round4(vY, vY)
        for r in range(4): A(f"v_fmamk_f32 v{vY+r}, v{vY+r}, 0x3e800000, v{vEps}")
        A(f"v_cvt_pk_bf16_f32 v{vPH}, v{vY}, v{vY+1}")
        A(f"v_cvt_pk_bf16_f32 v{vPH+1}, v{vY+2}, v{vY+3}")

    def phiq():
        C("phi(q), by the wave that has nothing to do in the first round")
        for j in range(8):
            A(f"ds_read_b128 v[{vK+j*4}:{vK+j*4+3}], v2 offset:{j*64}")
        A("s_waitcnt lgkmcnt(0)")
        for j in range(8):
            qr = f"v[{vK+j*4}:{vK+j*4+3}]"
            c = "0" if j == 0 else f"v[{vKP}:{vKP+3}]"
            A(f"v_mfma_f32_16x16x32_bf16 v[{vKP}:{vKP+3}], v[{vOM+j*4}:{vOM+j*4+3}], {qr}, {c}")
            c = "0" if j == 0 else f"v[{vG}:{vG+3}]"
            A(f"v_mfma_f32_16x16x32_bf16 v[{vG}:{vG+3}], {qr}, {qr}, {c}")
        A("s_nop 7")
        round4(vKP, vKP)
        A(f"v_cvt_pk_bf16_f32 v{vX}, v{vG}, v{vG}")
        A(f"v_and_b32 v{vX}, 0xffff0000, v{vX}")
        for r in range(4): A(f"v_fma_f32 v{vY+r}, v{vX}, v{vM8}, v{vKP+r}")
        phi_tail()
        A(f"ds_write_b64 v{vQa}, v[{vPH}:{vPH+1}] offset:32")
        A("s_waitcnt lgkmcnt(0)")
    if al < 2: phiq()

    C("---- K phase: weights of 16 keys per wave and pair of rounds")
    Lb("L_k")
    A("s_barrier")
    Lb("L_k_nb")
    for j in range(8):
        A(f"ds_read_b128 v[{vK+j*4}:{vK+j*4+3}], v{vAd+(j&3)} offset:{(j>>2)*256}")
    A(f"s_add_u32 s{sRing}, s{sRing}, 32768"); A(f"s_and_b32 s{sRing}, s{sRing}, 0xffff")
    for jj in range(4): A(f"v_add_u32 v{vAd+jj}, s{sRing}, v{vKb+jj}")
    for j in range(8):
        kr = f"v[{vK+j*4}:{vK+j*4+3}]"
        A(f"s_waitcnt lgkmcnt({7-j})")
        c = "0" if j == 0 else f"v[{vG}:{vG+3}]"
        A(f"v_mfma_f32_16x16x32_bf16 v[{vG}:{vG+3}], {kr}, {kr}, {c}")
        c = "0" if j == 0 else f"v[{vKP}:{vKP+3}]"
        A(f"v_mfma_f32_16x16x32_bf16 v[{vKP}:{vKP+3}], v[{vOM+j*4}:{vOM+j*4+3}], {kr}, {c}")
    A("s_barrier")
    A(f"ds_read_b64 v[{vPQ}:{vPQ+1}], v{vQa} offset:32")
    A("s_nop 7")
    A(f"v_cndmask_b32 v{vX}, 0, v{vG}, s[{sMask}:{sMask+1}]")
    for r in range(1, 4):
        A(f"v_cndmask_b32 v{vX}, v{vX}, v{vG+r}, s[{sMask+2*r}:{sMask+2*r+1}]")
    A(f"v_cvt_pk_bf16_f32 v{vX}, v{vX}, v{vX}")
    A(f"v_and_b32 v{vX}, 0xffff0000, v{vX}")
    round4(vKP, vKP)
    A("s_nop 1")
    A(f"v_mfma_f32_16x16x4_f32 v[{vY}:{vY+3}], v{vM8}, v{vX}, v[{vKP}:{vKP+3}]")
    A("s_nop 9")
    phi_tail()
    A("s_waitcnt lgkmcnt(0)")
    A(f"s_sub_u32 s{sCnt}, s{sCnt}, 1")
    A(f"v_mfma_f32_16x16x16_bf16 v[{vG}:{vG+3}], v[{vPQ}:{vPQ+1}], v[{vPH}:{vPH+1}], 0")
    A("s_nop 7")
    A(f"v_and_b32 v{vT}, v{vM1}, v{vG}")
    A(f"v_add_f32 v{vDen}, v{vDen}, v{vG}")
    A(f"v_sub_f32 v{vX}, v{vG}, v{vT}")
    A(f"v_and_b32 v{vT}, v{vM2}, v{vX}")
    A(f"v_sub_f32 v{vX}, v{vX}, v{vT}")
    A(f"ds_write_b16_d16_hi v{vPa}, v{vX}")
    A(f"v_add_u32 v{vPa}, 512, v{vPa}")
    A(f"s_cmp_eq_u32 s{sCnt}, s{sEv}")
    A("s_cbranch_scc1 L_ke")
    Lb("L_ke_ret")
    A(f"s_cmp_lg_u32 s{sCnt}, 0")
    A("s_waitcnt lgkmcnt(0)")
    A("s_cbranch_scc1 L_k")

    C("---- V phase: w^T v for 64 columns per wave")
    NQ = 62
    T4 = 2; T3 = 3
    A(f"v_lshl_add_u32 v{vPa}, v10, 6, v11"); A(f"v_add_u32 v{vPa}, {WA}, v{vPa}")
    A(f"s_lshl_b32 s18, s{sC}, 6"); A(f"v_lshl_add_u32 v2, v1, 2, s18"); A(f"v_add_u32 v2, v2, v{vMB}")
    A(f"ds_read_b128 v[{vA}:{vA+3}], v{vPa}")
    A(f"ds_write_b32 v2, v{vDen} offset:256")
    A(f"s_mov_b32 s{sRing}, 0")
    A(f"s_mov_b32 s{sCnt}, 64")
    A(f"s_cmp_eq_u32 s{sC}, 0"); A(f"s_cselect_b32 s{sEv}, {NQ}, {T3}")
    A("v_lshlrev_b32 v1, 1, v0")
    for t in range(4): A(f"v_mov_b32 v{vAd+t}, v{vVb+t}")
    A("s_cmp_lg_u32 s52, 0")
    A("s_waitcnt lgkmcnt(0)")
    A("s_cbranch_scc1 L_v_nb")
    Lb("L_v")
    A("s_barrier")
    Lb("L_v_nb")
    for t in range(4):
        A(f"ds_read_b64_tr_b16 v[{vB+t*4}:{vB+t*4+1}], v{vAd+t}")
        A(f"ds_read_b64_tr_b16 v[{vB+t*4+2}:{vB+t*4+3}], v{vAd+t} offset:8192")
    A(f"s_add_u32 s{sRing}, s{sRing}, 16384"); A(f"s_and_b32 s{sRing}, s{sRing}, 0xffff")
    A(f"v_add_u32 v{vPa}, 256, v{vPa}")
    A(f"s_sub_u32 s{sCnt}, s{sCnt}, 1")
    for t in range(4):
        A(f"s_waitcnt lgkmcnt({6-2*t})")
        a = vACC + t * 4
        A(f"v_mfma_f32_16x16x32_bf16 v[{a}:{a+3}], v[{vA}:{vA+3}], v[{vB+t*4}:{vB+t*4+3}], v[{a}:{a+3}]")
    for t in range(4): A(f"v_add_u32 v{vAd+t}, s{sRing}, v{vVb+t}")
    A(f"ds_read_b128 v[{vA}:{vA+3}], v{vPa}")
    A(f"s_cmp_eq_u32 s{sCnt}, s{sEv}")
    A("s_cbranch_scc0 L_v")
    A(f"s_cmp_lg_u32 s{sCnt}, 1")
    A("s_cbranch_scc1 L_ve")

    P = vOM; Q = P + 8
    sTg = 20
    sM1, sM2, sMode = 24, 26, 28
    S = vK
    def polls(R, masked):
        A(f"s_mov_b64 exec, s[{sM1}:{sM1+1}]")
        A(f"buffer_load_dwordx4 v[{R}:{R+3}], v{vL16}, s[{sWS}:{sWS+3}], s67 offen sc1")
        A(f"s_mov_b64 exec, s[{sM2}:{sM2+1}]" if masked else "s_mov_b64 exec, -1")
        A(f"buffer_load_dwordx4 v[{R+4}:{R+7}], v{vL16}, s[{sWS}:{sWS+3}], s67 offen offset:1024 sc1")
        if masked: A("s_mov_b64 exec, -1")
    def add1(t): A(f"v_add_f32 v{S+t}, v{vACC+4*t+1}, v{vACC+4*t+2}")
    def add2(t): A(f"v_add_f32 v{S+t}, v{S+t}, v{vACC+4*t}")
    def tag(t): A(f"v_bfi_b32 v{S+t}, 63, s{sTg+t}, v{S+t}")
    def mf(t):
        A(f"s_waitcnt lgkmcnt({3 - t})")
        a = vACC + t * 4
        A(f"v_mfma_f32_16x16x32_bf16 v[{a}:{a+3}], v[{vA}:{vA+3}], v[{vB+t*4}:{vB+t*4+3}], v[{a}:{a+3}]")
    C("---- the last round, in two halves; add the parts, hand over / collect")
    A(f"s_cmp_lg_u32 s{sPart}, 0")
    A("s_cbranch_scc1 L_last")
    polls(P, 0)
    Lb("L_last")
    A("s_barrier")
    for t in range(4): A(f"ds_read_b64_tr_b16 v[{vB+t*4}:{vB+t*4+1}], v{vAd+t}")
    A(f"s_cmp_lg_u32 s{sMode}, 0")
    A("s_barrier")
    for t in range(4): A(f"ds_read_b64_tr_b16 v[{vB+t*4+2}:{vB+t*4+3}], v{vAd+t} offset:8192")
    if qe: polls(Q, 1)
    mf(0); mf(1); mf(2); mf(3)
    if stamp: A("s_memrealtime s[72:73]")
    A("s_cbranch_scc1 L_other")
    A("s_nop 0")
    def sums(): add1(0); add2(0); add1(1); add2(1); add1(2); add2(2); add1(3); tag(0); add2(3); tag(1); tag(2); tag(3)
    def out_prod(fl):
        A(f"buffer_store_dwordx4 v[{S}:{S+3}], v{vSn}, s[{sWS}:{sWS+3}], s68 offen{fl or (' ' + gnt.replace('+', ' '))}".rstrip())
        for _ in range(xd):
            A("s_add_u32 s68, s68, 0x100000")
            A(f"buffer_store_dwordx4 v[{S}:{S+3}], v{vSn}, s[{sWS}:{sWS+3}], s68 offen{fl}")
        if stamp:
            A("s_mov_b32 s76, 0"); A("s_mov_b32 s78, 0"); A("s_mov_b32 s80, 0")
            A("s_branch L_fin")
        else:
            A("s_endpgm")
    sums()
    out_prod("")
    Lb("L_far")
    out_prod(" " + stf)
    Lb("L_other")
    if not qe: polls(Q, 1)
    A(f"s_cmp_lg_u32 s{sPart}, 0"); sums()
    A("s_cbranch_scc1 L_far")
    if stamp:
        A("s_memrealtime s[78:79]"); A("s_mov_b32 s76, 0")
    A("s_mov_b64 exec, 0xffff")
    for R in (P, Q):
        for h in (0, 2): A(f"v_pk_mov_b32 v[{R+h}:{R+h+1}], v[{S+h}:{S+h+1}], v[{S+h}:{S+h+1}] op_sel:[0,1]")
    A("s_mov_b64 exec, -1")
    X = S + 4
    Lb("L_chk")
    for R, nm in ((P, "L_f1"), (Q, "L_f2")):
        if stamp: A("s_add_u32 s76, s76, 1")
        A(f"s_waitcnt vmcnt(2)")
        A(f"v_pk_add_f32 v[{S+8}:{S+9}], v[{R}:{R+1}], v[{R+4}:{R+5}]")
        A(f"v_pk_add_f32 v[{S+10}:{S+11}], v[{R+2}:{R+3}], v[{R+6}:{R+7}]")
        A(f"v_bitop3_b32 v{X}, v{R}, v{R+4}, s{sTg} bitop3:0x7e")
        A(f"v_bitop3_b32 v{X+1}, v{R+1}, v{R+5}, s{sTg+1} bitop3:0x7e")
        A(f"v_permlane32_swap_b32 v{S+8}, v{S+10}")
        A(f"v_permlane32_swap_b32 v{S+9}, v{S+11}")
        A(f"v_pk_add_f32 v[{S+8}:{S+9}], v[{S+8}:{S+9}], v[{S+10}:{S+11}]")
        A(f"v_bitop3_b32 v{X+2}, v{R+2}, v{R+6}, s{sTg+2} bitop3:0x7e")
        A(f"v_bitop3_b32 v{X+3}, v{R+3}, v{R+7}, s{sTg+3} bitop3:0x7e")
        A(f"v_permlane16_swap_b32 v{S+8}, v{S+9}")
        A(f"v_or3_b32 v{X}, v{X}, v{X+1}, v{X+2}")
        A(f"v_add_f32 v{S+8}, v{S+8}, v{S+9}")
        A(f"v_bitop3_b32 v{X}, v{X}, v{X+3}, 63 bitop3:0xa8")
        A(f"v_cvt_pk_bf16_f32 v{S+8}, 0, v{S+8}")
        A(f"v_cmp_ne_u32 vcc, 0, v{X}")
        A(f"v_mul_f32 v{S+8}, v{S+8}, v{vFl+1}")
        A(f"v_cvt_pk_bf16_f32 v{S+8}, v{S+8}, v{S+8}")
        A(f"s_cbranch_vccnz {nm}")
        if stamp: A("s_memrealtime s[80:81]")
        A(f"buffer_store_short v{S+8}, v1, s[{sOUT}:{sOUT+3}], s19 offen")
        A("s_branch L_fin" if stamp else "s_endpgm")
        Lb(nm)
        polls(R, 0)
    A("s_sub_u32 s53, s53, 1")
    A("s_cbranch_scc0 L_chk")
    A("s_endpgm")

    for _ in range(pk): A("s_nop 0")
    def page2():
        C("---- second page of code: entered at its start by the steering wave")
        o.append(".p2align 12")
        steering()
        Lb("L_phi"); first(); phiq(); A("s_branch L_k")
        return len(o)
    if al == 2 and not ev1: mark = page2()
    C("---- V phase events")
    Lb("L_ve")
    A(f"s_cmp_gt_u32 s{sCnt}, {T3}"); A("s_cbranch_scc1 L_ve_0")
    A(f"s_sub_u32 s{sEv}, s{sEv}, 1")
    A(f"s_cmp_eq_u32 s{sCnt}, {T4}"); A("s_cbranch_scc1 L_ve_t4")
    A(f"ds_read_b64 v[{vFl}:{vFl+1}], v{vMB}")
    Lb("L_ve_ret")
    A("s_waitcnt lgkmcnt(0)")
    A("s_branch L_v")
    Lb("L_ve_t4")
    A(f"v_readfirstlane_b32 s{sTg}, v{vFl}")
    A("s_getreg_b32 s18, hwreg(HW_REG_XCC_ID, 0, 4)")
    A(f"s_mov_b32 s53, {1<<20}")
    A(f"s_bfe_u32 s{sMode}, s{sTg}, 0x40018")
    A(f"s_xor_b32 s{sMode}, s{sMode}, s18")
    if force: A(f"s_mov_b32 s{sMode}, 1")
    for t in range(1, 4): A(f"s_lshr_b32 s{sTg+t}, s{sTg}, {6*t}")
    A(f"s_cmp_eq_u32 s{sPart}, 0")
    A(f"s_cselect_b32 s{sMode}, 1, s{sMode}")
    A(f"s_cselect_b64 s[{sM2}:{sM2+1}], -1, 0")
    A(f"s_lshl_b64 s[{sM1}:{sM1+1}], s[{sM2}:{sM2+1}], 16")
    A("s_cbranch_scc0 L_v")
    polls(P, 0)
    A("s_branch L_v")
    if al == 2 and ev1: mark = page2()
    Lb("L_ve_0")
    A(f"s_cmp_eq_u32 s{sCnt}, {NQ}"); A("s_cbranch_scc1 L_ve_q")
    A(f"s_cmp_eq_u32 s{sCnt}, {ND}"); A("s_cbranch_scc0 L_ve_d")
    D = 4
    A(f"s_mov_b32 s{sEv}, {ND - 3}")
    A(f"buffer_load_dwordx2 v[{D}:{D+1}], v{vDp}, s[{sWS}:{sWS+3}], s69 offen offset:{DO} sc1 nt")
    A("s_branch L_ve_ret")
    C("finishing workgroup: the dens of the others")
    Lb("L_ve_d")
    A(f"s_mov_b32 s{sEv}, {T3}")
    A(f"s_mov_b32 s53, {1<<20}")
    Lb("L_dn")
    A("s_waitcnt vmcnt(0)")
    A(f"v_cmp_ne_u32 vcc, s{sT}, v{D+1}")
    A(f"v_cndmask_b32 v6, v{D}, v{vDen}, s[{sOwn}:{sOwn+1}]")
    A(f"s_andn2_b64 vcc, vcc, s[{sOwn}:{sOwn+1}]")
    A("s_cbranch_scc0 L_dn_ok")
    A(f"buffer_load_dwordx2 v[{D}:{D+1}], v{vDp}, s[{sWS}:{sWS+3}], s69 offen offset:{DO} {ldf}")
    A("s_sub_u32 s53, s53, 1")
    A("s_cbranch_scc0 L_dn")
    A("s_waitcnt vmcnt(0)")
    A(f"v_mov_b32 v6, -1")
    A("s_nop 1")
    Lb("L_dn_ok")
    A(f"v_add_f32_dpp v6, v6, v6 quad_perm:[1,0,3,2] row_mask:0xf bank_mask:0xf"); A("s_nop 1")
    A(f"v_add_f32_dpp v6, v6, v6 quad_perm:[2,3,0,1] row_mask:0xf bank_mask:0xf"); A("s_nop 1")
    A(f"v_add_f32_dpp v6, v6, v6 row_half_mirror row_mask:0xf bank_mask:0xf")
    A(f"v_cvt_pk_bf16_f32 v6, v6, v6"); A(f"v_and_b32 v6, 0xffff0000, v6")
    A(f"v_add_f32 v6, v6, v{vEps}")
    A(f"v_cvt_pk_bf16_f32 v6, v6, v6"); A(f"v_and_b32 v6, 0xffff0000, v6")
    A(f"v_rcp_f32 v7, v6")
    A("s_nop 0")
    A(f"ds_write_b32 v{vMB}, v7 offset:4")
    A("s_branch L_ve_ret")

    C("wave c=0 takes over the epoch word and hands the den of this workgroup over")
    Lb("L_ve_q")
    A(f"v_add_u32 v2, v{vL4}, v{vMB}")
    A(f"ds_read_b32 v{vDen}, v2 offset:256")
    A(f"s_mov_b32 s53, {1<<20}")
    Lb("L_ep")
    A("s_waitcnt vmcnt(0)")
    A(f"v_readfirstlane_b32 s{sT}, v{vFl}")
    A(f"s_cmp_lg_u32 s{sT}, 0")
    A("s_cbranch_scc1 L_ep_ok")
    A(f"buffer_load_dword v{vFl}, v{vS0}, s[{sDBG}:{sDBG+3}], s93 offen sc1")
    A("s_sub_u32 s53, s53, 1")
    A("s_cbranch_scc0 L_ep")
    A("s_waitcnt vmcnt(0)")
    Lb("L_ep_ok")
    A(f"v_mov_b32 v5, s{sT}"); A("v_mov_b32 v6, 0"); A("v_mov_b32 v7, 0")
    A(f"ds_write_b32 v{vMB}, v5")
    A(f"s_cmp_eq_u32 s{sPart}, 0"); A(f"s_cselect_b32 s{sEv}, {ND}, {T3}")
    A("s_getreg_b32 s18, hwreg(HW_REG_XCC_ID, 0, 4)")
    A(f"s_bfe_u32 s{sFar}, s{sT}, 0x40018")
    A("s_waitcnt lgkmcnt(0)")
    for sft in (1, 2, 4, 8):
        A(f"v_add_f32_dpp v{vDen}, v{vDen}, v{vDen} row_ror:{sft} row_mask:0xf bank_mask:0xf")
        A("s_nop 1")
    for sw in (32, 16):
        A(f"v_mov_b32 v2, v{vDen}"); A("s_nop 1")
        A(f"v_permlane{sw}_swap_b32 v2, v{vDen}")
        A(f"v_add_f32 v{vDen}, v{vDen}, v2")
    A(f"s_cmp_eq_u32 s{sPart}, 0")
    A("s_cbranch_scc1 L_ve_ret")
    A(f"v_mov_b32 v4, v{vDen}")
    A(f"s_cmp_lg_u32 s{sFar}, s18")
    if force: A("s_cmp_eq_u32 0, 0")
    A("s_cbranch_scc1 L_dfar")
    A(f"buffer_store_dwordx4 v[4:7], v{vSl}, s[{sWS}:{sWS+3}], s63 offen offset:{DO}")
    A("s_branch L_ve_ret")
    Lb("L_dfar")
    A(f"buffer_store_dwordx4 v[4:7], v{vSl}, s[{sWS}:{sWS+3}], s63 offen offset:{DO} {stf}")
    A("s_branch L_ve_ret")

    markk = len(o)
    C("---- K phase events: the finishing workgroup picks an epoch no old granule carries and announces it")
    Lb("L_ke")
    for n, nm in ((K3, "3"), (K4, "4"), (K5, "5")):
        A(f"s_cmp_eq_u32 s{sCnt}, {n}"); A(f"s_cbranch_scc1 L_ke{nm}")
    A(f"s_mov_b32 s{sEv}, {K3}")
    A("s_waitcnt vmcnt(0)")
    A(f"v_readlane_b32 s{sT}, v{vB+9}, 1")
    A("s_getreg_b32 s18, hwreg(HW_REG_XCC_ID, 0, 4)")
    A(f"s_add_u32 s{sT}, s{sT}, 1"); A(f"s_and_b32 s{sT}, s{sT}, 0xffffff"); A(f"s_bitset1_b32 s{sT}, 31")
    A("s_lshl_b32 s18, s18, 24"); A(f"s_or_b32 s{sT}, s{sT}, s18")
    for h in range(2):
        g = vB + 4 * h
        A(f"v_xor_b32 v3, s{sT}, v{g}")
        for j in range(1, 4):
            A(f"s_lshr_b32 s18, s{sT}, {6*j}")
            A(f"v_bitop3_b32 v3, v{g+j}, v3, s18 bitop3:0xde")
        A("v_and_b32 v3, 63, v3")
        A("v_cmp_eq_u32 vcc, 0, v3")
        A(f"v_xor_b32 v{g}, 1, v{g}")
        A(f"s_cbranch_vccz L_kc{h}")
        A("s_mov_b64 exec, vcc")
        A(f"buffer_store_dword v{g}, v{vL16}, s[{sWS}:{sWS+3}], s67 offen offset:{1024*h} {stf}")
        A("s_mov_b64 exec, -1")
        Lb(f"L_kc{h}")
    A(f"v_cmp_eq_u32 vcc, s{sT}, v{vB+9}")
    A(f"s_cbranch_vccz L_ke_ret")
    A("s_mov_b64 exec, vcc")
    A(f"buffer_store_dword v{vZero}, v{vDp}, s[{sWS}:{sWS+3}], s69 offen offset:{DO+4} {stf}")
    A("s_mov_b64 exec, -1")
    A("s_branch L_ke_ret")
    Lb("L_ke3")
    A(f"s_mov_b32 s{sEv}, {K4}")
    A("s_waitcnt vmcnt(0)")
    A("s_branch L_ke_ret")
    Lb("L_ke4")
    A(f"s_mov_b32 s{sEv}, {K5}")
    A(f"s_cmp_lg_u32 s{sC}, 0")
    A("s_cbranch_scc1 L_ke_ret")
    A(f"v_mov_b32 v5, s{sT}")
    A(f"buffer_atomic_swap v5, v{vS0}, s[{sDBG}:{sDBG+3}], s93 offen sc1")
    A("s_branch L_ke_ret")
    Lb("L_ke5")
    A(f"s_cmp_lg_u32 s{sC}, 0")
    A("s_cbranch_scc1 L_ke_ret")
    if vt == 0: A(f"buffer_load_dword v3, v{vS0}, s[{sV}:{sV+3}], s{sOff} offen nt")
    A(f"buffer_load_dword v{vFl}, v{vS0}, s[{sDBG}:{sDBG+3}], s93 offen")
    A("s_branch L_ke_ret")

    for _ in range(pz): A("s_nop 0")
    if al < 2: steering()
    else: o[mark:] = o[markk:] + o[mark:markk]

    if stamp:
        Lb("L_fin")
        A("s_waitcnt vmcnt(0)")
        A("s_memrealtime s[74:75]")
        A("s_getreg_b32 s82, hwreg(HW_REG_XCC_ID)")
        A("s_getreg_b32 s83, hwreg(HW_REG_HW_ID)")
        A("s_waitcnt lgkmcnt(0)")
        A(f"s_mul_i32 s19, s{sId}, 5"); A("s_add_u32 s19, s19, s3"); A("s_lshl_b32 s19, s19, 5"); A("s_add_u32 s19, s19, 0x100000")
        A("v_mov_b32 v2, s19")
        A("v_mov_b32 v4, s70"); A("v_mov_b32 v5, s76"); A("v_mov_b32 v6, s72"); A("v_mov_b32 v7, s82")
        A("v_mov_b32 v8, s83"); A("v_mov_b32 v9, s78"); A("v_mov_b32 v10, s80"); A("v_mov_b32 v11, s74")
        A("s_mov_b64 exec, 1")
        A("global_store_dwordx4 v2, v[4:7], s[16:17]")
        A("global_store_dwordx4 v2, v[8:11], s[16:17] offset:16")
        A("s_waitcnt vmcnt(0)")
    for _ in range(pe): A("s_nop 0")
    Lb("L_end")
    A("s_endpgm")
    o.append('.section .rodata,"a"'); o.append(".p2align 6"); o.append(f".amdhsa_kernel {KN}")
    A(f".amdhsa_next_free_vgpr {nv}"); A(".amdhsa_next_free_sgpr 100"); A(f".amdhsa_accum_offset {nv}")
    A(".amdhsa_group_segment_fixed_size 0"); A(".amdhsa_kernarg_size 56"); A(".amdhsa_user_sgpr_count 2")
    A(".amdhsa_user_sgpr_kernarg_segment_ptr 1"); A(".amdhsa_system_sgpr_workgroup_id_x 1")
    A(".amdhsa_float_denorm_mode_32 3")
    o.append(".end_amdhsa_kernel")
    return "\n".join(o) + "\n"

if __name__ == "__main__":
    out = sys.argv[1]
    kw = {}
    for kv in sys.argv[2:]:
        k, v = kv.split("=")
        kw[k] = int(v) if v.lstrip("-").isdigit() else v
    open(out, "w").write(gen(**kw))
```

```python
import sys, struct, math
KN = "standalone__linear_kernel_rfa__decode_kernel"
def f2u(x): return struct.unpack("<I", struct.pack("<f", x))[0]

HEADER = """; Kernarg layout for this problem (56 bytes, ptrs only, base s[0:1]):
"""

def gen(W=22, WB=32, WT=16, ND=56, jo="x30142675", K2=25, K3=23, K4=21, K5=6,
        CS=12, CE=122, tau=53, bias=-2, gG=3, gE=12, mxB=4, mxT=3, RG=2048, GX=100, k1=8, k2=64, uB=110, uT=128,
        gm="x16.48.80.96.110", gs=256, qe=0, sts=0, st=1, pad=0, pt=1, vt=0, pk=0, pc=0, nvx=0, cw=0, cx=1, pe=0, pz=0, al=2, ot=0, ev1=0, xo="", xd=0, gnt="", cwf="none", cwa=0, H0=46, H1=72, kx=0, ky=0, hz=0, TR=2, ov=0, ha=0, k3=32, gH=4, stamp=0, prio=3, force=0, trace=0):
    NWG = 256
    stf = ldf = "sc1"; chkf = "sc1 nt"
    o = []
    A = lambda s: o.append("  " + s)
    Lb = lambda s: o.append(s + ":")
    C = lambda s: o.append("; " + s)
    WA = 65536
    OMG = WA + 16384
    QL = OMG + 8192
    MB = QL + 512
    lds = QL + 1024
    o.append(HEADER.rstrip("\n"))
    o.append(f"; @launch grid=({NWG},1,1) block=(384,1,1) lds={lds}")
    o.append('.amdgcn_target "amdgcn-amd-amdhsa--gfx950"')
    o.append(".text"); o.append(f".globl {KN}"); o.extend([".p2align 12"] if al == 1 else []); o.append(".p2align 8"); o.append(f".type {KN},@function"); Lb(KN)

    sK, sV, sOM, sQ, sOUT, sWS, sDBG = 20, 24, 28, 32, 36, 40, 44
    sOff, sRing, sCnt = 48, 49, 50
    sT = 51
    sMask, sL2E = 54, 62
    sHead, sPart, sC = 64, 65, 66
    sEv, sFar = 84, 85
    sRaw, sId = 2, 90
    GRP = 2048
    CTR = 128 * GRP
    HS = 8448
    BRD = CTR + 32 * HS
    GLB = BRD + 16 * HS
    WSB = GLB + 16 * gs + xd * 0x100000
    DO = 1024
    OOB = 0x7ff00000

    sJ, sBE, sTE, sR, sX, sTab = 50, 51, 52, 53, 54, 56
    A(f"s_load_dwordx2 s[{sK}:{sK+1}], s[0:1], 8")
    if stamp or hz or ha: A("s_memrealtime s[70:71]")
    A("v_readfirstlane_b32 s3, v0")
    A(f"s_lshr_b32 s18, s2, 8")
    A("s_cbranch_scc1 L_end")
    C("head = low five bits of the id rotated right by one, part = the upper three")
    A("s_and_b32 s18, s2, 31"); A("s_mul_i32 s18, s18, 33"); A("s_bfe_u32 s18, s18, 0x50001")
    A(f"s_lshr_b32 s{sId}, s2, 5"); A(f"s_lshl3_add_u32 s{sId}, s18, s{sId}")
    A(f"s_lshl_b32 s{sOff}, s{sId}, 20")
    A("s_cmp_lg_u32 s3, 0")
    A("s_cbranch_scc1 L_cons")
    def dma_offsets():
        A("v_and_b32 v1, 32, v0")
        A("v_lshlrev_b32 v4, 4, v0")
        A("v_xor_b32 v4, v4, v1")
        A("v_xor_b32 v5, 64, v4")
        A("v_xor_b32 v6, 0x80, v4")
        A("v_xor_b32 v7, 64, v6")

    C("---- loader wave: 4 KiB groups, a barrier after every fourth")
    assert WB <= 32
    cols = [1 << int(ch, 16) for ch in jo[1:]]
    assert len(cols) == 8
    T = []; acc = 0
    for c in cols: acc ^= c; T.append(acc)
    T.append(acc)
    movk = lambda r, v: A(f"s_mov_b32 s{r}, {v}" if v <= 64 else f"s_movk_i32 s{r}, {v}")
    dma_offsets()
    A(f"s_brev_b32 s{sK+2}, 8"); A(f"s_lshl_b32 s{sK+3}, 1, 17")
    A(f"s_mov_b32 m0, 0")
    for x in (xo[1:].split(".") if xo else []):
        A(f"s_bfe_i32 s18, s{sId}, {int(x[0]) | 0x10000:#x}")
        A(f"s_and_b32 s18, s18, {sum(1 << (12 + int(ch)) for ch in x[1:]):#x}"); A(f"s_xor_b32 s{sOff}, s{sOff}, s18")
    def loads():
        for n in range(4):
            A(f"buffer_load_dwordx4 v{4+n}, s[{sK}:{sK+3}], s{sOff} offen offset:{n*1024} nt lds")
    if st == 2:
        A("s_waitcnt lgkmcnt(0)")
        loads()
    A(f"s_mov_b64 s[{sJ}:{sJ+1}], 0"); A(f"s_mov_b32 s{sTE}, 0")
    A(f"s_lshr_b32 s{sX}, s{sOff}, 12")
    for k in range(4): movk(sTab + k, T[k])
    A("s_mov_b32 s55, 7")
    A(f"v_mov_b32 v9, {MB}")
    A("s_branch L_st" if st == 2 else "s_branch L_w")
    for _ in range(pad): A("s_nop 0")
    Lb("L_ld")
    A(f"s_cmp_lt_u32 s{sJ}, s{sTE}")
    A("s_cbranch_scc0 L_nt")
    A(f"s_waitcnt vmcnt({WT-4})")
    Lb("L_nt")
    A(f"s_cmp_lt_u32 s{sJ}, s{sBE}")
    A("s_cbranch_scc1 L_w")
    A(f"s_waitcnt vmcnt({W-4})")
    Lb("L_w")
    A(f"s_waitcnt vmcnt({WB-4}) lgkmcnt(0)")
    loads()
    Lb("L_st")
    A(f"ds_read_b32 v8, v9 offset:12")
    A(f"s_add_u32 s{sJ}, s{sJ}, 1")
    A(f"s_ff1_i32_b32 m0, s{sJ}")
    A(f"s_lshl_b32 s18, s{sJ}, 12")
    A(f"s_movrels_b32 s19, s{sTab}")
    A(f"s_and_b32 m0, s18, 0xffff")
    A(f"s_xor_b32 s{sX}, s{sX}, s19")
    A(f"s_lshl_b32 s{sOff}, s{sX}, 12")
    A(f"s_and_b32 s18, s{sJ}, s55")
    A("s_cbranch_scc1 L_ld")
    A(f"s_load_dwordx2 s[8:9], s[0:1], 16")
    if stamp: A(f"s_load_dwordx2 s[16:17], s[0:1], 48")
    A(f"s_cmp_lt_u32 s{sJ}, 12")
    A("s_cbranch_scc1 L_in2")
    A(f"v_readfirstlane_b32 s{sR}, v8")
    if hz:
        A(f"s_cmpk_lg_u32 s{sJ}, {hz}"); A("s_cbranch_scc1 L_z1"); A("s_memrealtime s[86:87]"); Lb("L_z1")
        A(f"s_cmpk_lg_u32 s{sJ}, {hz + 40}"); A("s_cbranch_scc1 L_z2"); A("s_memrealtime s[88:89]"); Lb("L_z2")
    if sts > 3:
        A(f"s_cmp_lg_u32 s{sJ}, {sts}"); A("s_cbranch_scc1 L_s1")
        A("s_memrealtime s[86:87]"); A("s_barrier"); A("s_memrealtime s[88:89]"); A("s_branch L_s2")
        Lb("L_s1")
    A("s_barrier")
    if sts > 3: Lb("L_s2")
    A(f"s_and_b32 s{sBE}, s{sR}, 0xffff")
    A(f"s_lshr_b32 s{sTE}, s{sR}, 16")
    A(f"s_and_b32 s18, s{sJ}, 0xff")
    A("s_cbranch_scc1 L_ld")
    A(f"s_mov_b32 s{sK}, s8"); A(f"s_mov_b32 s{sK+1}, s9")
    if stamp:
        A(f"s_cmpk_lg_u32 s{sJ}, 256"); A("s_cbranch_scc1 L_nk"); A("s_memrealtime s[76:77]"); Lb("L_nk")
    A(f"s_cmpk_lg_u32 s{sJ}, 512")
    A("s_cbranch_scc1 L_ld")
    if stamp: A("s_memrealtime s[78:79]")
    for i, n in enumerate((16, 8, 0)):
        A(f"s_waitcnt vmcnt({n})")
        if sts == i + 1: A("s_memrealtime s[86:87]")
        A("s_barrier")
        if sts == i + 1: A("s_memrealtime s[88:89]")
    if stamp:
        A("s_memrealtime s[72:73]")
        if sts: A("s_waitcnt lgkmcnt(0)"); A("s_mov_b32 s78, s86"); A("s_mov_b32 s80, s88")
        A("s_branch L_fin")
    else:
        if hz:
            A(f"s_cmp_lg_u32 s{sRaw}, 100"); A("s_cbranch_scc1 L_end")
            A("s_sub_u32 s30, s88, s86"); A("s_sub_u32 s30, s30, 500"); A("s_mul_i32 s30, s30, 20"); A("s_max_i32 s30, s30, 0"); A("s_min_i32 s30, s30, 20000"); A("s_add_u32 s30, s30, 10000")
            Lb("L_h3")
            A("s_memrealtime s[72:73]"); A("s_waitcnt lgkmcnt(0)")
            A("s_sub_u32 s72, s72, s70"); A("s_cmp_lt_i32 s72, s30"); A("s_cbranch_scc1 L_h3")
        A("s_endpgm")
    Lb("L_in2")
    for k in range(4, 9): movk(sTab + k, T[k])
    A("s_mov_b32 s55, 3")
    A("v_mov_b32 v10, 0")
    A("ds_write_b32 v9, v10 offset:12")
    if prio: A(f"s_setprio {prio}")
    if stamp: A("s_mov_b32 s80, 0")
    A("s_branch L_ld")

    def steering():
        C("---- steering wave: every workgroup posts the time at which it would finish at the nominal rate; who is")
        C("     behind the others gets a wider window of loads for a few groups, who is ahead a narrower one")
        vB, vD, vLo, vG, vA, vMBc, vP = 2, 3, 4, 7, 8, 9, 10
        sB, sRem, sE, sXc, sJ0, sAc, sBase = 50, 51, 52, 54, 55, 56, 57
        assert CS % 2 == 0 and CE == 122
        Lb("L_ctl")
        A(f"s_getreg_b32 s{sXc}, hwreg(HW_REG_XCC_ID, 0, 4)")
        A(f"s_mov_b32 s{sWS+2}, {WSB}"); A(f"s_mov_b32 s{sWS+3}, 0x20000")
        A(f"s_mul_i32 s{sBase}, s{sXc}, {HS}"); A(f"s_add_u32 s{sBase}, s{sBase}, {BRD}")
        C("lanes 0..31: the entries of the board of this L2, 32 / 33: mean of this L2 / of all, 48..55: the means of the eight")
        A(f"v_mul_u32_u24 v{vLo}, {gs}, v0"); A(f"v_add_u32 v{vLo}, {GLB - 48 * gs}, v{vLo}")
        A("s_bfm_b64 s[66:67], 34, 0"); A("s_bfm_b64 s[64:65], 8, 48")
        A("s_mov_b64 exec, s[66:67]"); A(f"v_lshl_add_u32 v{vLo}, v0, 3, s{sBase}")
        A("s_bfm_b64 exec, 2, 32"); A(f"v_subrev_u32 v{vLo}, {256 - 4}, v{vLo}")
        A("s_mov_b64 exec, -1")
        A(f"v_mov_b32 v{vMBc}, {MB}"); A(f"v_mov_b32 v{vB}, 0")
        C("lanes that post: the own entry; the first eight workgroups also 32 / 33, and they look after the means")
        m = sum(1 << ((4 * int(x) + 16) // 8 + 1) for x in gm[1:].split("."))
        A(f"s_lshr_b32 s18, s{sRaw}, 3")
        A(f"s_cselect_b32 s69, 0, 3")
        A(f"s_cselect_b32 s80, 0, {m & 0xffffffff:#x}"); A(f"s_cselect_b32 s81, 0, {m >> 32:#x}")
        if cw:
            A(f"s_cselect_b32 s75, {cw - 1 if cwa else -1}, {cw - 1}")
            A("s_getpc_b64 s[76:77]")
            Lb("L_pc")
            A(f"s_sub_u32 s76, s76, L_pc-{KN}"); A("s_subb_u32 s77, s77, 0")
            A(f"v_min_u32 v14, (L_end-{KN})/128, v0"); A("v_lshlrev_b32 v14, 7, v14")
            A("v_mov_b32 v15, s77"); A("v_add_co_u32 v14, vcc, s76, v14"); A("s_nop 1"); A("v_addc_co_u32 v15, vcc, 0, v15, vcc")
        A("s_lshl_b32 s68, 1, s18")
        A(f"s_movk_i32 s{sRem}, {(128 - CS) * tau}")
        A(f"s_add_u32 s{sXc}, s{sXc}, 48")
        A(f"s_bfm_b64 s[72:73], 1, s{sXc}")
        if TR < 0: A(f"s_movk_i32 s{sJ0}, 12")
        A(f"s_mov_b32 s{sAc}, 0")
        A("s_waitcnt lgkmcnt(0)")
        A(f"s_mov_b32 s{sWS}, s16"); A(f"s_mov_b32 s{sWS+1}, s17")
        def touch():
            if vt == 1: A(f"s_load_dword s74, s[8:9], s{sOff}")
            if ot == 2: A("s_cmp_eq_u32 s69, 0"); A("s_cbranch_scc1 L_c8")
            if ot: A("s_load_dword s58, s[12:13], 0"); A("s_load_dword s59, s[14:15], 0")
            if ot == 2: Lb("L_c8")
        if TR < 0: touch()
        if cw:
            A("s_cmp_lt_i32 s75, 0"); A("s_cbranch_scc1 L_c7")
            A(f"global_load_dword v16, v[14:15], off")
            Lb("L_c7")
        if pt:
            C("the lines of the board into this L2 while the first loads are on their way")
            A("s_mov_b64 exec, s[68:69]")
            A(f"buffer_store_dword v{vB}, v{vLo}, s[{sWS}:{sWS+3}], 0 offen")
            A("s_mov_b64 exec, s[66:67]")
            A(f"buffer_load_dword v{vB}, v{vLo}, s[{sWS}:{sWS+3}], 0 offen sc1")
            A("s_mov_b64 exec, -1")
        if trace:
            A(f"s_mov_b32 s{sWS+2}, 0x1000000")
            A(f"s_lshl_b32 s60, s{sRaw}, 11"); A("s_add_u32 s60, s60, 0x200000"); A("v_mov_b32 v20, s60")
        if TR >= 0:
            for _ in range(TR + 1): A("s_barrier")
            C("addresses that are needed later: have them translated in time")
            touch()
            A(f"s_mov_b32 s{sJ0}, {16 + 4 * TR}")
            Lb("L_c1")
            A("s_barrier")
            A(f"s_add_u32 s{sJ0}, s{sJ0}, 4")
            A(f"s_cmp_lt_u32 s{sJ0}, {4 * CS + 12}")
            A("s_cbranch_scc1 L_c1")
        A("s_branch L_c2")
        def leave():
            Lb("L_c6")
            A("s_barrier")
            A(f"v_mov_b32 v{vA}, 0x200")
            A(f"ds_write_b32 v{vMBc}, v{vA} offset:12")
            A("s_waitcnt lgkmcnt(0)")
            if cx == 2:
                for _ in range(5): A("s_barrier")
            A("s_endpgm")
        leave()
        Lb("L_c2")
        A("s_barrier")
        A("s_memrealtime s[18:19]")
        A(f"s_add_u32 s{sJ0}, s{sJ0}, 4")
        if TR < 0: A(f"s_cmpk_lt_u32 s{sJ0}, {4 * CS + 16}")
        A(f"s_waitcnt vmcnt(16) lgkmcnt(0)")
        if TR < 0: A("s_cbranch_scc1 L_c2")
        A(f"s_add_u32 s{sE}, s18, s{sRem}")
        A(f"s_sub_u32 s18, {RG}, s{sE}")
        A(f"v_add_u32 v{vD}, s18, v{vB}")
        A(f"v_cmp_gt_u32 vcc, {2 * RG}, v{vD}")
        A(f"v_subrev_u32 v{vD}, {RG}, v{vD}")
        A("s_lshr_b32 s61, vcc_hi, 16")
        A(f"v_cndmask_b32 v{vD}, 0, v{vD}, vcc")
        A(f"s_sub_u32 s{sRem}, s{sRem}, {tau}")
        A(f"v_readlane_b32 s58, v{vD}, 32"); A(f"v_readlane_b32 s59, v{vD}, 33"); A(f"v_readlane_b32 s60, v{vD}, s{sXc}")
        fill = [["s_sub_i32 s58, s58, s59", f"s_cmpk_lt_u32 s{sJ0}, {4 * GX + 16}"],
                [f"s_cselect_b32 s59, {gE * 4}, {gG * 4}", f"s_cselect_b32 s74, {k1}, {k2}"],
                ([f"s_sub_u32 s19, s{sJ0}, {4 * H0 + 16}", f"s_cmpk_lt_u32 s19, {4 * (H1 - H0)}", f"s_cselect_b32 s59, {gH * 4}, s59", f"s_cselect_b32 s74, {k3}, s74"] if H1 else []) +
                ["s_mul_i32 s58, s58, s59", f"s_add_i32 s58, s58, {bias * 32}"],
                ["s_cmpk_eq_u32 s61, 0xff"]]
        for sft, fl in zip((1, 2, 4, 8), fill):
            A(f"v_add_u32_dpp v{vD}, v{vD}, v{vD} row_ror:{sft} row_mask:0xf bank_mask:0xf")
            for x in fl: A(x)
        A(f"v_readlane_b32 s18, v{vD}, 0"); A(f"v_readlane_b32 s19, v{vD}, 16"); A(f"v_readlane_b32 s59, v{vD}, 48")
        A("s_cselect_b32 s60, s60, 0"); A("s_cselect_b32 s59, s59, 0")
        A("s_add_i32 s18, s18, s19")
        A("s_sub_i32 s58, s58, s18")
        C("a share of the lag goes on the account, whole groups are taken off it")
        A("s_mul_i32 s19, s74, s58"); A("s_ashr_i32 s19, s19, 8"); A(f"s_add_i32 s{sAc}, s{sAc}, s19")
        A(f"s_mul_i32 s62, s{sAc}, {65536 // uB + 1}"); A("s_ashr_i32 s62, s62, 16")
        A(f"s_mul_i32 s63, s{sAc}, {-(65536 // uT + 1)}"); A("s_ashr_i32 s63, s63, 16")
        A(f"s_max_i32 s62, s62, 0"); A(f"s_max_i32 s63, s63, 0")
        A(f"s_mul_i32 s19, s62, {uB}"); A(f"s_sub_i32 s{sAc}, s{sAc}, s19")
        A(f"s_mul_i32 s19, s63, {uT}"); A(f"s_add_i32 s{sAc}, s{sAc}, s19")
        A(f"s_min_i32 s62, s62, {mxB}"); A(f"s_min_i32 s63, s63, {mxT}")
        if kx:
            A(f"s_sub_u32 s19, s{sJ0}, {256 - 4 * kx}"); A(f"s_cmp_lt_u32 s19, {4 * kx}"); A("s_cselect_b32 s62, 4, s62"); A("s_cselect_b32 s63, 0, s63")
        if ky:
            A(f"s_cmpk_eq_u32 s{sJ0}, 256"); A(f"s_cselect_b32 s62, {max(-ky, 0)}, s62"); A(f"s_cselect_b32 s63, {max(ky, 0)}, s63")
        A(f"s_add_u32 s62, s62, s{sJ0}"); A(f"s_add_u32 s63, s63, s{sJ0}")
        A("s_pack_ll_b32_b16 s62, s62, s63")
        A(f"v_mov_b32 v{vA}, s62")
        A(f"ds_write_b32 v{vMBc}, v{vA} offset:12")
        if trace:
            A(f"v_mov_b32 v24, s{sE}"); A("v_mov_b32 v25, s58"); A("v_mov_b32 v26, s62"); A("v_mov_b32 v27, s18")
            A("s_mov_b64 exec, 1")
            A(f"buffer_store_dwordx4 v[24:27], v20, s[{sWS}:{sWS+3}], 0 offen")
            A("s_mov_b64 exec, -1")
            A("v_add_u32 v20, 16, v20")
        A(f"s_bitcmp1_b32 s{sJ0}, 2")
        A("s_cbranch_scc1 L_c2")
        A(f"s_cmpk_eq_u32 s{sJ0}, {4 * CE + 16}")
        A("s_cbranch_scc1 L_c6")
        C("every other round: post and look")
        A("s_ashr_i32 s59, s59, 3"); A(f"s_add_u32 s59, s59, s{sE}")
        A(f"s_add_u32 s60, s60, s{sE}")
        A("s_ashr_i32 s18, s18, 5"); A(f"s_add_u32 s18, s18, s{sE}")
        A(f"v_mov_b32 v{vP}, s{sE}"); A(f"v_writelane_b32 v{vP}, s60, 32"); A(f"v_writelane_b32 v{vP}, s59, 33")
        A(f"v_mov_b32 v{vG}, s18")
        A(f"s_lshr_b32 s19, s{sJ0}, 3"); A(f"s_lshr_b64 s[78:79], s[80:81], s19")
        A("s_mov_b64 exec, s[68:69]")
        A(f"buffer_store_dword v{vP}, v{vLo}, s[{sWS}:{sWS+3}], 0 offen")
        A("s_mov_b64 exec, s[66:67]")
        A(f"buffer_load_dword v{vB}, v{vLo}, s[{sWS}:{sWS+3}], 0 offen sc1")
        A("s_bitcmp0_b32 s78, 1")
        A("s_cbranch_scc1 L_c4")
        A("s_mov_b64 exec, s[72:73]")
        A(f"buffer_atomic_swap v{vG}, v{vLo}, s[{sWS}:{sWS+3}], 0 offen sc1")
        Lb("L_c4")
        A("s_bitcmp0_b32 s78, 0")
        A("s_cbranch_scc1 L_c5")
        A("s_mov_b64 exec, s[64:65]")
        A(f"buffer_load_dword v{vB}, v{vLo}, s[{sWS}:{sWS+3}], 0 offen sc1")
        Lb("L_c5")
        A("s_mov_b64 exec, -1")
        if cw:
            A(f"s_lshr_b32 s19, s{sJ0}, 3"); A("s_and_b32 s19, s19, s75"); A("s_cbranch_scc1 L_c2")
            A(f"global_load_dword v16, v[14:15], off {cwf.replace('none', '').replace('+', ' ')}")
        A("s_branch L_c2")

    vM8, vEps = 8, 9
    vM1, vM2, vDen, vQa = 12, 13, 14, 15
    vKb = 16
    vVb = 20
    vAd = 24
    vPa = 28
    vSn = 29
    vFl = 30
    vKP = 32; vG = 36; vX = 40; vT = 42; vY = 44; vPH = 48; vPQ = 52
    vDp = 54
    vS0 = 56
    vL4 = 57
    vZero = 58
    vMB = 59
    vL16 = 60
    vSl = 61
    vOM = 64; vK = 96; vB = 128; vA = 144; vACC = 148
    nv = 164 + nvx
    sOwn = 94
    o.append(".p2align 6")
    for _ in range(pc): A("s_nop 0")
    C("---- consumer waves")
    Lb("L_cons")
    A(f"s_load_dwordx8 s[4:11], s[0:1], 0")
    A(f"s_load_dwordx4 s[12:15], s[0:1], 32")
    A(f"s_load_dwordx2 s[16:17], s[0:1], 48")
    A("v_and_b32 v0, 63, v0")
    A("s_cmpk_eq_u32 s3, 320")
    A("s_cbranch_scc1 L_ctl")
    dma_offsets()
    A("s_lshr_b32 s3, s3, 6")
    A(f"s_sub_u32 s{sC}, s3, 1")
    A(f"s_lshr_b32 s{sHead}, s{sId}, 3")
    A(f"s_mov_b32 s{sOM+2}, 8192"); A(f"s_mov_b32 s{sOM+3}, 0x20000")
    A(f"s_mov_b32 s{sQ+2}, 16384"); A(f"s_mov_b32 s{sQ+3}, 0x20000")
    A(f"s_lshl_b32 s19, s{sHead}, 9")
    A(f"s_mov_b32 m0, {OMG}")
    A(f"s_mov_b32 s18, 4096")
    A(f"s_cmp_lg_u32 s{sC}, 0")
    A("s_waitcnt lgkmcnt(0)")
    A(f"s_mov_b32 s{sOM}, s10"); A(f"s_mov_b32 s{sOM+1}, s11")
    A(f"s_mov_b32 s{sQ}, s4"); A(f"s_mov_b32 s{sQ+1}, s5")
    A("s_cbranch_scc1 L_noom")
    for n in range(4):
        A(f"buffer_load_dwordx4 v{4+n}, s[{sOM}:{sOM+3}], 0 offen offset:{n*1024} lds")
    A(f"s_mov_b32 m0, {OMG+4096}"); A("s_nop 0")
    for n in range(4):
        A(f"buffer_load_dwordx4 v{4+n}, s[{sOM}:{sOM+3}], s18 offen offset:{n*1024} lds")
    A(f"s_mov_b32 m0, {QL}")
    A("s_bfm_b64 exec, 32, 0")
    A(f"buffer_load_dwordx4 v4, s[{sQ}:{sQ+3}], s19 offen nt lds")
    A("s_mov_b64 exec, -1")
    Lb("L_noom")
    A(f"s_lshr_b32 s{sPart}, s{sId}, 5"); A(f"s_sub_u32 s{sPart}, s{sId}, s{sPart}"); A(f"s_and_b32 s{sPart}, s{sPart}, 7")
    A(f"s_mov_b32 s{sWS}, s16"); A(f"s_mov_b32 s{sWS+1}, s17"); A(f"s_mov_b32 s{sWS+2}, {WSB}"); A(f"s_mov_b32 s{sWS+3}, 0x20000")
    A(f"s_mov_b32 s{sOUT}, s12"); A(f"s_mov_b32 s{sOUT+1}, s13"); A(f"s_mov_b32 s{sOUT+2}, 16384"); A(f"s_mov_b32 s{sOUT+3}, 0x20000")
    A(f"s_mov_b32 s{sDBG}, s14"); A(f"s_mov_b32 s{sDBG+1}, s15"); A(f"s_mov_b32 s{sDBG+2}, 256"); A(f"s_mov_b32 s{sDBG+3}, 0x20000")
    if vt == 0: A(f"s_mov_b32 s{sV}, s8"); A(f"s_mov_b32 s{sV+1}, s9"); A(f"s_mov_b32 s{sV+2}, {1<<28}"); A(f"s_mov_b32 s{sV+3}, 0x20000")
    A("v_lshrrev_b32 v5, 4, v0")
    A("v_and_b32 v1, 15, v0")
    A(f"s_lshl_b32 s93, s{sHead}, 2")
    A(f"v_lshlrev_b32 v{vL4}, 2, v0"); A(f"v_mov_b32 v{vZero}, 0"); A(f"v_mov_b32 v{vMB}, {MB}")
    A(f"s_add_u32 s67, s93, s{sC}"); A("s_lshl_b32 s67, s67, 11")
    A(f"s_lshl_b32 s68, s{sPart}, 8"); A("s_add_u32 s68, s68, s67")
    A(f"s_mul_i32 s69, s{sHead}, {HS}"); A(f"s_add_u32 s69, s69, {CTR}")
    A(f"s_lshl_b32 s63, s{sPart}, 7"); A("s_add_u32 s63, s63, s69")
    A(f"s_lshl_b32 s18, s{sC}, 7"); A(f"s_add_u32 s19, s18, s19")
    A(f"v_mov_b32 v7, {OOB:#x}"); A(f"v_lshlrev_b32 v{vL16}, 4, v0")
    A("v_and_b32 v3, 7, v0")
    A(f"v_lshlrev_b32 v{vDp}, 7, v3")
    A(f"v_mov_b32 v{vSn}, v7"); A(f"v_mov_b32 v{vSl}, v7")
    A(f"v_mov_b32 v{vS0}, v7")
    A(f"v_mov_b32 v{vM1}, -1"); A(f"v_mov_b32 v{vM2}, 0xffff0000")
    A(f"s_mov_b32 s{sOwn}, 0x01010101"); A(f"s_mov_b32 s{sOwn+1}, 0x01010101")
    A(f"v_cndmask_b32 v{vDp}, v{vDp}, v7, s[{sOwn}:{sOwn+1}]")
    C("finishing workgroup: what earlier launches left in the hand-over words")
    A(f"s_cmp_lg_u32 s{sPart}, 0"); A("s_cbranch_scc1 L_noec")
    A(f"buffer_load_dwordx4 v[{vB}:{vB+3}], v{vL16}, s[{sWS}:{sWS+3}], s67 offen {chkf}")
    A(f"buffer_load_dwordx4 v[{vB+4}:{vB+7}], v{vL16}, s[{sWS}:{sWS+3}], s67 offen offset:1024 {chkf}")
    A(f"buffer_load_dwordx2 v[{vB+8}:{vB+9}], v{vDp}, s[{sWS}:{sWS+3}], s69 offen offset:{DO} {chkf}")
    Lb("L_noec")
    A("s_bfm_b64 exec, 48, 0"); A(f"v_mov_b32 v{vM1}, v{vM2}")
    A("s_bfm_b64 exec, 32, 0"); A(f"v_mov_b32 v{vM2}, 0")
    A("s_bfm_b64 exec, 16, 0"); A(f"v_mov_b32 v{vM1}, 0"); A(f"v_mov_b32 v{vSn}, v{vL16}")
    A("s_bfm_b64 exec, 8, 0"); A(f"v_mov_b32 v{vSl}, v{vL16}")
    A("s_mov_b64 exec, -1")
    A(f"v_writelane_b32 v{vS0}, 0, 0")
    A("v_and_b32 v6, 7, v1"); A("v_lshlrev_b32 v6, 1, v6")
    A("v_xor_b32 v6, v6, v5")
    A("v_lshlrev_b32 v6, 4, v6"); A(f"v_lshl_add_u32 v{vKb}, v1, 9, v6")
    for jj in range(1, 4): A(f"v_xor_b32 v{vKb+jj}, {jj*64}, v{vKb}")
    A(f"v_lshlrev_b32 v11, 4, v5")
    A(f"v_lshl_add_u32 v{vQa}, v5, 3, v{vMB}")
    A("v_lshrrev_b32 v6, 2, v0")
    A("v_and_b32 v7, 7, v6")
    A(f"s_lshl_b32 s18, s{sC}, 2")
    A("v_xor_b32 v7, s18, v7")
    A("v_lshlrev_b32 v7, 5, v7"); A("v_lshl_add_u32 v7, v6, 9, v7")
    A("v_and_b32 v10, 3, v0"); A(f"v_lshl_add_u32 v{vVb}, v10, 3, v7")
    for t in range(1, 4): A(f"v_xor_b32 v{vVb+t}, {t*32}, v{vVb}")
    for r in range(4):
        m = (1 << r) | (1 << (20 + r)) | (1 << (40 + r)) | (1 << (60 + r))
        A(f"s_mov_b32 s{sMask+2*r}, {m & 0xffffffff:#x}"); A(f"s_mov_b32 s{sMask+2*r+1}, {m >> 32:#x}")
    A(f"s_mov_b32 s{sL2E}, {f2u(math.log2(math.e)/4):#x}")
    A(f"v_mov_b32 v{vM8}, {f2u(-0.125):#x}"); A(f"v_mov_b32 v{vEps}, {f2u(1e-6):#x}")
    for r in range(16): A(f"v_mov_b32 v{vACC+r}, 0")
    A(f"v_mov_b32 v{vDen}, 0")
    A(f"s_and_b32 s18, s{sC}, 1"); A(f"s_lshr_b32 s52, s{sC}, 1")
    A(f"s_lshl_b32 s{sRing}, s52, 14"); A("s_lshl_b32 s53, s18, 13"); A(f"s_add_u32 s{sRing}, s{sRing}, s53")
    A("s_lshl_b32 s53, s52, 8"); A("s_lshl_b32 s18, s18, 3"); A("s_add_u32 s53, s53, s18"); A(f"s_add_u32 s53, s53, {WA}")
    A(f"v_lshl_add_u32 v{vPa}, v6, 4, s53"); A(f"v_lshl_add_u32 v{vPa}, v10, 1, v{vPa}")
    for jj in range(4): A(f"v_add_u32 v{vAd+jj}, {OMG}, v{vKb+jj}")
    A(f"v_add_u32 v2, {QL}, v11")
    A(f"s_mov_b32 s{sCnt}, 32")
    A(f"s_cmp_eq_u32 s{sPart}, 0")
    A(f"s_cselect_b32 s{sEv}, {K2}, {K5}")
    A("s_cbranch_scc1 L_ecw")
    A("s_waitcnt vmcnt(0)")
    Lb("L_ecw")
    A("s_waitcnt vmcnt(3)")
    def first():
        A("s_barrier")
        for j in range(8):
            A(f"ds_read_b128 v[{vOM+j*4}:{vOM+j*4+3}], v{vAd+(j&3)} offset:{(j>>2)*256}")
        for jj in range(4): A(f"v_add_u32 v{vAd+jj}, s{sRing}, v{vKb+jj}")
    if al == 2:
        A(f"s_cmp_eq_u32 s{sC}, 2")
        A("s_cbranch_scc1 L_phi")
    first()
    A("s_cmp_eq_u32 s52, 0")
    A("s_cbranch_scc1 L_k_nb")
    if al < 2:
        A(f"s_cmp_lg_u32 s{sC}, 2")
        A("s_cbranch_scc1 L_k")

    def round4(src, dst):
        A(f"v_cvt_pk_bf16_f32 v{vT}, v{src}, v{src+1}")
        A(f"v_cvt_pk_bf16_f32 v{vT+1}, v{src+2}, v{src+3}")
        A(f"v_lshlrev_b32 v{dst}, 16, v{vT}"); A(f"v_and_b32 v{dst+1}, 0xffff0000, v{vT}")
        A(f"v_lshlrev_b32 v{dst+2}, 16, v{vT+1}"); A(f"v_and_b32 v{dst+3}, 0xffff0000, v{vT+1}")
    def phi_tail():
        round4(vY, vY)
        for r in range(4): A(f"v_mul_f32 v{vY+r}, s{sL2E}, v{vY+r}")
        for r in range(4): A(f"v_exp_f32 v{vY+r}, v{vY+r}")
        A("s_nop 0")
        round4(vY, vY)
        for r in range(4): A(f"v_fmamk_f32 v{vY+r}, v{vY+r}, 0x3e800000, v{vEps}")
        A(f"v_cvt_pk_bf16_f32 v{vPH}, v{vY}, v{vY+1}")
        A(f"v_cvt_pk_bf16_f32 v{vPH+1}, v{vY+2}, v{vY+3}")

    def phiq():
        C("phi(q), by the wave that has nothing to do in the first round")
        for j in range(8):
            A(f"ds_read_b128 v[{vK+j*4}:{vK+j*4+3}], v2 offset:{j*64}")
        A("s_waitcnt lgkmcnt(0)")
        for j in range(8):
            qr = f"v[{vK+j*4}:{vK+j*4+3}]"
            c = "0" if j == 0 else f"v[{vKP}:{vKP+3}]"
            A(f"v_mfma_f32_16x16x32_bf16 v[{vKP}:{vKP+3}], v[{vOM+j*4}:{vOM+j*4+3}], {qr}, {c}")
            c = "0" if j == 0 else f"v[{vG}:{vG+3}]"
            A(f"v_mfma_f32_16x16x32_bf16 v[{vG}:{vG+3}], {qr}, {qr}, {c}")
        A("s_nop 7")
        round4(vKP, vKP)
        A(f"v_cvt_pk_bf16_f32 v{vX}, v{vG}, v{vG}")
        A(f"v_and_b32 v{vX}, 0xffff0000, v{vX}")
        for r in range(4): A(f"v_fma_f32 v{vY+r}, v{vX}, v{vM8}, v{vKP+r}")
        phi_tail()
        A(f"ds_write_b64 v{vQa}, v[{vPH}:{vPH+1}] offset:32")
        A("s_waitcnt lgkmcnt(0)")
    if al < 2: phiq()

    C("---- K phase: weights of 16 keys per wave and pair of rounds")
    Lb("L_k")
    A("s_barrier")
    Lb("L_k_nb")
    for j in range(8):
        A(f"ds_read_b128 v[{vK+j*4}:{vK+j*4+3}], v{vAd+(j&3)} offset:{(j>>2)*256}")
    A(f"s_add_u32 s{sRing}, s{sRing}, 32768"); A(f"s_and_b32 s{sRing}, s{sRing}, 0xffff")
    for jj in range(4): A(f"v_add_u32 v{vAd+jj}, s{sRing}, v{vKb+jj}")
    for j in range(8):
        kr = f"v[{vK+j*4}:{vK+j*4+3}]"
        A(f"s_waitcnt lgkmcnt({7-j})")
        c = "0" if j == 0 else f"v[{vG}:{vG+3}]"
        A(f"v_mfma_f32_16x16x32_bf16 v[{vG}:{vG+3}], {kr}, {kr}, {c}")
        c = "0" if j == 0 else f"v[{vKP}:{vKP+3}]"
        A(f"v_mfma_f32_16x16x32_bf16 v[{vKP}:{vKP+3}], v[{vOM+j*4}:{vOM+j*4+3}], {kr}, {c}")
    A("s_barrier")
    A(f"ds_read_b64 v[{vPQ}:{vPQ+1}], v{vQa} offset:32")
    A("s_nop 7")
    A(f"v_cndmask_b32 v{vX}, 0, v{vG}, s[{sMask}:{sMask+1}]")
    for r in range(1, 4):
        A(f"v_cndmask_b32 v{vX}, v{vX}, v{vG+r}, s[{sMask+2*r}:{sMask+2*r+1}]")
    A(f"v_cvt_pk_bf16_f32 v{vX}, v{vX}, v{vX}")
    A(f"v_and_b32 v{vX}, 0xffff0000, v{vX}")
    round4(vKP, vKP)
    A("s_nop 1")
    A(f"v_mfma_f32_16x16x4_f32 v[{vY}:{vY+3}], v{vM8}, v{vX}, v[{vKP}:{vKP+3}]")
    A("s_nop 9")
    phi_tail()
    A("s_waitcnt lgkmcnt(0)")
    A(f"s_sub_u32 s{sCnt}, s{sCnt}, 1")
    A(f"v_mfma_f32_16x16x16_bf16 v[{vG}:{vG+3}], v[{vPQ}:{vPQ+1}], v[{vPH}:{vPH+1}], 0")
    A("s_nop 7")
    A(f"v_and_b32 v{vT}, v{vM1}, v{vG}")
    A(f"v_add_f32 v{vDen}, v{vDen}, v{vG}")
    A(f"v_sub_f32 v{vX}, v{vG}, v{vT}")
    A(f"v_and_b32 v{vT}, v{vM2}, v{vX}")
    A(f"v_sub_f32 v{vX}, v{vX}, v{vT}")
    A(f"ds_write_b16_d16_hi v{vPa}, v{vX}")
    A(f"v_add_u32 v{vPa}, 512, v{vPa}")
    A(f"s_cmp_eq_u32 s{sCnt}, s{sEv}")
    A("s_cbranch_scc1 L_ke")
    Lb("L_ke_ret")
    A(f"s_cmp_lg_u32 s{sCnt}, 0")
    A("s_waitcnt lgkmcnt(0)")
    A("s_cbranch_scc1 L_k")

    C("---- V phase: w^T v for 64 columns per wave")
    NQ = 62
    T4 = 2; T3 = 3
    A(f"v_lshl_add_u32 v{vPa}, v10, 6, v11"); A(f"v_add_u32 v{vPa}, {WA}, v{vPa}")
    A(f"s_lshl_b32 s18, s{sC}, 6"); A(f"v_lshl_add_u32 v2, v1, 2, s18"); A(f"v_add_u32 v2, v2, v{vMB}")
    A(f"ds_read_b128 v[{vA}:{vA+3}], v{vPa}")
    A(f"ds_write_b32 v2, v{vDen} offset:256")
    A(f"s_mov_b32 s{sRing}, 0")
    A(f"s_mov_b32 s{sCnt}, 64")
    A(f"s_cmp_eq_u32 s{sC}, 0"); A(f"s_cselect_b32 s{sEv}, {NQ}, {T3}")
    A("v_lshlrev_b32 v1, 1, v0")
    for t in range(4): A(f"v_mov_b32 v{vAd+t}, v{vVb+t}")
    A("s_cmp_lg_u32 s52, 0")
    A("s_waitcnt lgkmcnt(0)")
    A("s_cbranch_scc1 L_v_nb")
    Lb("L_v")
    A("s_barrier")
    Lb("L_v_nb")
    for t in range(4):
        A(f"ds_read_b64_tr_b16 v[{vB+t*4}:{vB+t*4+1}], v{vAd+t}")
        A(f"ds_read_b64_tr_b16 v[{vB+t*4+2}:{vB+t*4+3}], v{vAd+t} offset:8192")
    A(f"s_add_u32 s{sRing}, s{sRing}, 16384"); A(f"s_and_b32 s{sRing}, s{sRing}, 0xffff")
    A(f"v_add_u32 v{vPa}, 256, v{vPa}")
    A(f"s_sub_u32 s{sCnt}, s{sCnt}, 1")
    for t in range(4):
        A(f"s_waitcnt lgkmcnt({6-2*t})")
        a = vACC + t * 4
        A(f"v_mfma_f32_16x16x32_bf16 v[{a}:{a+3}], v[{vA}:{vA+3}], v[{vB+t*4}:{vB+t*4+3}], v[{a}:{a+3}]")
    for t in range(4): A(f"v_add_u32 v{vAd+t}, s{sRing}, v{vVb+t}")
    A(f"ds_read_b128 v[{vA}:{vA+3}], v{vPa}")
    A(f"s_cmp_eq_u32 s{sCnt}, s{sEv}")
    A("s_cbranch_scc0 L_v")
    A(f"s_cmp_lg_u32 s{sCnt}, 1")
    A("s_cbranch_scc1 L_ve")

    P = vOM; Q = P + 8
    sTg = 20
    sM1, sM2, sMode = 24, 26, 28
    S = vK
    def polls(R, masked):
        A(f"s_mov_b64 exec, s[{sM1}:{sM1+1}]")
        A(f"buffer_load_dwordx4 v[{R}:{R+3}], v{vL16}, s[{sWS}:{sWS+3}], s67 offen sc1")
        A(f"s_mov_b64 exec, s[{sM2}:{sM2+1}]" if masked else "s_mov_b64 exec, -1")
        A(f"buffer_load_dwordx4 v[{R+4}:{R+7}], v{vL16}, s[{sWS}:{sWS+3}], s67 offen offset:1024 sc1")
        if masked: A("s_mov_b64 exec, -1")
    def add1(t): A(f"v_add_f32 v{S+t}, v{vACC+4*t+1}, v{vACC+4*t+2}")
    def add2(t): A(f"v_add_f32 v{S+t}, v{S+t}, v{vACC+4*t}")
    def tag(t): A(f"v_bfi_b32 v{S+t}, 63, s{sTg+t}, v{S+t}")
    def mf(t):
        A(f"s_waitcnt lgkmcnt({3 - t})")
        a = vACC + t * 4
        A(f"v_mfma_f32_16x16x32_bf16 v[{a}:{a+3}], v[{vA}:{vA+3}], v[{vB+t*4}:{vB+t*4+3}], v[{a}:{a+3}]")
    C("---- the last round, in two halves; add the parts, hand over / collect")
    A(f"s_cmp_lg_u32 s{sPart}, 0")
    A("s_cbranch_scc1 L_last")
    polls(P, 0)
    Lb("L_last")
    A("s_barrier")
    for t in range(4): A(f"ds_read_b64_tr_b16 v[{vB+t*4}:{vB+t*4+1}], v{vAd+t}")
    A(f"s_cmp_lg_u32 s{sMode}, 0")
    A("s_barrier")
    for t in range(4): A(f"ds_read_b64_tr_b16 v[{vB+t*4+2}:{vB+t*4+3}], v{vAd+t} offset:8192")
    if qe: polls(Q, 1)
    mf(0); mf(1); mf(2); mf(3)
    if stamp: A("s_memrealtime s[72:73]")
    A("s_cbranch_scc1 L_other")
    A("s_nop 0")
    def sums(): add1(0); add2(0); add1(1); add2(1); add1(2); add2(2); add1(3); tag(0); add2(3); tag(1); tag(2); tag(3)
    def out_prod(fl):
        A(f"buffer_store_dwordx4 v[{S}:{S+3}], v{vSn}, s[{sWS}:{sWS+3}], s68 offen{fl or (' ' + gnt.replace('+', ' '))}".rstrip())
        for _ in range(xd):
            A("s_add_u32 s68, s68, 0x100000")
            A(f"buffer_store_dwordx4 v[{S}:{S+3}], v{vSn}, s[{sWS}:{sWS+3}], s68 offen{fl}")
        if stamp:
            A("s_mov_b32 s76, 0"); A("s_mov_b32 s78, 0"); A("s_mov_b32 s80, 0")
            A("s_branch L_fin")
        else:
            A("s_endpgm")
    sums()
    out_prod("")
    Lb("L_far")
    out_prod(" " + stf)
    Lb("L_other")
    if not qe: polls(Q, 1)
    A(f"s_cmp_lg_u32 s{sPart}, 0"); sums()
    A("s_cbranch_scc1 L_far")
    if stamp:
        A("s_memrealtime s[78:79]"); A("s_mov_b32 s76, 0")
    A("s_mov_b64 exec, 0xffff")
    for R in (P, Q):
        for h in (0, 2): A(f"v_pk_mov_b32 v[{R+h}:{R+h+1}], v[{S+h}:{S+h+1}], v[{S+h}:{S+h+1}] op_sel:[0,1]")
    A("s_mov_b64 exec, -1")
    X = S + 4
    Lb("L_chk")
    for R, nm in ((P, "L_f1"), (Q, "L_f2")):
        if stamp: A("s_add_u32 s76, s76, 1")
        A(f"s_waitcnt vmcnt(2)")
        A(f"v_pk_add_f32 v[{S+8}:{S+9}], v[{R}:{R+1}], v[{R+4}:{R+5}]")
        A(f"v_pk_add_f32 v[{S+10}:{S+11}], v[{R+2}:{R+3}], v[{R+6}:{R+7}]")
        A(f"v_bitop3_b32 v{X}, v{R}, v{R+4}, s{sTg} bitop3:0x7e")
        A(f"v_bitop3_b32 v{X+1}, v{R+1}, v{R+5}, s{sTg+1} bitop3:0x7e")
        A(f"v_permlane32_swap_b32 v{S+8}, v{S+10}")
        A(f"v_permlane32_swap_b32 v{S+9}, v{S+11}")
        A(f"v_pk_add_f32 v[{S+8}:{S+9}], v[{S+8}:{S+9}], v[{S+10}:{S+11}]")
        A(f"v_bitop3_b32 v{X+2}, v{R+2}, v{R+6}, s{sTg+2} bitop3:0x7e")
        A(f"v_bitop3_b32 v{X+3}, v{R+3}, v{R+7}, s{sTg+3} bitop3:0x7e")
        A(f"v_permlane16_swap_b32 v{S+8}, v{S+9}")
        A(f"v_or3_b32 v{X}, v{X}, v{X+1}, v{X+2}")
        A(f"v_add_f32 v{S+8}, v{S+8}, v{S+9}")
        A(f"v_bitop3_b32 v{X}, v{X}, v{X+3}, 63 bitop3:0xa8")
        A(f"v_cvt_pk_bf16_f32 v{S+8}, 0, v{S+8}")
        A(f"v_cmp_ne_u32 vcc, 0, v{X}")
        A(f"v_mul_f32 v{S+8}, v{S+8}, v{vFl+1}")
        A(f"v_cvt_pk_bf16_f32 v{S+8}, v{S+8}, v{S+8}")
        A(f"s_cbranch_vccnz {nm}")
        if stamp or ha: A("s_memrealtime s[80:81]")
        A(f"buffer_store_short v{S+8}, v1, s[{sOUT}:{sOUT+3}], s19 offen")
        if ha: A("s_waitcnt vmcnt(0)"); A("s_memrealtime s[74:75]")
        A("s_branch L_fin" if stamp else "s_branch L_ha" if ha else "s_endpgm")
        Lb(nm)
        polls(R, 0)
    A("s_sub_u32 s53, s53, 1")
    A("s_cbranch_scc0 L_chk")
    A("s_endpgm")

    for _ in range(pk): A("s_nop 0")
    def page2():
        C("---- second page of code: entered at its start by the steering wave")
        o.append(".p2align 12")
        steering()
        Lb("L_phi"); first(); phiq(); A("s_branch L_k")
        return len(o)
    if al == 2 and not ev1: mark = page2()
    C("---- V phase events")
    Lb("L_ve")
    A(f"s_cmp_gt_u32 s{sCnt}, {T3}"); A("s_cbranch_scc1 L_ve_0")
    A(f"s_sub_u32 s{sEv}, s{sEv}, 1")
    A(f"s_cmp_eq_u32 s{sCnt}, {T4}"); A("s_cbranch_scc1 L_ve_t4")
    A(f"ds_read_b64 v[{vFl}:{vFl+1}], v{vMB}")
    Lb("L_ve_ret")
    A("s_waitcnt lgkmcnt(0)")
    A("s_branch L_v")
    Lb("L_ve_t4")
    A(f"v_readfirstlane_b32 s{sTg}, v{vFl}")
    A("s_getreg_b32 s18, hwreg(HW_REG_XCC_ID, 0, 4)")
    A(f"s_mov_b32 s53, {1<<20}")
    A(f"s_bfe_u32 s{sMode}, s{sTg}, 0x40018")
    A(f"s_xor_b32 s{sMode}, s{sMode}, s18")
    if force: A(f"s_mov_b32 s{sMode}, 1")
    for t in range(1, 4): A(f"s_lshr_b32 s{sTg+t}, s{sTg}, {6*t}")
    A(f"s_cmp_eq_u32 s{sPart}, 0")
    A(f"s_cselect_b32 s{sMode}, 1, s{sMode}")
    A(f"s_cselect_b64 s[{sM2}:{sM2+1}], -1, 0")
    A(f"s_lshl_b64 s[{sM1}:{sM1+1}], s[{sM2}:{sM2+1}], 16")
    A("s_cbranch_scc0 L_v")
    polls(P, 0)
    A("s_branch L_v")
    if al == 2 and ev1: mark = page2()
    Lb("L_ve_0")
    A(f"s_cmp_eq_u32 s{sCnt}, {NQ}"); A("s_cbranch_scc1 L_ve_q")
    A(f"s_cmp_eq_u32 s{sCnt}, {ND}"); A("s_cbranch_scc0 L_ve_d")
    D = 4
    A(f"s_mov_b32 s{sEv}, {ND - 3}")
    if ov: A(f"buffer_load_dword v3, v{vS0}, s[{sOUT}:{sOUT+3}], s19 offen nt")
    A(f"buffer_load_dwordx2 v[{D}:{D+1}], v{vDp}, s[{sWS}:{sWS+3}], s69 offen offset:{DO} sc1 nt")
    A("s_branch L_ve_ret")
    C("finishing workgroup: the dens of the others")
    Lb("L_ve_d")
    A(f"s_mov_b32 s{sEv}, {T3}")
    A(f"s_mov_b32 s53, {1<<20}")
    Lb("L_dn")
    A("s_waitcnt vmcnt(0)")
    A(f"v_cmp_ne_u32 vcc, s{sT}, v{D+1}")
    A(f"v_cndmask_b32 v6, v{D}, v{vDen}, s[{sOwn}:{sOwn+1}]")
    A(f"s_andn2_b64 vcc, vcc, s[{sOwn}:{sOwn+1}]")
    A("s_cbranch_scc0 L_dn_ok")
    A(f"buffer_load_dwordx2 v[{D}:{D+1}], v{vDp}, s[{sWS}:{sWS+3}], s69 offen offset:{DO} {ldf}")
    A("s_sub_u32 s53, s53, 1")
    A("s_cbranch_scc0 L_dn")
    A("s_waitcnt vmcnt(0)")
    A(f"v_mov_b32 v6, -1")
    A("s_nop 1")
    Lb("L_dn_ok")
    A(f"v_add_f32_dpp v6, v6, v6 quad_perm:[1,0,3,2] row_mask:0xf bank_mask:0xf"); A("s_nop 1")
    A(f"v_add_f32_dpp v6, v6, v6 quad_perm:[2,3,0,1] row_mask:0xf bank_mask:0xf"); A("s_nop 1")
    A(f"v_add_f32_dpp v6, v6, v6 row_half_mirror row_mask:0xf bank_mask:0xf")
    A(f"v_cvt_pk_bf16_f32 v6, v6, v6"); A(f"v_and_b32 v6, 0xffff0000, v6")
    A(f"v_add_f32 v6, v6, v{vEps}")
    A(f"v_cvt_pk_bf16_f32 v6, v6, v6"); A(f"v_and_b32 v6, 0xffff0000, v6")
    A(f"v_rcp_f32 v7, v6")
    A("s_nop 0")
    A(f"ds_write_b32 v{vMB}, v7 offset:4")
    A("s_branch L_ve_ret")

    C("wave c=0 takes over the epoch word and hands the den of this workgroup over")
    Lb("L_ve_q")
    A(f"v_add_u32 v2, v{vL4}, v{vMB}")
    A(f"ds_read_b32 v{vDen}, v2 offset:256")
    A(f"s_mov_b32 s53, {1<<20}")
    Lb("L_ep")
    A("s_waitcnt vmcnt(0)")
    A(f"v_readfirstlane_b32 s{sT}, v{vFl}")
    A(f"s_cmp_lg_u32 s{sT}, 0")
    A("s_cbranch_scc1 L_ep_ok")
    A(f"buffer_load_dword v{vFl}, v{vS0}, s[{sDBG}:{sDBG+3}], s93 offen sc1")
    A("s_sub_u32 s53, s53, 1")
    A("s_cbranch_scc0 L_ep")
    A("s_waitcnt vmcnt(0)")
    Lb("L_ep_ok")
    A(f"v_mov_b32 v5, s{sT}"); A("v_mov_b32 v6, 0"); A("v_mov_b32 v7, 0")
    A(f"ds_write_b32 v{vMB}, v5")
    A(f"s_cmp_eq_u32 s{sPart}, 0"); A(f"s_cselect_b32 s{sEv}, {ND}, {T3}")
    A("s_getreg_b32 s18, hwreg(HW_REG_XCC_ID, 0, 4)")
    A(f"s_bfe_u32 s{sFar}, s{sT}, 0x40018")
    A("s_waitcnt lgkmcnt(0)")
    for sft in (1, 2, 4, 8):
        A(f"v_add_f32_dpp v{vDen}, v{vDen}, v{vDen} row_ror:{sft} row_mask:0xf bank_mask:0xf")
        A("s_nop 1")
    for sw in (32, 16):
        A(f"v_mov_b32 v2, v{vDen}"); A("s_nop 1")
        A(f"v_permlane{sw}_swap_b32 v2, v{vDen}")
        A(f"v_add_f32 v{vDen}, v{vDen}, v2")
    A(f"s_cmp_eq_u32 s{sPart}, 0")
    A("s_cbranch_scc1 L_ve_ret")
    A(f"v_mov_b32 v4, v{vDen}")
    A(f"s_cmp_lg_u32 s{sFar}, s18")
    if force: A("s_cmp_eq_u32 0, 0")
    A("s_cbranch_scc1 L_dfar")
    A(f"buffer_store_dwordx4 v[4:7], v{vSl}, s[{sWS}:{sWS+3}], s63 offen offset:{DO}")
    A("s_branch L_ve_ret")
    Lb("L_dfar")
    A(f"buffer_store_dwordx4 v[4:7], v{vSl}, s[{sWS}:{sWS+3}], s63 offen offset:{DO} {stf}")
    A("s_branch L_ve_ret")

    markk = len(o)
    C("---- K phase events: the finishing workgroup picks an epoch no old granule carries and announces it")
    Lb("L_ke")
    for n, nm in ((K3, "3"), (K4, "4"), (K5, "5")):
        A(f"s_cmp_eq_u32 s{sCnt}, {n}"); A(f"s_cbranch_scc1 L_ke{nm}")
    A(f"s_mov_b32 s{sEv}, {K3}")
    A("s_waitcnt vmcnt(0)")
    A(f"v_readlane_b32 s{sT}, v{vB+9}, 1")
    A("s_getreg_b32 s18, hwreg(HW_REG_XCC_ID, 0, 4)")
    A(f"s_add_u32 s{sT}, s{sT}, 1"); A(f"s_and_b32 s{sT}, s{sT}, 0xffffff"); A(f"s_bitset1_b32 s{sT}, 31")
    A("s_lshl_b32 s18, s18, 24"); A(f"s_or_b32 s{sT}, s{sT}, s18")
    for h in range(2):
        g = vB + 4 * h
        A(f"v_xor_b32 v3, s{sT}, v{g}")
        for j in range(1, 4):
            A(f"s_lshr_b32 s18, s{sT}, {6*j}")
            A(f"v_bitop3_b32 v3, v{g+j}, v3, s18 bitop3:0xde")
        A("v_and_b32 v3, 63, v3")
        A("v_cmp_eq_u32 vcc, 0, v3")
        A(f"v_xor_b32 v{g}, 1, v{g}")
        A(f"s_cbranch_vccz L_kc{h}")
        A("s_mov_b64 exec, vcc")
        A(f"buffer_store_dword v{g}, v{vL16}, s[{sWS}:{sWS+3}], s67 offen offset:{1024*h} {stf}")
        A("s_mov_b64 exec, -1")
        Lb(f"L_kc{h}")
    A(f"v_cmp_eq_u32 vcc, s{sT}, v{vB+9}")
    A(f"s_cbranch_vccz L_ke_ret")
    A("s_mov_b64 exec, vcc")
    A(f"buffer_store_dword v{vZero}, v{vDp}, s[{sWS}:{sWS+3}], s69 offen offset:{DO+4} {stf}")
    A("s_mov_b64 exec, -1")
    A("s_branch L_ke_ret")
    Lb("L_ke3")
    A(f"s_mov_b32 s{sEv}, {K4}")
    A("s_waitcnt vmcnt(0)")
    A("s_branch L_ke_ret")
    Lb("L_ke4")
    A(f"s_mov_b32 s{sEv}, {K5}")
    A(f"s_cmp_lg_u32 s{sC}, 0")
    A("s_cbranch_scc1 L_ke_ret")
    A(f"v_mov_b32 v5, s{sT}")
    A(f"buffer_atomic_swap v5, v{vS0}, s[{sDBG}:{sDBG+3}], s93 offen sc1")
    A("s_branch L_ke_ret")
    Lb("L_ke5")
    A(f"s_cmp_lg_u32 s{sC}, 0")
    A("s_cbranch_scc1 L_ke_ret")
    if vt == 0: A(f"buffer_load_dword v3, v{vS0}, s[{sV}:{sV+3}], s{sOff} offen nt")
    A(f"buffer_load_dword v{vFl}, v{vS0}, s[{sDBG}:{sDBG+3}], s93 offen")
    A("s_branch L_ke_ret")

    for _ in range(pz): A("s_nop 0")
    if al < 2: steering()
    else: o[mark:] = o[markk:] + o[mark:markk]

    if stamp:
        Lb("L_fin")
        A("s_waitcnt vmcnt(0)")
        A("s_memrealtime s[74:75]")
        A("s_getreg_b32 s82, hwreg(HW_REG_XCC_ID)")
        A("s_getreg_b32 s83, hwreg(HW_REG_HW_ID)")
        A("s_waitcnt lgkmcnt(0)")
        A(f"s_mul_i32 s19, s{sId}, 5"); A("s_add_u32 s19, s19, s3"); A("s_lshl_b32 s19, s19, 5"); A("s_add_u32 s19, s19, 0x100000")
        A("v_mov_b32 v2, s19")
        A("v_mov_b32 v4, s70"); A("v_mov_b32 v5, s76"); A("v_mov_b32 v6, s72"); A("v_mov_b32 v7, s82")
        A("v_mov_b32 v8, s83"); A("v_mov_b32 v9, s78"); A("v_mov_b32 v10, s80"); A("v_mov_b32 v11, s74")
        A("s_mov_b64 exec, 1")
        A("global_store_dwordx4 v2, v[4:7], s[16:17]")
        A("global_store_dwordx4 v2, v[8:11], s[16:17] offset:16")
        A("s_waitcnt vmcnt(0)")
    if ha:
        Lb("L_ha")
        A("s_waitcnt lgkmcnt(0)")
        if ha == 1: A(f"s_cmp_lg_u32 s{sRaw}, 0"); A("s_cbranch_scc1 L_end")
        A("s_sub_u32 s30, s74, s80"); A("s_mul_i32 s30, s30, 50"); A("s_min_i32 s30, s30, 20000"); A("s_add_u32 s30, s30, 10000")
        Lb("L_h3")
        A("s_memrealtime s[72:73]"); A("s_waitcnt lgkmcnt(0)")
        A("s_sub_u32 s72, s72, s70"); A("s_cmp_lt_i32 s72, s30"); A("s_cbranch_scc1 L_h3")
    Lb("L_end")
    A("s_endpgm")
    o.append('.section .rodata,"a"'); o.append(".p2align 6"); o.append(f".amdhsa_kernel {KN}")
    A(f".amdhsa_next_free_vgpr {nv}"); A(".amdhsa_next_free_sgpr 100"); A(f".amdhsa_accum_offset {nv}")
    A(".amdhsa_group_segment_fixed_size 0"); A(".amdhsa_kernarg_size 56"); A(".amdhsa_user_sgpr_count 2")
    A(".amdhsa_user_sgpr_kernarg_segment_ptr 1"); A(".amdhsa_system_sgpr_workgroup_id_x 1")
    A(".amdhsa_float_denorm_mode_32 3")
    o.append(".end_amdhsa_kernel")
    return "\n".join(o) + "\n"

if __name__ == "__main__":
    out = sys.argv[1]
    kw = {}
    for kv in sys.argv[2:]:
        k, v = kv.split("=")
        kw[k] = int(v) if v.lstrip("-").isdigit() else v
    open(out, "w").write(gen(**kw))
```
